```python
import torch

def _softmax(x, axis=-1):
    return torch.softmax(x, dim=axis)
def _gelu(x):
    return torch.nn.functional.gelu(x, approximate="tanh")
def _silu(x):
    return torch.nn.functional.silu(x)
def _sigmoid(x):
    return torch.sigmoid(x)
def _layernorm(x, axis=-1, eps=1e-5):
    m = x.mean(dim=axis, keepdim=True)
    v = x.var(dim=axis, keepdim=True, unbiased=False)
    return (x - m) / torch.sqrt(v + eps)
def _scatter_add(tgt, idx, src, axis=0):
    return tgt.clone().index_add_(axis, idx, src)
def _segment_sum(src, seg, n):
    out = torch.zeros((n,) + src.shape[1:], dtype=src.dtype)
    return out.index_add_(0, seg, src)
def _pad(x, pw):
    flat = tuple(v for pair in reversed(pw) for v in pair)
    return torch.nn.functional.pad(x, flat)

kernel_name = 'standalone__edge_featured_mpnn_egc__graph'

def setup_inputs():

    _w = (lambda a: (lambda t: t.to(torch.bfloat16) if t.is_floating_point() else t)(torch.as_tensor(a)))
    N, deg, D, De = 25000, 16, 128, max(16, 1)
    E = N * deg
    return {
        "x": _w((lambda *s: torch.randn(*s, dtype=torch.bfloat16) * 0.2)(N, D)),
        "e_attr": _w((lambda *s: torch.randn(*s, dtype=torch.bfloat16) * 0.2)(E, De)),
        "src": _w((lambda lo, hi, *s: torch.randint(lo, hi, s))(0, N, E).to(torch.int64)),
        "dst": _w((lambda lo, hi, *s: torch.randint(lo, hi, s))(0, N, E).to(torch.int64)),
        "u_w": _w((lambda *s: torch.randn(*s, dtype=torch.bfloat16) * 0.05)(D, D)),
        "v_w": _w((lambda *s: torch.randn(*s, dtype=torch.bfloat16) * 0.05)(D, D)),
        "g_w": _w((lambda *s: torch.randn(*s, dtype=torch.bfloat16) * 0.2)(2 * D + De, D)),
    }

def reference(x, e_attr, src, dst, u_w, v_w, g_w):
    N, D = x.shape
    g_in = torch.concatenate([x[dst], x[src], e_attr], axis=-1)
    eta = _sigmoid(g_in @ g_w)
    hv = x @ v_w
    msg = eta * hv[src]
    agg = _segment_sum(msg, dst, N)
    return _silu(x @ u_w + agg)
```

```python
import re

TRANS = ("v_exp_f32", "v_rcp_f32", "v_log_f32", "v_rsq_f32", "v_sqrt_f32", "v_sin_f32", "v_cos_f32")
REG_RE = re.compile(r"(?<![\w.])([vsa])(?:(\d+)|\[(\d+):(\d+)\])(?![\w])|\b(vcc|exec|m0)\b")


def regs_of(op):
    out = set()
    for m in REG_RE.finditer(op):
        if m.group(5):
            out.add(m.group(5))
        elif m.group(2) is not None:
            out.add(m.group(1) + m.group(2))
        else:
            for i in range(int(m.group(3)), int(m.group(4)) + 1):
                out.add(m.group(1) + str(i))
    return out


def split_ops(rest):
    ops, depth, cur = [], 0, ""
    for ch in rest:
        if ch == "[":
            depth += 1
        if ch == "]":
            depth -= 1
        if ch == "," and depth == 0:
            ops.append(cur.strip())
            cur = ""
        else:
            cur += ch
    if cur.strip():
        ops.append(cur.strip())
    return ops


class Ins:
    def __init__(self, text):
        self.text = text
        t = text.strip()
        self.label = t.endswith(":")
        self.directive = t.startswith(".") and not self.label
        self.comment = t.startswith(";") or not t
        self.w, self.r = set(), set()
        self.kind = "none"
        self.op = ""
        self.srcs = []
        if self.label or self.directive or self.comment:
            return
        t = t.split(";")[0].strip()
        parts = t.split(None, 1)
        op = self.op = parts[0]
        ops = split_ops(parts[1]) if len(parts) > 1 else []
        rs = [regs_of(o) for o in ops]
        allr = set().union(*rs) if rs else set()
        rest = set().union(*rs[1:]) if len(rs) > 1 else set()
        if op.startswith("v_mfma") or op.startswith("v_smfmac"):
            self.kind = "mfma"
            self.w, self.r = rs[0], rest
            self.srcs = rs[1:]
            self.passes = 8 if "32x32" in op else 4
            if op.startswith("v_smfmac"):
                self.r = self.r | rs[0]
                self.srcs = [rs[1], rs[2] | rs[3], rs[0]]
        elif op.startswith("v_"):
            self.kind = "valu"
            self.w, self.r = rs[0], rest
            if op.startswith(("v_fmac", "v_swap", "v_permlane", "v_writelane")) or "dpp" in op or "row_" in t:
                self.r = self.r | rs[0]
            if op.startswith(("v_swap", "v_permlane")):
                self.w = allr
            if op.startswith("v_cndmask") and len(ops) == 3:
                self.r = self.r | {"vcc"}
        elif op.startswith("ds_"):
            self.kind = "ds"
            if op.startswith(("ds_read", "ds_bpermute", "ds_permute", "ds_swizzle")) or "_rtn" in op:
                self.w, self.r = rs[0], rest
            else:
                self.r = allr
        elif op.startswith(("buffer_", "global_")):
            self.kind = "vmem"
            isl = re.search(r"\blds\b", t) or "load_lds" in op
            if isl:
                self.r = allr | {"m0"}
                self.dma = True
            elif "load" in op:
                self.w, self.r = rs[0], rest
            else:
                self.r = allr
                if "atomic" in op and "sc0" in t:
                    self.w = rs[0]
            self.wide_store = "store" in op and ("x4" in op or "x3" in op)
            self.data = rs[0] if rs else set()
        elif op.startswith("s_load") or op.startswith("s_memtime") or op.startswith("s_memrealtime"):
            self.kind = "smem"
            self.w, self.r = rs[0], rest
        elif op.startswith("s_"):
            self.kind = "salu"
            if op.startswith(("s_cmp", "s_cbranch", "s_branch", "s_waitcnt", "s_barrier", "s_nop", "s_setprio",
                              "s_endpgm", "s_sleep", "s_bitcmp")):
                self.r = allr
            else:
                self.w, self.r = rs[0], rest
                if "saveexec" in op:
                    self.w = self.w | {"exec"}
        else:
            raise ValueError("unknown instruction: " + text)

    def states(self):
        if self.label or self.directive or self.comment:
            return 0
        if self.op == "s_nop":
            return int(self.text.split()[1], 0) + 1
        return 1


def need(p, c):
    n = 0
    vw = {x for x in p.w if x[0] in "va" and x != "vcc"}
    sw = {x for x in p.w if x[0] == "s" or x == "vcc"}
    if p.kind == "valu":
        if c.kind == "mfma" and vw & c.r:
            n = max(n, 2)
        if c.kind == "valu":
            if p.op.startswith(TRANS) and vw & c.r:
                n = max(n, 1)
            if sw & c.r:
                n = max(n, 4 if c.op.startswith(("v_readlane", "v_writelane")) else 2)
            if c.op.startswith(("v_readlane", "v_readfirstlane")) and vw & c.r:
                n = max(n, 1)
            if ("dpp" in c.op or "row_" in c.text or c.op.startswith("v_permlane")) and vw & c.r:
                n = max(n, 2)
            if "exec" in p.w:
                n = max(n, 5)
        if c.kind == "vmem" and sw & c.r:
            n = max(n, 5)
        if c.kind in ("salu", "smem") and sw & c.r:
            n = max(n, 1)
    if p.kind == "mfma":
        big = {8: 12, 4: 8}[p.passes]
        if c.kind == "mfma":
            if p.w & (c.srcs[0] | c.srcs[1]):
                n = max(n, big)
            cs = c.srcs[2] if len(c.srcs) > 2 else set()
            if p.w & cs and not (p.w == cs and p.passes == c.passes):
                n = max(n, big - 2)
            if p.w & c.w and not (p.w == c.w and p.passes == c.passes):
                n = max(n, big - 2)
        elif c.kind in ("valu", "ds", "vmem"):
            if p.w & (c.r | c.w):
                n = max(n, big)
            cs = p.srcs[2] if len(p.srcs) > 2 else set()
            if c.kind == "valu" and cs & c.w:
                n = max(n, {8: 7, 4: 3}[p.passes])
    if p.kind == "salu" and "m0" in p.w and c.kind in ("vmem", "ds") and "m0" in c.r:
        n = max(n, 1)
    if p.kind == "vmem" and getattr(p, "wide_store", False) and p.data & c.w:
        n = max(n, 2 if c.kind == "valu" else 1)
    if p.kind == "ds" and p.op in ("ds_write_b128", "ds_write_b96") and c.kind == "valu" and p.r & c.w:
        n = max(n, 1)
    return n


class Asm:
    def __init__(self):
        self.ins = []
        self.vm = []
        self.lg = []

    def __call__(self, text, tag=None):
        for line in text.split("\n"):
            if not line.strip():
                continue
            i = Ins(line)
            self.ins.append(i)
            if i.kind == "vmem":
                self.vm.append(tag)
            if i.kind == "ds":
                self.lg.append(tag)
            if i.kind == "smem":
                self.lg.append("smem")
        return self

    def label(self, name):
        self.ins.append(Ins(name + ":"))

    def wait_vm(self, tag):
        idx = [k for k, t in enumerate(self.vm) if t == tag]
        if not idx:
            return
        n = len(self.vm) - 1 - idx[-1]
        assert n <= 63, n
        self.ins.append(Ins(f"s_waitcnt vmcnt({n})"))
        self.vm = self.vm[idx[-1] + 1:]

    def wait_lg(self, tag):
        idx = [k for k, t in enumerate(self.lg) if t == tag]
        if not idx:
            return
        n = len(self.lg) - 1 - idx[-1]
        if "smem" in self.lg:
            n = 0
        n = min(n, 15)
        self.ins.append(Ins(f"s_waitcnt lgkmcnt({n})"))
        self.lg = self.lg[len(self.lg) - n:] if n else []

    def wait_all(self, vm=True, lg=True):
        s = "s_waitcnt"
        if vm:
            s += " vmcnt(0)"
            self.vm = []
        if lg:
            s += " lgkmcnt(0)"
            self.lg = []
        self.ins.append(Ins(s))

    def text(self):
        out, hist = [], []
        nops = 0
        for c in self.ins:
            if c.states() > 0 or c.kind != "none":
                req, dist = 0, 0
                for p in reversed(hist):
                    req = max(req, need(p, c) - dist)
                    dist += p.states()
                    if dist >= 20:
                        break
                while req > 0:
                    k = min(req, 16)
                    n = Ins(f"s_nop {k - 1}")
                    out.append(n)
                    hist.append(n)
                    nops += 1
                    req -= k
                hist.append(c)
                hist = hist[-24:]
            out.append(c)
        self.nops = nops
        return "\n".join((i.text.strip() if (i.label or i.directive) else "    " + i.text.strip()) for i in out) + "\n"


def vr(b, n=1):
    return f"v{b}" if n == 1 else f"v[{b}:{b + n - 1}]"


def sr(b, n=1):
    return f"s{b}" if n == 1 else f"s[{b}:{b + n - 1}]"
```

```python
import os
import sys
sys.path.insert(0, os.path.dirname(os.path.abspath(__file__)))
from asmlib import Asm, vr, sr

N, E, D = 25000, 400000, 128
CH = 2048
NCH = (E + CH - 1) // CH
NB = 49
NWG2 = (N + NB - 1) // NB
SPLIT = 25
TCAP = 16
TAB_OFF, TAB_SZ = 0, N * 512
REC_OFF, REC_SZ = 0xC40000, NCH * CH * 4
CELL_OFF, CELL_SZ = 0xE00000, NCH * 512 * 4
WF_OFF, WF_SZ = 0xE80000, 65536 + 4096
NL2E = 0xBFB8AA3B
BIGOFF = 0x7FFFFF00
DIV49 = 21400
assert all((d * DIV49) >> 20 == d // NB for d in range(N))
SBIN = 1342
assert ((N - 1) * SBIN) >> 20 == 31
INC = [1, 2, 4, 8, 19, 37, 86, 169]

OPT = dict(EE=2, STAMP=0, ENT="nt")
for kv in sys.argv[2:]:
    k, v = kv.split("=")
    OPT[k] = int(v) if v.lstrip("-").isdigit() else v


def srd(a, d, lo, hi, size, off=0):
    if off:
        a(f"s_add_u32 s{d}, s{lo}, {off}")
        a(f"s_addc_u32 s{d+1}, s{hi}, 0")
        a(f"s_and_b32 s{d+1}, s{d+1}, 0xffff")
    else:
        a(f"s_mov_b32 s{d}, s{lo}")
        a(f"s_and_b32 s{d+1}, s{hi}, 0xffff")
    a(f"s_mov_b32 s{d+2}, {size}")
    a(f"s_mov_b32 s{d+3}, 0x20000")


def scan64(a, v):
    for sh in (1, 2, 4, 8):
        a(f"v_add_u32_dpp v{v}, v{v}, v{v} row_shr:{sh} row_mask:0xf bank_mask:0xf bound_ctrl:1")
    a(f"v_add_u32_dpp v{v}, v{v}, v{v} row_bcast:15 row_mask:0xa bank_mask:0xf")
    a(f"v_add_u32_dpp v{v}, v{v}, v{v} row_bcast:31 row_mask:0xc bank_mask:0xf")


def mfma(d, x, y, c):
    cs = "0" if c is None else vr(c, 16)
    return f"v_mfma_f32_32x32x16_bf16 {vr(d, 16)}, {vr(x, 4)}, {vr(y, 4)}, {cs}"


def descriptor(name, vgpr, sgpr):
    return f""".amdhsa_kernel {name}
  .amdhsa_next_free_vgpr {vgpr}
  .amdhsa_next_free_sgpr {sgpr}
  .amdhsa_accum_offset {(vgpr + 3) // 4 * 4}
  .amdhsa_group_segment_fixed_size 0
  .amdhsa_kernarg_size 80
  .amdhsa_user_sgpr_count 2
  .amdhsa_user_sgpr_kernarg_segment_ptr 1
  .amdhsa_system_sgpr_workgroup_id_x 1
.end_amdhsa_kernel
"""


K1_WB, K1_WV, K1_X = 0, 32768, 65536
K1_HIST, K1_START, K1_WTOT, K1_STG = 98304, 100352, 102400, 102656
K1_LDS = K1_STG + 8192


def tr_addr(a, dst, lane, sft, t0, t1, t2):
    a(f"v_bfe_u32 v{t0}, v{lane}, 2, 2")
    a(f"v_lshrrev_b32 v{t1}, 5, v{lane}")
    a(f"v_lshl_add_u32 v{t1}, v{t1}, 3, v{t0}")
    a(f"v_lshlrev_b32 v{dst}, 8, v{t1}")
    a(f"v_xor_b32 v{t0}, s{sft}, v{t0}")
    a(f"v_lshl_add_u32 v{dst}, v{t0}, 6, v{dst}")
    a(f"v_and_b32 v{t1}, 1, v{lane}")
    a(f"v_lshl_add_u32 v{dst}, v{t1}, 5, v{dst}")
    a(f"v_bfe_u32 v{t1}, v{lane}, 4, 1")
    a(f"v_lshl_add_u32 v{dst}, v{t1}, 4, v{dst}")
    a(f"v_bfe_u32 v{t1}, v{lane}, 1, 1")
    a(f"v_lshl_add_u32 v{dst}, v{t1}, 3, v{dst}")


def gen_k1():
    a = Asm()
    sX, sSRC, sDST, sGW, sVW, sUW, sTAB, sREC, sCELL, sWF = 24, 28, 32, 36, 40, 44, 48, 52, 56, 60
    sW, sFT, sMH, sT0, sT1, sK = 20, 21, 22, 64, 65, 66
    a(f"s_cmp_ge_u32 s2, {NCH + 3}")
    a("s_cbranch_scc1 K1_END")
    a("s_load_dwordx2 s[4:5], s[0:1], 0")
    a("s_load_dwordx4 s[8:11], s[0:1], 16")
    a("s_load_dwordx4 s[12:15], s[0:1], 32")
    a("s_load_dwordx2 s[16:17], s[0:1], 48")
    a("s_load_dwordx2 s[18:19], s[0:1], 72")
    vL, vQ, vP, vWO = 1, 2, 3, 4
    a(f"v_lshrrev_b32 v5, 6, v0")
    a(f"v_and_b32 v{vL}, 63, v0")
    a(f"v_readfirstlane_b32 s{sW}, v5")
    a(f"v_lshrrev_b32 v{vQ}, 4, v{vL}")
    a(f"v_and_b32 v{vP}, 15, v{vL}")
    a(f"v_lshlrev_b32 v5, 2, v{vQ}")
    a(f"v_xor_b32 v5, v5, v{vP}")
    a(f"v_lshlrev_b32 v5, 4, v5")
    a(f"v_lshl_add_u32 v{vWO}, v{vQ}, 8, v5")
    a(f"s_and_b32 s{sFT}, s{sW}, 3")
    a(f"s_lshr_b32 s{sMH}, s{sW}, 2")
    a(f"s_lshl_b32 s{sT0}, s{sW}, 12")
    a(f"v_add_u32 v{vWO}, s{sT0}, v{vWO}")
    a.wait_all(vm=False)
    srd(a, sGW, 16, 17, 272 * 256)
    srd(a, sWF, 18, 19, WF_SZ, WF_OFF)
    a(f"s_cmp_ge_u32 s2, {NCH}")
    a("s_cbranch_scc1 K1_PREP")
    srd(a, sDST, 10, 11, E * 4)
    srd(a, sSRC, 8, 9, E * 4)
    vD, vS, vO = 8, 12, 6
    a(f"s_lshl_b32 s{sT1}, s2, 13")
    a(f"v_lshl_add_u32 v{vO}, v0, 4, s{sT1}")
    a(f"buffer_load_dwordx4 {vr(vD,4)}, v{vO}, {sr(sDST,4)}, 0 offen", "ds")
    a(f"buffer_load_dwordx4 {vr(vS,4)}, v{vO}, {sr(sSRC,4)}, 0 offen", "ds")
    srd(a, sX, 4, 5, N * 256)
    srd(a, sVW, 14, 15, 32768)
    a(f"s_mov_b32 s{sK}, 32768")
    a(f"s_add_u32 m0, s{sT0}, {K1_WB}")
    for i in range(4):
        a(f"buffer_load_dwordx4 v{vWO}, {sr(sGW,4)}, s{sK} offen offset:{1024*i} lds", "dma")
    a(f"s_add_u32 m0, s{sT0}, {K1_WV}")
    for i in range(4):
        a(f"buffer_load_dwordx4 v{vWO}, {sr(sVW,4)}, 0 offen offset:{1024*i} lds", "dma")
    a(f"s_lshl_b32 s{sT1}, s2, 15")
    a(f"s_add_u32 s{sT1}, s{sT1}, s{sT0}")
    a(f"v_lshl_add_u32 v7, v{vQ}, 8, s{sT1}")
    a(f"s_add_u32 m0, s{sT0}, {K1_X}")
    for i in range(4):
        a(f"v_add_u32 v5, {4*i}, v{vQ}")
        a(f"v_xor_b32 v5, v5, v{vP}")
        a(f"v_lshl_add_u32 v5, v5, 4, v7")
        a(f"buffer_load_dwordx4 v5, {sr(sX,4)}, 0 offen offset:{1024*i} lds", "dma")
    srd(a, sTAB, 18, 19, TAB_SZ, TAB_OFF)
    srd(a, sREC, 18, 19, REC_SZ, REC_OFF)
    srd(a, sCELL, 18, 19, CELL_SZ, CELL_OFF)
    vT4 = 7
    a(f"v_lshlrev_b32 v{vT4}, 2, v0")
    a(f"v_mov_b32 v5, 0")
    a(f"ds_write_b32 v{vT4}, v5 offset:{K1_HIST - 65536 + 65536 if K1_HIST < 65536 else 0}" if False else
      f"v_add_u32 v16, {K1_HIST}, v{vT4}")
    a(f"ds_write_b32 v16, v5")
    a.wait_all(vm=False)
    a("s_barrier")
    a.wait_vm("ds")
    vB, vR, vK = 20, 24, 28
    a(f"s_mov_b32 s{sK}, {DIV49}")
    a(f"v_cmp_gt_u32 vcc, {E * 4}, v{vO}")
    a("s_mov_b64 s[68:69], vcc")
    for k in range(4):
        a(f"v_mul_u32_u24 v{vB+k}, s{sK}, v{vD+k}")
        a(f"v_lshrrev_b32 v{vB+k}, 20, v{vB+k}")
        a(f"v_mul_u32_u24 v5, {NB}, v{vB+k}")
        a(f"v_sub_u32 v5, v{vD+k}, v5")
        a(f"v_add_u32 v17, {32 - SPLIT}, v5")
        a(f"v_lshrrev_b32 v17, 5, v17")
        a(f"v_mad_u32_u24 v5, v17, {32 - SPLIT}, v5")
        a(f"v_lshl_or_b32 v{vK+k}, v5, 15, v{vS+k}")
        a(f"v_add_u32 v5, {k}, v{vT4}")
        a(f"v_lshl_or_b32 v{vK+k}, v5, 21, v{vK+k}")
        a(f"v_lshlrev_b32 v{vB+k}, 2, v{vB+k}")
        a(f"v_add_u32 v{vB+k}, {K1_HIST}, v{vB+k}")
    a("v_mov_b32 v5, 1")
    a("s_mov_b64 exec, s[68:69]")
    a("s_cbranch_execz K1_NOH")
    for k in range(4):
        a(f"ds_add_rtn_u32 v{vR+k}, v{vB+k}, v5")
    a.label("K1_NOH")
    a("s_mov_b64 exec, -1")
    a.wait_all(vm=False)
    a("s_barrier")
    a(f"ds_read_b32 v17, v16")
    a.wait_all(vm=False)
    a("v_mov_b32 v18, v17")
    scan64(a, 18)
    a(f"v_readlane_b32 s{sT1}, v18, 63")
    a(f"s_lshl_b32 s{sK}, s{sW}, 2")
    a(f"s_add_u32 s{sK}, s{sK}, {K1_WTOT}")
    a(f"v_mov_b32 v5, s{sK}")
    a(f"v_mov_b32 v19, s{sT1}")
    a(f"ds_write_b32 v5, v19")
    a.wait_all()
    a("s_barrier")
    a(f"v_and_b32 v5, 7, v{vL}")
    a(f"v_lshlrev_b32 v19, 2, v5")
    a(f"v_add_u32 v19, {K1_WTOT}, v19")
    a(f"ds_read_b32 v19, v19")
    a(f"v_cmp_gt_u32 vcc, s{sW}, v{vL}")
    a.wait_all(vm=False)
    a(f"v_cndmask_b32 v19, 0, v19, vcc")
    for sh in (1, 2, 4):
        a(f"v_add_u32_dpp v19, v19, v19 row_shr:{sh} row_mask:0xf bank_mask:0xf bound_ctrl:1")
    a(f"v_readlane_b32 s{sT1}, v19, 7")
    a(f"v_sub_u32 v18, v18, v17")
    a(f"v_add_u32 v18, s{sT1}, v18")
    a(f"ds_write_b32 v16, v18 offset:{K1_START - K1_HIST}")
    a(f"v_lshl_or_b32 v17, v17, 16, v18")
    a(f"s_lshl_b32 s{sT1}, s2, 11")
    a(f"v_add_u32 v5, s{sT1}, v{vT4}")
    a(f"buffer_store_dword v17, v5, {sr(sCELL,4)}, 0 offen")
    a.wait_all(vm=False)
    a("s_barrier")
    for k in range(4):
        a(f"ds_read_b32 v{vB+k}, v{vB+k} offset:{K1_START - K1_HIST}")
    a.wait_all(vm=False)
    for k in range(4):
        a(f"v_add_u32 v{vB+k}, v{vB+k}, v{vR+k}")
        a(f"v_lshlrev_b32 v{vB+k}, 2, v{vB+k}")
        a(f"v_add_u32 v{vB+k}, {K1_STG}, v{vB+k}")
    a("s_mov_b64 exec, s[68:69]")
    a("s_cbranch_execz K1_NOS")
    for k in range(4):
        a(f"ds_write_b32 v{vB+k}, v{vK+k}")
    a.label("K1_NOS")
    a("s_mov_b64 exec, -1")
    a.wait_all(vm=False)
    a("s_barrier")
    a(f"v_lshlrev_b32 v5, 4, v0")
    a(f"v_add_u32 v5, {K1_STG}, v5")
    a(f"ds_read_b128 {vr(8,4)}, v5")
    vTA, vWB, vWV, vXA, vXF, vDB, vDV, vPK = 16, 32, 64, 17, 96, 128, 144, 160
    tr_addr(a, vTA, vL, sFT, 5, 18, 19)
    a.wait_all(vm=False)
    a(f"buffer_store_dwordx4 {vr(8,4)}, v{vO}, {sr(sREC,4)}, 0 offen")
    for kk in range(8):
        for q in range(2):
            a(f"ds_read_b64_tr_b16 {vr(vWB+4*kk+2*q,2)}, v{vTA} offset:{K1_WB + (16*kk+4*q)*256}")
    for kk in range(8):
        for q in range(2):
            a(f"ds_read_b64_tr_b16 {vr(vWV+4*kk+2*q,2)}, v{vTA} offset:{K1_WV + (16*kk+4*q)*256}")
    a(f"v_and_b32 v5, 31, v{vL}")
    a(f"v_lshrrev_b32 v18, 5, v{vL}")
    a(f"v_and_b32 v19, 15, v{vL}")
    a(f"v_xor_b32 v19, v19, v18")
    a(f"v_lshlrev_b32 v19, 4, v19")
    a(f"v_lshl_add_u32 v{vXA}, v5, 8, v19")
    a(f"s_lshl_b32 s{sT1}, s{sMH}, 14")
    a(f"s_add_u32 s{sT1}, s{sT1}, {K1_X}")
    a(f"v_add_u32 v{vXA}, s{sT1}, v{vXA}")
    a(f"s_lshl_b32 s{sT1}, s2, 7")
    a(f"s_lshl_b32 s{sK}, s{sMH}, 6")
    a(f"s_add_u32 s{sT1}, s{sT1}, s{sK}")
    a(f"v_add_u32 v20, s{sT1}, v5")
    a(f"v_lshlrev_b32 v20, 9, v20")
    a(f"v_lshl_add_u32 v20, v18, 5, v20")
    a(f"s_lshl_b32 s{sK}, s{sFT}, 7")
    a(f"v_add_u32 v20, s{sK}, v20")
    a(f"s_mov_b32 s70, {NL2E}")
    a(f"s_mov_b32 s71, 0x7f7f0000")
    a(f"v_mov_b32 v21, 0xff7f0000")
    for mt in range(2):
        for kk in range(8):
            a(f"v_xor_b32 v5, {kk << 5}, v{vXA}")
            a(f"ds_read_b128 {vr(vXF+4*kk,4)}, v5 offset:{mt*8192}", f"x{kk}")
        for kk in range(8):
            a.wait_lg(f"x{kk}")
            a(mfma(vDB, vWB+4*kk, vXF+4*kk, None if kk == 0 else vDB))
            a(mfma(vDV, vWV+4*kk, vXF+4*kk, None if kk == 0 else vDV))
        for j in range(16):
            a(f"v_mul_f32 v{vDB+j}, s70, v{vDB+j}")
        for m in range(8):
            a(f"v_cvt_pk_bf16_f32 v{vPK+m}, v{vDB+2*m}, v{vDB+2*m+1}")
        for m in range(8):
            a(f"v_cvt_pk_bf16_f32 v{vPK+8+m}, v{vDV+2*m}, v{vDV+2*m+1}")
        for m in range(8):
            a(f"v_lshlrev_b32 v{vDV+2*m}, 16, v{vPK+8+m}")
            a(f"v_and_b32 v{vDV+2*m+1}, 0xffff0000, v{vPK+8+m}")
        for j in range(16):
            a(f"v_rcp_f32 v{vDV+j}, v{vDV+j}")
        for j in range(16):
            a(f"v_med3_f32 v{vDV+j}, v{vDV+j}, v21, s71")
        for m in range(8):
            a(f"v_cvt_pk_bf16_f32 v{vPK+8+m}, v{vDV+2*m}, v{vDV+2*m+1}")
        for q, off in ((0, 0), (4, 16), (8, 64), (12, 80)):
            a(f"buffer_store_dwordx4 {vr(vPK+q,4)}, v20, {sr(sTAB,4)}, 0 offen offset:{off}")
        if mt == 0:
            a(f"v_add_u32 v20, {32*512}, v20")
            vPK += 16
    a("s_endpgm")

    a.label("K1_PREP")
    srd(a, sUW, 12, 13, 32768)
    a(f"s_add_u32 m0, s{sT0}, 0")
    a(f"s_cmp_eq_u32 s2, {NCH + 1}")
    a("s_cbranch_scc1 K1_PU")
    a(f"s_sub_u32 s{sK}, s2, {NCH}")
    a(f"s_lshl_b32 s{sK}, s{sK}, 15")
    a(f"v_add_u32 v{vWO}, s{sK}, v{vWO}")
    for i in range(4):
        a(f"buffer_load_dwordx4 v{vWO}, {sr(sGW,4)}, 0 offen offset:{1024*i} lds")
    a("s_branch K1_PL")
    a.label("K1_PU")
    for i in range(4):
        a(f"buffer_load_dwordx4 v{vWO}, {sr(sUW,4)}, 0 offen offset:{1024*i} lds")
    a.label("K1_PL")
    tr_addr(a, 16, vL, sFT, 5, 18, 19)
    a(f"s_lshl_b32 s{sK}, s{sMH}, 14")
    a(f"v_add_u32 v16, s{sK}, v16")
    a.wait_all()
    a("s_barrier")
    for kk in range(4):
        for q in range(2):
            a(f"ds_read_b64_tr_b16 {vr(32+4*kk+2*q,2)}, v16 offset:{(16*kk+4*q)*256}")
    a(f"v_lshlrev_b32 v5, 4, v{vL}")
    a(f"s_cmp_eq_u32 s2, {NCH + 2}")
    a("s_cbranch_scc1 K1_PC")
    a(f"s_sub_u32 s{sK}, s2, {NCH}")
    a(f"s_lshl_b32 s{sK}, s{sK}, 15")
    a(f"s_lshl_b32 s{sT1}, s{sFT}, 13")
    a(f"s_add_u32 s{sK}, s{sK}, s{sT1}")
    a(f"s_lshl_b32 s{sT1}, s{sMH}, 12")
    a(f"s_add_u32 s{sK}, s{sK}, s{sT1}")
    a(f"v_add_u32 v5, s{sK}, v5")
    a.wait_all()
    for kk in range(4):
        a(f"buffer_store_dwordx4 {vr(32+4*kk,4)}, v5, {sr(sWF,4)}, 0 offen offset:{1024*kk}")
    a("s_endpgm")
    a.label("K1_PC")
    a(f"s_cmp_lg_u32 s{sMH}, 0")
    a("s_cbranch_scc1 K1_END")
    a(f"s_lshl_b32 s{sK}, s{sFT}, 10")
    a(f"s_add_u32 s{sK}, s{sK}, 65536")
    a(f"v_add_u32 v5, s{sK}, v5")
    a(f"s_mov_b32 s70, {NL2E}")
    a.wait_all()
    for m in range(4):
        a(f"v_lshlrev_b32 v40, 16, v{32+m}")
        a(f"v_and_b32 v41, 0xffff0000, v{32+m}")
        a(f"v_mul_f32 v40, s70, v40")
        a(f"v_mul_f32 v41, s70, v41")
        a(f"v_cvt_pk_bf16_f32 v{32+m}, v40, v41")
    a(f"buffer_store_dwordx4 {vr(32,4)}, v5, {sr(sWF,4)}, 0 offen")
    a.label("K1_END")
    a("s_endpgm")
    return a


RING = 0
L_SRC = 49152
SRC_W = 18 * 64
L_SEL = L_SRC + 2 * SRC_W
SEL_W = 17 * 128
L_LUT2 = L_SEL + 2 * SEL_W
L_LUT1 = L_LUT2 + 327 * 16
L_BIN = L_LUT1 + 144
L_BST = L_BIN + 320
L_AGM = L_BST + 1024
AGM_W = 17 * 256
L_TMP = L_AGM + 2 * AGM_W
K2_LDS = L_TMP + 8192
assert L_LUT2 % 16 == 0 and L_LUT1 % 16 == 0 and L_AGM % 16 == 0 and L_TMP % 16 == 0 and K2_LDS <= 81920
assert L_AGM < 65536

vCELL = 0
vFA, vLC, vIA, vVO, vIX, vSA, vGA, vS0, vG0, vT = 1, 5, 7, 8, 12, 14, 15, 16, 18, 20
MSG, FR, SEL, AOH, ACC, EF, AGG, XA, CW, ID = 24, 32, 48, 56, 64, 128, 192, 224, 240, 248
sX, sEA, sOUT, sTAB, sREC, sCELL, sWF = 24, 28, 32, 36, 40, 44, 48
sW, sWIN, sFH, sRING, sNT, sNW, sR, sMORE, s512, sFT0, sFT1, sNL, sN0, sN1, sA, sB, sC, sNODE = range(52, 70)


def stamp(a, k):
    if OPT["STAMP"]:
        a(f"s_memrealtime s[{80 + 2*k}:{81 + 2*k}]")
        a.lg = [t for t in a.lg if t != "smem"] + ["smem"]


def lane_id(a, v):
    a(f"v_mbcnt_lo_u32_b32 v{v}, -1, 0")
    a(f"v_mbcnt_hi_u32_b32 v{v}, -1, v{v}")


def tid_reg(a, v):
    lane_id(a, v)
    a(f"s_lshl_b32 s{sA}, s{sW}, 6")
    a(f"v_add_u32 v{v}, s{sA}, v{v}")


def k2_init_round(a, tid):
    t = MSG
    for j in range(4):
        a(f"v_mov_b32 v{t+j}, 0")
        a(f"v_mov_b32 v{t+4+j}, 0x80808080")
    a(f"v_lshlrev_b32 v{vT}, 4, v{tid}")
    for j in range(3):
        a(f"ds_write_b128 v{vT}, {vr(t,4)} offset:{L_AGM + 4096*j}" if L_AGM + 4096*j < 65536 else "")
        if L_AGM + 4096 * j >= 65536:
            a(f"v_add_u32 v{vT+1}, {L_AGM + 4096*j}, v{vT}")
            a(f"ds_write_b128 v{vT+1}, {vr(t,4)}")
    a(f"ds_write_b128 v{vT}, {vr(t+4,4)} offset:{L_SEL}")
    a(f"v_cmp_gt_u32 vcc, {2*SRC_W // 16}, v{tid}")
    a("s_mov_b64 exec, vcc")
    a(f"ds_write_b128 v{vT}, {vr(t,4)} offset:{L_SRC}")
    a(f"v_cmp_gt_u32 vcc, 20, v{tid}")
    a("s_mov_b64 exec, vcc")
    a("s_cbranch_execz 1f")
    a(f"ds_write_b128 v{vT}, {vr(t,4)} offset:{L_BIN}")
    a(f"v_cmp_gt_u32 vcc, {(2*SEL_W - 4096) // 16}, v{tid}")
    a("s_mov_b64 exec, vcc")
    a(f"ds_write_b128 v{vT}, {vr(t+4,4)} offset:{L_SEL + 4096}")
    a.label("1")
    a("s_mov_b64 exec, -1")


def k2_load_records(a, tid, vN):
    a(f"v_lshrrev_b32 v{vN}, 16, v{vCELL}")
    a(f"v_cmp_lt_u32 vcc, s{sR}, v{vN}")
    a(f"s_cmp_lg_u64 vcc, 0")
    a(f"s_cselect_b32 s{sMORE}, 1, 0")
    a(f"v_min_u32 v{vN}, s{sR}, v{vN}")
    a(f"v_and_b32 v{vT}, 0xffff, v{vCELL}")
    a(f"v_lshl_add_u32 v{vT}, v{tid}, 11, v{vT}")
    a(f"v_lshlrev_b32 v{vT}, 2, v{vT}")
    a(f"v_mov_b32 v{vT+1}, {BIGOFF}")
    for i in range(4):
        a(f"v_cmp_lt_u32 vcc, {4*i}, v{vN}")
        a(f"v_cndmask_b32 v{vT+2}, v{vT+1}, v{vT}, vcc")
        a(f"buffer_load_dwordx4 {vr(FR+4*i,4)}, v{vT+2}, {sr(sREC,4)}, 0 offen offset:{16*i}", "rec")


def bin_addr(a, dst, rec, tmp):
    a(f"v_and_b32 v{dst}, 0x7fff, v{rec}")
    a(f"v_mul_u32_u24 v{dst}, {SBIN}, v{dst}")
    a(f"v_lshrrev_b32 v{dst}, 20, v{dst}")
    a(f"v_bfe_u32 v{tmp}, v{rec}, 20, 1")
    a(f"v_lshl_add_u32 v{dst}, v{tmp}, 5, v{dst}")
    a(f"v_lshlrev_b32 v{dst}, 2, v{dst}")


def x_frag_base(a, dst, lane, t0, t1):
    a(f"v_and_b32 v{t0}, 15, v{lane}")
    a(f"v_lshrrev_b32 v{t1}, 5, v{lane}")
    a(f"v_xor_b32 v{t0}, v{t0}, v{t1}")
    a(f"v_lshlrev_b32 v{t0}, 4, v{t0}")
    a(f"v_and_b32 v{t1}, 31, v{lane}")
    a(f"v_lshl_add_u32 v{dst}, v{t1}, 8, v{t0}")
    a(f"v_add_u32 v{dst}, s{sRING}, v{dst}")


def u_pass(a, xb):
    def rd(kk):
        a(f"v_xor_b32 v{vT+3}, {kk << 5}, v{xb}")
        a(f"ds_read_b128 {vr(MSG + 4*(kk & 1), 4)}, v{vT+3}", f"ux{kk}")
    rd(0)
    for kk in range(8):
        if kk + 1 < 8 and kk == 0:
            rd(1)
        a.wait_lg(f"ux{kk}")
        for f in range(2):
            a(mfma(AGG + 16*f, EF + 32*f + 4*kk, MSG + 4*(kk & 1), None if kk == 0 else AGG + 16*f))
        if kk + 2 < 8:
            rd(kk + 2)


def a_pass(a, xb):
    dreg = SEL
    for f in range(2):
        def rd(kk):
            a(f"v_xor_b32 v{vT+3}, {kk << 5}, v{xb}")
            a(f"ds_read_b128 {vr(MSG + 4*(kk & 1), 4)}, v{vT+3}", f"ax{kk}")
        rd(0)
        rd(1)
        for kk in range(8):
            a.wait_lg(f"ax{kk}")
            a(mfma(dreg, MSG + 4*(kk & 1), ACC + 32*f + 4*kk, None if kk == 0 else dreg))
            if kk + 2 < 8:
                rd(kk + 2)
        for j in range(16):
            a(f"v_mul_f32 v{dreg+j}, s{sNL}, v{dreg+j}")
        for m in range(8):
            a(f"v_cvt_pk_bf16_f32 v{XA+8*f+m}, v{dreg+2*m}, v{dreg+2*m+1}")


def e_load(a, t):
    a(f"buffer_load_dwordx4 {vr(EF+4*t,4)}, v{FR+t}, {sr(sEA,4)}, 0 offen {OPT['ENT']}", f"e{t}")


def k2_build(a, first, tag):
    tid, vN, xb = vS0, vS0 + 1, vG0
    RK = SEL
    one = vT + 2
    a(f"v_mov_b32 v{one}, 1")
    a(f"s_cmp_eq_u32 s{sMORE}, 0")
    a(f"s_cbranch_scc1 {tag}_NM")
    a(f"v_mov_b32 v{vT}, {L_BIN + 256}")
    a(f"ds_add_u32 v{vT}, v{one}")
    a.label(f"{tag}_NM")
    for k in range(16):
        a(f"v_cmp_lt_u32 vcc, {k}, v{vN}")
        a("s_mov_b64 exec, vcc")
        a(f"s_cbranch_execz {tag}_BD")
        bin_addr(a, vT, FR + k, vT + 1)
        a(f"ds_add_rtn_u32 v{RK+k}, v{vT}, v{one} offset:{L_BIN}")
    a.label(f"{tag}_BD")
    a("s_mov_b64 exec, -1")
    a.wait_all(vm=False)
    a("s_barrier")
    ln = vT + 3
    lane_id(a, ln)
    a(f"v_lshlrev_b32 v{vT}, 2, v{ln}")
    a(f"ds_read_b32 v{vT+1}, v{vT} offset:{L_BIN}")
    a(f"v_mov_b32 v{MSG}, {L_BIN + 256}")
    a(f"ds_read_b32 v{MSG}, v{MSG}")
    a.wait_all(vm=False)
    a(f"v_mov_b32 v{vT+2}, v{vT+1}")
    scan64(a, vT + 2)
    a(f"v_readlane_b32 s{sN0}, v{vT+2}, 31")
    a(f"v_readlane_b32 s{sN1}, v{vT+2}, 63")
    a(f"v_readfirstlane_b32 s{sMORE}, v{MSG}")
    a(f"s_sub_u32 s{sN1}, s{sN1}, s{sN0}")
    a(f"s_max_u32 s{sA}, s{sN0}, s{sN1}")
    a(f"s_cmp_gt_u32 s{sA}, {32 * TCAP}")
    a(f"s_cbranch_scc1 {tag}_OVF")
    a(f"s_sub_u32 s{sA}, {32 * TCAP}, s{sN0}")
    a(f"v_lshrrev_b32 v{ln}, 5, v{ln}")
    a(f"v_sub_u32 v{vT+2}, v{vT+2}, v{vT+1}")
    a(f"v_mad_u32_u24 v{vT+2}, v{ln}, s{sA}, v{vT+2}")
    a(f"s_lshl_b32 s{sB}, s{sW}, 8")
    a(f"s_add_u32 s{sB}, s{sB}, {L_BST}")
    a(f"v_add_u32 v{vT}, s{sB}, v{vT}")
    a(f"ds_write_b32 v{vT}, v{vT+2}")
    a(f"s_cmp_eq_u32 s{sWIN}, 0")
    a(f"s_cselect_b32 s{sNW}, s{sN0}, s{sN1}")
    a(f"s_add_u32 s{sNT}, s{sNW}, 31")
    a(f"s_lshr_b32 s{sNT}, s{sNT}, 5")
    echunk = vT + 3
    a(f"v_lshlrev_b32 v{echunk}, 11, v{tid}")
    for g in range(4):
        a(f"v_cmp_lt_u32 vcc, {4*g}, v{vN}")
        a("s_mov_b64 exec, vcc")
        a(f"s_cbranch_execz {tag}_CD")
        for k in range(4):
            bin_addr(a, MSG + k, FR + 4*g + k, vT)
            a(f"v_add_u32 v{MSG+k}, s{sB}, v{MSG+k}")
            a(f"ds_read_b32 v{MSG+k}, v{MSG+k}")
        a.wait_all(vm=False)
        for k in range(4):
            r = 4 * g + k
            if k:
                a(f"v_cmp_lt_u32 vcc, {r}, v{vN}")
                a("s_mov_b64 exec, vcc")
                a(f"s_cbranch_execz {tag}_CD")
            a(f"v_add_u32 v{vT}, v{MSG+k}, v{RK+r}")
            a(f"v_lshlrev_b32 v{vT}, 3, v{vT}")
            a(f"v_add_u32 v{vT}, {L_TMP}, v{vT}")
            a(f"v_mov_b32 v{MSG+4}, v{FR+r}")
            a(f"v_lshrrev_b32 v{MSG+5}, 21, v{FR+r}")
            a(f"v_add_u32 v{MSG+5}, v{MSG+5}, v{echunk}")
            a(f"ds_write_b64 v{vT}, {vr(MSG+4,2)}")
    a.label(f"{tag}_CD")
    a("s_mov_b64 exec, -1")
    a(f"v_add_u32 v{vCELL}, v{vCELL}, v{vN}")
    a(f"v_lshlrev_b32 v{vT}, 16, v{vN}")
    a(f"v_sub_u32 v{vCELL}, v{vCELL}, v{vT}")
    a.wait_all(vm=False)
    a("s_barrier")
    stamp(a, 3)
    ln = vT
    lane_id(a, ln)
    a(f"v_and_b32 v{vT+1}, 31, v{ln}")
    a(f"s_lshl_b32 s{sA}, s{sWIN}, 12")
    a(f"s_add_u32 s{sA}, s{sA}, {L_TMP + 4}")
    a(f"v_lshl_add_u32 v{vT+2}, v{vT+1}, 3, s{sA}")
    for t in range(TCAP):
        a(f"ds_read_b32 v{FR+t}, v{vT+2} offset:{256*t}", f"ei{t}")
    a(f"v_lshrrev_b32 v{ln}, 5, v{ln}")
    a(f"v_lshlrev_b32 v{ln}, 4, v{ln}")
    a(f"v_sub_u32 v{vT+1}, s{sNW}, v{vT+1}")
    a(f"v_mov_b32 v{vT+2}, {BIGOFF}")
    for t in range(TCAP):
        a.wait_lg(f"ei{t}")
        a(f"v_cmp_lt_i32 vcc, {32*t}, v{vT+1}")
        a(f"v_lshl_add_u32 v{FR+t}, v{FR+t}, 5, v{ln}")
        a(f"v_cndmask_b32 v{FR+t}, v{vT+2}, v{FR+t}, vcc")
        if t < OPT["EE"]:
            e_load(a, t)
    rho, c0, c1, c2, kv = vT, vT + 1, vT + 2, vT + 3, vIX
    a(f"v_lshlrev_b32 v{c0}, 3, v{tid}")
    a(f"v_add_u32 v{c0}, {L_TMP}, v{c0}")
    for j in range(4):
        a(f"ds_read_b32 v{MSG+j}, v{c0} offset:{2048*j}")
    a(f"v_and_b32 v{c0}, 7, v{tid}")
    a(f"v_lshlrev_b32 v{c0}, 3, v{c0}")
    a(f"v_bfe_u32 v{c1}, v{tid}, 3, 2")
    a(f"v_lshl_add_u32 v{c0}, v{c1}, 1, v{c0}")
    a(f"v_lshrrev_b32 v{c1}, 5, v{tid}")
    a(f"v_lshl_add_u32 v{c0}, v{c1}, 6, v{c0}")
    a(f"v_lshlrev_b32 v{c1}, 8, v{c1}")
    a(f"v_bfe_u32 v{c2}, v{tid}, 2, 1")
    a(f"v_lshl_add_u32 v{c1}, v{c2}, 7, v{c1}")
    a(f"v_add_u32 v{c1}, {L_AGM}, v{c1}")
    a(f"v_bfe_u32 v{c2}, v{tid}, 3, 1")
    a(f"v_and_b32 v{kv}, 3, v{tid}")
    a(f"v_lshl_add_u32 v{kv}, v{c2}, 2, v{kv}")
    a(f"v_or_b32 v{kv}, 0x0c0c0c00, v{kv}")
    a(f"v_mov_b32 v{kv+1}, {INC[0] | INC[1] << 8 | INC[2] << 16 | INC[3] << 24}")
    a(f"s_mov_b32 s{sA}, {INC[4] | INC[5] << 8 | INC[6] << 16 | INC[7] << 24}")
    a(f"v_perm_b32 v{kv}, s{sA}, v{kv+1}, v{kv}")
    a(f"v_and_b32 v{c2}, 16, v{tid}")
    a(f"v_add_u32 v{c2}, 4, v{c2}")
    a(f"v_lshlrev_b32 v{kv}, v{c2}, v{kv}")
    a(f"v_lshlrev_b32 v{c2}, 2, v{tid}")
    a.wait_all(vm=False)
    for j in range(4):
        w, hi = j >> 1, j & 1
        a(f"s_sub_u32 s{sA}, s{sN1 if w else sN0}, {256*hi}")
        a(f"v_cmp_gt_i32 vcc, s{sA}, v{tid}")
        a("s_mov_b64 exec, vcc")
        a(f"s_cbranch_execz {tag}_D{j}")
        r, d, u = MSG + j, MSG + 4, MSG + 5
        a(f"v_and_b32 v{u}, 0x7fff, v{r}")
        a(f"ds_write_b16 v{c0}, v{u} offset:{L_SRC + w*SRC_W + hi*512}")
        a(f"v_bfe_u32 v{d}, v{r}, 15, 5")
        a(f"v_lshl_add_u32 v{u}, v{d}, 2, v{c1}")
        a(f"ds_add_u32 v{u}, v{kv} offset:{w*AGM_W + hi*2048}")
        a(f"v_bfe_u32 v{u}, v{d}, 2, 1")
        a(f"v_lshl_add_u32 v{u}, v{u}, 1, v{c2}")
        a(f"v_lshrrev_b32 v{r}, 4, v{d}")
        a(f"v_add_u32 v{u}, v{u}, v{r}")
        a(f"v_and_b32 v{r}, 8, v{d}")
        a(f"v_lshlrev_b32 v{r}, 3, v{r}")
        a(f"v_and_b32 v{d}, 3, v{d}")
        a(f"v_lshl_or_b32 v{r}, v{d}, 4, v{r}")
        a(f"ds_write_b8 v{u}, v{r} offset:{L_SEL + w*SEL_W + hi*1024}")
        a.label(f"{tag}_D{j}")
        a("s_mov_b64 exec, -1")
    if first:
        a.wait_vm("af")
        a_pass(a, xb)
    a.wait_all(vm=False)
    a("s_barrier")


def valu_stream(base):
    g, h = base, base + 16
    steps = []
    for j in range(20):
        st = []
        if j < 16:
            st.append(f"v_exp_f32 v{g+j}, v{g+j}")
        if 0 <= j - 1 < 16:
            st.append(f"v_fma_f32 v{g+j-1}, v{g+j-1}, v{h+j-1}, v{h+j-1}")
        if 0 <= j - 2 < 16:
            st.append(f"v_rcp_f32 v{g+j-2}, v{g+j-2}")
        if j - 3 >= 1 and (j - 3) % 2 == 1 and j - 3 < 16:
            m = (j - 4) // 2
            st.append(f"v_cvt_pk_bf16_f32 v{MSG+m}, v{g+2*m}, v{g+2*m+1}")
        steps.append(st)
    return steps


def dma_ops(a, v):
    st = v % 3
    ops = []
    for i in range(4):
        ops.append((f"s_add_u32 m0, s{sRING}, {st*4096 + i*1024}",
                    f"buffer_load_dwordx4 v{vVO+i}, {sr(sTAB,4)}, s{sFT1 if v & 1 else sFT0} offen lds", f"d{v}"))
    return ops


def voffs(a):
    for i in range(4):
        sel = " op_sel:[1,0,0,0]" if i & 1 else ""
        a(f"v_mad_u32_u16 v{vVO+i}, v{vIX + (i >> 1)}, s{s512}, v{vLC + (i & 1)}{sel}")


def frag_reads(v):
    return [(f"ds_read_b128 {vr(FR+4*i,4)}, v{vFA+i} offset:{(v % 3)*4096}", f"f{v}") for i in range(4)]


def main_mfmas(v):
    t, f = v >> 1, v & 1
    g = ACC + 32 * (v & 1)
    h = g + 16
    return [mfma(g, FR, ID, None), mfma(h, FR + 8, ID, None), mfma(g, FR + 4, ID + 4, g), mfma(h, FR + 12, ID + 4, h),
            mfma(g, EF + 4*t, CW + 4*f, g), mfma(g, SEL, XA + 8*f, g), mfma(g, SEL + 4, XA + 8*f + 4, g)]


def agg_mfmas(v):
    d = AGG + 16 * (v & 1)
    return [mfma(d, MSG, AOH, d), mfma(d, MSG + 4, AOH + 4, d)]


def rd_idx(a, t):
    a(f"ds_read_b64 {vr(vIX,2)}, v{vIA} offset:{64*t}", f"ix{t}")


def rd_sel_addr(a, t):
    a(f"ds_read_u8 v{vS0}, v{vSA} offset:{128*t}", f"sa{t}")
    a(f"ds_read_u8 v{vS0+1}, v{vSA} offset:{128*t + 1}", f"sa{t}")


def rd_sel(a, t):
    a.wait_lg(f"sa{t}")
    a(f"ds_read_b128 {vr(SEL,4)}, v{vS0} offset:{L_LUT1}", f"s{t}")
    a(f"ds_read_b128 {vr(SEL+4,4)}, v{vS0+1} offset:{L_LUT1}", f"s{t}")


def rd_agg_addr(a, t):
    a(f"ds_read_u16 v{vG0}, v{vGA} offset:{256*t}", f"ga{t}")
    a(f"ds_read_u16 v{vG0+1}, v{vGA} offset:{256*t + 2}", f"ga{t}")


def rd_agg(a, t):
    a.wait_lg(f"ga{t}")
    a(f"ds_read_b128 {vr(AOH,4)}, v{vG0} offset:{L_LUT2}", f"g{t}")
    a(f"ds_read_b128 {vr(AOH+4,4)}, v{vG0+1} offset:{L_LUT2}", f"g{t}")


def slot(a, u):
    t, f = u >> 1, u & 1
    last = u + 1 >= 2 * TCAP
    extra = {j: [] for j in range(20)}
    a.wait_all(vm=False)
    if u + 4 < 2 * TCAP + 4:
        if f == 0:
            voffs(a)
        for i, (m0w, ld, tg) in enumerate(dma_ops(a, u + 4)):
            extra[i].append(lambda m0w=m0w, ld=ld, tg=tg: (a(m0w), a(ld, tg)))
    mf = (agg_mfmas(u - 1) if u > 0 else []) + main_mfmas(u + 1)
    pos0 = 0 if u > 0 else 2
    for i, m in enumerate(mf):
        if i + pos0 == 6:
            extra[6].append(lambda: a.wait_vm(f"e{(u + 1) >> 1}"))
        extra[i + pos0].insert(0, lambda m=m: a(m)) if i + pos0 != 6 else extra[6].append(lambda m=m: a(m))
    extra[7].append(lambda: a.wait_vm(f"d{u + 2}"))
    for i, (rd, tg) in enumerate(frag_reads(u + 2)):
        extra[7 + i].append(lambda rd=rd, tg=tg: a(rd, tg))
    if f == 0:
        extra[1].append(lambda: rd_sel_addr(a, t + 1))
        extra[3].append(lambda: rd_agg(a, t))
        extra[11].append(lambda: rd_sel(a, t + 1))
    else:
        extra[4].append(lambda: rd_agg_addr(a, t + 1))
        extra[5].append(lambda: rd_idx(a, t + 3) if t + 3 < TCAP + 2 else None)
    for j, st in enumerate(valu_stream(ACC + 32 * f)):
        for fn in extra[j]:
            fn()
        for s in st:
            a(s)


def gen_k2():
    a = Asm()
    a(f"s_cmp_ge_u32 s2, {NWG2}")
    a("s_cbranch_scc1 K2_END")
    stamp(a, 0)
    a("s_load_dwordx4 s[4:7], s[0:1], 0")
    a("s_load_dwordx2 s[8:9], s[0:1], 56")
    a("s_load_dwordx4 s[12:15], s[0:1], 64")
    tid, vN, xb = vS0, vS0 + 1, vG0
    ln = vG0 + 1
    a(f"v_mov_b32 v{tid}, v0")
    a(f"v_lshrrev_b32 v{vT}, 6, v0")
    a(f"v_and_b32 v{ln}, 63, v0")
    a(f"v_readfirstlane_b32 s{sW}, v{vT}")
    a(f"s_lshl_b32 s{sA}, s2, 2")
    a(f"v_lshl_add_u32 v{vT}, v{tid}, 11, s{sA}")
    a(f"s_lshr_b32 s{sWIN}, s{sW}, 1")
    a(f"s_and_b32 s{sFH}, s{sW}, 1")
    a(f"s_mul_i32 s{sRING}, s{sW}, 12288")
    a(f"s_mul_i32 s{sNODE}, s2, {NB}")
    a(f"s_mul_i32 s{sA}, s{sWIN}, {SPLIT}")
    a(f"s_add_u32 s{sNODE}, s{sNODE}, s{sA}")
    a(f"s_mov_b32 s{sR}, 16")
    a(f"s_mov_b32 s{s512}, 512")
    a(f"s_lshl_b32 s{sFT0}, s{sFH}, 8")
    a(f"s_add_u32 s{sFT1}, s{sFT0}, 128")
    a(f"s_mov_b32 s{sNL}, {NL2E}")
    a.wait_all(vm=False)
    srd(a, sCELL, 14, 15, CELL_SZ, CELL_OFF)
    a(f"buffer_load_dword v{vCELL}, v{vT}, {sr(sCELL,4)}, 0 offen", "cell")
    srd(a, sWF, 14, 15, WF_SZ, WF_OFF)
    a(f"v_lshlrev_b32 v{vT}, 4, v{ln}")
    a(f"s_lshl_b32 s{sC}, s{sFH}, 14")
    for g in range(4):
        a(f"s_add_u32 s{sA}, s{sC}, {32768 + 4096*g}")
        for i in range(4):
            a(f"buffer_load_dwordx4 {vr(EF + 16*g + 4*i, 4)}, v{vT}, {sr(sWF,4)}, s{sA} offen offset:{1024*i}", "uf")
    a(f"s_lshl_b32 s{sA}, s{sFH}, 11")
    a(f"s_add_u32 s{sA}, s{sA}, 65536")
    for f in range(2):
        a(f"buffer_load_dwordx4 {vr(CW + 4*f, 4)}, v{vT}, {sr(sWF,4)}, s{sA} offen offset:{1024*f}", "uf")
    srd(a, sX, 4, 5, N * 256)
    q, p = vT + 1, vT + 2
    a(f"v_lshrrev_b32 v{q}, 4, v{ln}")
    a(f"v_and_b32 v{p}, 15, v{ln}")
    a(f"v_add_u32 v{vT+3}, s{sNODE}, v{q}")
    a(f"v_lshlrev_b32 v{vT+3}, 8, v{vT+3}")
    for i in range(4):
        a(f"v_add_u32 v{vVO+i}, {4*i}, v{q}")
        a(f"v_xor_b32 v{vVO+i}, v{vVO+i}, v{p}")
        a(f"v_lshl_add_u32 v{vVO+i}, v{vVO+i}, 4, v{vT+3}")
    for g in range(2):
        a(f"s_add_u32 m0, s{sRING}, {4096*g}")
        for i in range(4):
            if g:
                a(f"v_add_u32 v{vVO+i}, 4096, v{vVO+i}")
            a(f"buffer_load_dwordx4 v{vVO+i}, {sr(sX,4)}, 0 offen offset:{1024*i} lds", "xn")
    srd(a, sREC, 14, 15, REC_SZ, REC_OFF)
    srd(a, sTAB, 14, 15, TAB_SZ, TAB_OFF)
    srd(a, sEA, 6, 7, E * 32)
    srd(a, sOUT, 8, 9, N * 256)
    t0, t1 = vT + 1, vT + 2
    a(f"v_and_b32 v{t0}, 15, v{tid}")
    for b in range(4, 8):
        a(f"v_bfe_u32 v{t1}, v{tid}, {b}, 1")
        a(f"s_mov_b32 s{sA}, {INC[b]}")
        a(f"v_mad_u32_u24 v{t0}, v{t1}, s{sA}, v{t0}")
    a(f"v_lshlrev_b32 v{t0}, 4, v{t0}")
    a(f"v_lshl_or_b32 v{t1}, v{tid}, 15, v{tid}")
    for m in range(4):
        a(f"v_and_b32 v{MSG+m}, {0x10001 << (2*m)}, v{t1}")
        a(f"v_mul_u32_u24 v{MSG+m}, {0x3F80 >> (2*m)}, v{MSG+m}")
    a(f"ds_write_b128 v{t0}, {vr(MSG,4)} offset:{L_LUT2}")
    a(f"v_lshrrev_b32 v{t0}, 2, v{tid}")
    a(f"v_and_b32 v{t1}, 3, v{tid}")
    a(f"v_lshrrev_b32 v{MSG+4}, 1, v{t0}")
    a(f"v_cmp_eq_u32 vcc, v{MSG+4}, v{t1}")
    a(f"v_and_b32 v{t0}, 1, v{t0}")
    a(f"v_lshlrev_b32 v{t0}, 4, v{t0}")
    a(f"v_mov_b32 v{t1}, 0x3f80")
    a(f"v_lshlrev_b32 v{t0}, v{t0}, v{t1}")
    a(f"v_cndmask_b32 v{t0}, 0, v{t0}, vcc")
    a(f"v_lshlrev_b32 v{t1}, 2, v{tid}")
    a(f"v_cmp_gt_u32 vcc, 36, v{tid}")
    a("s_mov_b64 exec, vcc")
    a("s_cbranch_execz K2_L1")
    a(f"ds_write_b32 v{t1}, v{t0} offset:{L_LUT1}")
    a.label("K2_L1")
    a("s_mov_b64 exec, -1")
    k2_init_round(a, tid)
    r, h, z = vT, vT + 1, vT + 2
    a(f"v_and_b32 v{r}, 31, v{ln}")
    a(f"v_lshrrev_b32 v{h}, 5, v{ln}")
    a(f"v_bfe_u32 v{z}, v{ln}, 1, 3")
    a(f"v_xor_b32 v{z}, v{z}, v{h}")
    a(f"v_lshlrev_b32 v{z}, 4, v{z}")
    a(f"v_lshl_add_u32 v{z}, v{r}, 7, v{z}")
    a(f"v_add_u32 v{vFA}, s{sRING}, v{z}")
    for i, c in ((1, 2), (2, 4), (3, 6)):
        a(f"v_xor_b32 v{vFA+i}, {c << 4}, v{vFA}")
    a(f"s_mul_i32 s{sA}, s{sWIN}, {SEL_W}")
    a(f"s_add_u32 s{sA}, s{sA}, {L_SEL}")
    a(f"v_lshl_add_u32 v{vSA}, v{r}, 2, s{sA}")
    a(f"v_lshl_add_u32 v{vSA}, v{h}, 1, v{vSA}")
    a(f"s_mul_i32 s{sA}, s{sWIN}, {AGM_W}")
    a(f"s_add_u32 s{sA}, s{sA}, {L_AGM}")
    a(f"v_lshl_add_u32 v{vGA}, v{ln}, 2, s{sA}")
    a(f"s_mul_i32 s{sA}, s{sWIN}, {SRC_W}")
    a(f"s_add_u32 s{sA}, s{sA}, {L_SRC}")
    a(f"v_lshrrev_b32 v{z}, 3, v{ln}")
    a(f"v_lshl_add_u32 v{vIA}, v{z}, 3, s{sA}")
    a(f"v_lshrrev_b32 v{z}, 4, v{ln}")
    a(f"v_and_b32 v{vLC}, 7, v{ln}")
    a(f"v_xor_b32 v{vLC}, v{vLC}, v{z}")
    a(f"v_lshlrev_b32 v{vLC}, 4, v{vLC}")
    a(f"v_xor_b32 v{vLC+1}, 64, v{vLC}")
    a(f"v_bfe_u32 v{z}, v{r}, 3, 1")
    a(f"v_and_b32 v{vIX}, 3, v{r}")
    a(f"v_lshl_add_u32 v{z}, v{z}, 2, v{vIX}")
    a(f"v_lshlrev_b32 v{z}, 4, v{z}")
    a(f"v_lshrrev_b32 v{vIX}, 4, v{r}")
    a(f"v_cmp_eq_u32 vcc, v{vIX}, v{h}")
    a(f"v_mov_b32 v{h}, 128")
    a(f"v_cndmask_b32 v{z}, v{h}, v{z}, vcc")
    a(f"v_and_b32 v{r}, 4, v{r}")
    a(f"v_cmp_eq_u32 vcc, 0, v{r}")
    a(f"v_cndmask_b32 v{vIX}, v{h}, v{z}, vcc")
    a(f"v_cndmask_b32 v{vIX+1}, v{z}, v{h}, vcc")
    x_frag_base(a, xb, ln, vT, vT + 1)
    a.wait_vm("cell")
    stamp(a, 1)
    k2_load_records(a, tid, vN)
    a(f"v_lshlrev_b32 v{vT}, 4, v{ln}")
    for g in range(4):
        a(f"s_add_u32 s{sA}, s{sC}, {4096*g}")
        for i in range(4):
            a(f"buffer_load_dwordx4 {vr(ACC + 16*g + 4*i, 4)}, v{vT}, {sr(sWF,4)}, s{sA} offen offset:{1024*i}", "af")
    a.wait_all(vm=False)
    a("s_barrier")
    a(f"ds_read_b128 {vr(ID,4)}, v{vIX} offset:{L_LUT1}")
    a(f"ds_read_b128 {vr(ID+4,4)}, v{vIX+1} offset:{L_LUT1}")
    a.wait_vm("xn")
    u_pass(a, xb)
    a.wait_vm("rec")
    stamp(a, 2)
    k2_build(a, True, "R0")
    vm_at_fill = list(a.vm)
    a.label("K2_FILL")
    stamp(a, 4)
    a(f"s_cmp_eq_u32 s{sNT}, 0")
    a("s_cbranch_scc1 K2_RDONE")
    rd_idx(a, 0)
    rd_sel_addr(a, 0)
    rd_agg_addr(a, 0)
    a.wait_lg("ix0")
    voffs(a)
    rd_idx(a, 1)
    for v in (0, 1):
        for m0w, ld, tg in dma_ops(a, v):
            a(m0w)
            a(ld, tg)
    rd_sel(a, 0)
    a.wait_lg("ix1")
    voffs(a)
    for m0w, ld, tg in dma_ops(a, 2):
        a(m0w)
        a(ld, tg)
    for t in range(OPT["EE"], TCAP):
        e_load(a, t)
    rd_idx(a, 2)
    a.wait_vm("d0")
    stamp(a, 5)
    for rd, tg in frag_reads(0):
        a(rd, tg)
    a.wait_all(vm=False)
    for m0w, ld, tg in dma_ops(a, 3):
        a(m0w)
        a(ld, tg)
    mm = main_mfmas(0)
    for m in mm[:4]:
        a(m)
    a.wait_vm("d1")
    for rd, tg in frag_reads(1):
        a(rd, tg)
    a.wait_vm("e0")
    for m in mm[4:]:
        a(m)
    a("s_nop 7")
    for u in range(2 * TCAP - 1):
        slot(a, u)
        if u % 2 == 0 and u < 2 * TCAP - 2:
            a(f"s_cmp_le_u32 s{sNT}, {u // 2 + 1}")
            a("s_cbranch_scc1 K2_DRAIN")
    a.label("K2_DRAIN")
    a("s_nop 3")
    a.wait_all(vm=False)
    for m in agg_mfmas(0):
        a(m)
    for st in valu_stream(ACC + 32):
        for s in st:
            a(s)
    for m in agg_mfmas(1):
        a(m)
    a.label("K2_RDONE")
    stamp(a, 6)
    a(f"s_cmp_lg_u32 s{sMORE}, 0")
    a("s_cbranch_scc1 K2_ROUND")
    lane_id(a, vT)
    a(f"v_and_b32 v{vT+1}, 31, v{vT}")
    a(f"s_sub_u32 s{sA}, {SPLIT}, s{sWIN}")
    a(f"v_cmp_gt_u32 vcc, s{sA}, v{vT+1}")
    a(f"v_add_u32 v{vT+1}, s{sNODE}, v{vT+1}")
    a(f"v_lshlrev_b32 v{vT+1}, 8, v{vT+1}")
    a(f"v_lshrrev_b32 v{vT}, 5, v{vT}")
    a(f"v_lshl_add_u32 v{vT+1}, v{vT}, 5, v{vT+1}")
    a(f"s_lshl_b32 s{sA}, s{sFH}, 7")
    a(f"v_add_u32 v{vT+1}, s{sA}, v{vT+1}")
    a(f"v_mov_b32 v{vT}, {BIGOFF}")
    a(f"v_cndmask_b32 v{vT+1}, v{vT}, v{vT+1}, vcc")
    assert NB - SPLIT == SPLIT - 1
    for f in range(2):
        g, w = AGG + 16 * f, ACC + 16 * f
        for j in range(16):
            a(f"v_mul_f32 v{w+j}, s{sNL}, v{g+j}")
        for j in range(16):
            a(f"v_exp_f32 v{w+j}, v{w+j}")
        for j in range(16):
            a(f"v_add_f32 v{w+j}, 1.0, v{w+j}")
        for j in range(16):
            a(f"v_rcp_f32 v{w+j}, v{w+j}")
        for j in range(16):
            a(f"v_mul_f32 v{w+j}, v{w+j}, v{g+j}")
        o = ACC + 32 + 8 * f
        for m in range(8):
            a(f"v_cvt_pk_bf16_f32 v{o+m}, v{w+2*m}, v{w+2*m+1}")
        for qq in range(2):
            a(f"buffer_store_dwordx4 {vr(o+4*qq,4)}, v{vT+1}, {sr(sOUT,4)}, 0 offen offset:{64*f + 16*qq}")
    if OPT["STAMP"]:
        stamp(a, 7)
        a.wait_all()
        srd(a, 40, 14, 15, 1 << 20, 0x1000000)
        a(f"s_lshl_b32 s{sA}, s2, 2")
        a(f"s_add_u32 s{sA}, s{sA}, s{sW}")
        a(f"s_lshl_b32 s{sA}, s{sA}, 5")
        a(f"v_mov_b32 v1, s{sA}")
        for k in range(8):
            a(f"v_mov_b32 v{8+k}, s{80+2*k}")
        a(f"buffer_store_dwordx4 v[8:11], v1, s[40:43], 0 offen")
        a(f"buffer_store_dwordx4 v[12:15], v1, s[40:43], 0 offen offset:16")
    a.label("K2_END")
    a("s_endpgm")

    a.label("R0_OVF")
    a("s_nop 7")
    a.wait_all()
    a_pass(a, xb)
    a.label("RN_OVF")
    a(f"s_mov_b32 s{sR}, 2")
    a.label("K2_ROUND")
    a("s_nop 7")
    a.wait_all()
    a("s_barrier")
    tid_reg(a, tid)
    k2_load_records(a, tid, vN)
    k2_init_round(a, tid)
    a.wait_all()
    a("s_barrier")
    stamp_save = OPT["STAMP"]
    OPT["STAMP"] = 0
    k2_build(a, False, "RN")
    OPT["STAMP"] = stamp_save
    assert a.vm == vm_at_fill, (a.vm, vm_at_fill)
    a("s_branch K2_FILL")
    return a


def main():
    k1, k2 = gen_k1(), gen_k2()
    t1, t2 = k1.text(), k2.text()
    head = open("standalone__edge_featured_mpnn_egc__graph.s.ref").read().split("; Override launch")[0]
    out = head
    out += f"; @launch kernel=egc_sort_kernel grid=({NCH + 3},1,1) block=(512,1,1) lds={K1_LDS}\n"
    out += f"; @launch kernel=egc_edge_kernel grid=({NWG2},1,1) block=(256,1,1) lds={K2_LDS}\n"
    out += '.amdgcn_target "amdgcn-amd-amdhsa--gfx950"\n.text\n'
    for name, t in (("egc_sort_kernel", t1), ("egc_edge_kernel", t2)):
        out += f".globl {name}\n.p2align 8\n.type {name},@function\n{name}:\n{t}"
    out += '.section .rodata,"a"\n.p2align 6\n'
    out += descriptor("egc_sort_kernel", 192, 80)
    out += ".p2align 6\n"
    out += descriptor("egc_edge_kernel", 256, 100)
    open(sys.argv[1], "w").write(out)
    print(f"K1 lds {K1_LDS} nops {k1.nops}; K2 lds {K2_LDS} nops {k2.nops}; lines {out.count(chr(10))}")


if __name__ == "__main__":
    main()
```

```python
import os
import sys
sys.path.insert(0, os.path.dirname(os.path.abspath(__file__)))
from asmlib import Asm, vr, sr

N, E, D = 25000, 400000, 128
CH = 2048
NCH = (E + CH - 1) // CH
NB = 98
NWG2 = (N + NB - 1) // NB
WOFF = [0, 25, 49, 73]
WSZ = [25, 24, 24, 25]
TCAP = 16
RMAX = 16
TAB_OFF, TAB_SZ = 0, N * 512
REC_OFF, REC_SZ = 0xC40000, NCH * CH * 8
CELL_OFF, CELL_SZ = 0xF80000, NCH * 256 * 4
WF_OFF, WF_SZ = 0xFC0000, 4 * 32768 + 4096
FLG_OFF, FLG_SZ = 0xFF0000, 8192
WF_B, WF_V, WF_A, WF_U, WF_C = 0, 32768, 65536, 98304, 131072
assert REC_OFF + REC_SZ <= CELL_OFF and CELL_OFF + CELL_SZ <= WF_OFF and WF_OFF + WF_SZ <= FLG_OFF
NL2E = 0xBFB8AA3B
BIGOFF = 0x7FFFFF00
DIVB = 10700
assert all((d * DIVB) >> 20 == d // NB for d in range(N)) and NWG2 == 256
WOFFPK = WOFF[0] | WOFF[1] << 8 | WOFF[2] << 16 | WOFF[3] << 24
WINM = 337
assert all((d * WINM) >> 13 == max(i for i in range(4) if WOFF[i] <= d) for d in range(NB))
SBIN = 1342
assert ((N - 1) * SBIN) >> 20 == 31
INC = [1, 2, 4, 8, 19, 37, 86, 169]
POLL_LIMIT = 4000

OPT = dict(EL=0, E1=2, E2=2, E3=4, STAMP=0, ENT="nt", FAIR=1, FORCEFB=0)
for kv in sys.argv[2:]:
    k, v = kv.split("=")
    OPT[k] = int(v) if v.lstrip("-").isdigit() else v


def srd(a, d, lo, hi, size, off=0):
    if off:
        a(f"s_add_u32 s{d}, s{lo}, {off}")
        a(f"s_addc_u32 s{d+1}, s{hi}, 0")
        a(f"s_and_b32 s{d+1}, s{d+1}, 0xffff")
    else:
        a(f"s_mov_b32 s{d}, s{lo}")
        a(f"s_and_b32 s{d+1}, s{hi}, 0xffff")
    a(f"s_mov_b32 s{d+2}, {size}")
    a(f"s_mov_b32 s{d+3}, 0x20000")


def scan16(a, v):
    for sh in (1, 2, 4, 8):
        a(f"v_add_u32_dpp v{v}, v{v}, v{v} row_shr:{sh} row_mask:0xf bank_mask:0xf bound_ctrl:1")


def scan64(a, v):
    scan16(a, v)
    a(f"v_add_u32_dpp v{v}, v{v}, v{v} row_bcast:15 row_mask:0xa bank_mask:0xf")
    a(f"v_add_u32_dpp v{v}, v{v}, v{v} row_bcast:31 row_mask:0xc bank_mask:0xf")


def mfma(d, x, y, c):
    cs = "0" if c is None else vr(c, 16)
    return f"v_mfma_f32_32x32x16_bf16 {vr(d, 16)}, {vr(x, 4)}, {vr(y, 4)}, {cs}"


def descriptor(name, vgpr, sgpr):
    return f""".amdhsa_kernel {name}
  .amdhsa_next_free_vgpr {vgpr}
  .amdhsa_next_free_sgpr {sgpr}
  .amdhsa_accum_offset {(vgpr + 3) // 4 * 4}
  .amdhsa_group_segment_fixed_size 0
  .amdhsa_kernarg_size 80
  .amdhsa_user_sgpr_count 2
  .amdhsa_user_sgpr_kernarg_segment_ptr 1
  .amdhsa_system_sgpr_workgroup_id_x 1
.end_amdhsa_kernel
"""


NST = 10


def stamp(a, k):
    if OPT["STAMP"]:
        a(f"s_memrealtime s[{78 + 2*k}:{79 + 2*k}]")
        a.lg = [t for t in a.lg if t != "smem"] + ["smem"]


def stamp_store(a, lo, hi, off, widx):
    a.wait_all()
    srd(a, 40, lo, hi, 1 << 20, off)
    a(f"s_lshl_b32 s77, s2, 3")
    a(f"s_add_u32 s77, s77, s{widx}")
    a(f"s_lshl_b32 s77, s77, 6")
    a(f"v_mov_b32 v1, s77")
    for k in range(12):
        a(f"v_mov_b32 v{8+k}, s{78+2*min(k, NST - 1)}")
    for q in range(3):
        a(f"buffer_store_dwordx4 {vr(8+4*q,4)}, v1, s[40:43], 0 offen offset:{16*q}")


K1_HIST, K1_START, K1_WTOT, K1_STG = 0, 1024, 2048, 4096
K1_LDS = 32768


def gen_k1():
    a = Asm()
    sSRC, sDST, sWS, sREC, sCELL, sWF = 24, 28, 32, 36, 40, 44
    sW, sFT, sMH, sT0, sT1, sK = 20, 21, 22, 64, 65, 66
    a(f"s_cmp_ge_u32 s2, {NCH + 5}")
    a("s_cbranch_scc1 K1_END")
    stamp(a, 0)
    a("s_load_dwordx4 s[8:11], s[0:1], 16")
    a("s_load_dwordx2 s[18:19], s[0:1], 72")
    a(f"s_cmp_ge_u32 s2, {NCH}")
    a("s_cbranch_scc1 K1_PREP")
    vD, vS, vO, vT4, vL = 8, 12, 6, 7, 1
    a(f"s_lshl_b32 s{sT1}, s2, 13")
    a(f"v_lshl_add_u32 v{vO}, v0, 4, s{sT1}")
    a(f"v_lshrrev_b32 v5, 6, v0")
    a(f"v_lshlrev_b32 v{vT4}, 2, v0")
    a(f"v_readfirstlane_b32 s{sW}, v5")
    a(f"v_mov_b32 v5, 0")
    a(f"ds_write_b32 v{vT4}, v5 offset:{K1_HIST}")
    a(f"v_and_b32 v{vL}, 63, v0")
    a.wait_all(vm=False)
    srd(a, sDST, 10, 11, E * 4)
    a(f"buffer_load_dwordx4 {vr(vD,4)}, v{vO}, {sr(sDST,4)}, 0 offen", "d")
    srd(a, sSRC, 8, 9, E * 4)
    a(f"buffer_load_dwordx4 {vr(vS,4)}, v{vO}, {sr(sSRC,4)}, 0 offen", "s")
    srd(a, sREC, 18, 19, REC_SZ, REC_OFF)
    srd(a, sCELL, 18, 19, CELL_SZ, CELL_OFF)
    a("s_barrier")
    vB, vR, vK = 16, 20, 24
    a(f"s_mov_b32 s{sK}, {DIVB}")
    a(f"s_mov_b32 s67, {WOFFPK}")
    a(f"v_cmp_gt_u32 vcc, {E * 4}, v{vO}")
    a("s_mov_b64 s[68:69], vcc")
    a("v_mov_b32 v4, 1")
    stamp(a, 1)
    a.wait_vm("d")
    stamp(a, 2)
    for k in range(4):
        a(f"v_mul_u32_u24 v{vB+k}, s{sK}, v{vD+k}")
        a(f"v_lshrrev_b32 v{vB+k}, 20, v{vB+k}")
        a(f"v_mul_u32_u24 v5, {NB}, v{vB+k}")
        a(f"v_sub_u32 v{vD+k}, v{vD+k}, v5")
        a(f"v_lshlrev_b32 v{vB+k}, 2, v{vB+k}")
    a("s_mov_b64 exec, s[68:69]")
    a("s_cbranch_execz K1_NOH")
    for k in range(4):
        a(f"ds_add_rtn_u32 v{vR+k}, v{vB+k}, v4 offset:{K1_HIST}")
    a.label("K1_NOH")
    a("s_mov_b64 exec, -1")
    a.wait_vm("s")
    for k in range(4):
        a(f"v_mul_u32_u24 v5, {WINM}, v{vD+k}")
        a(f"v_lshrrev_b32 v5, 13, v5")
        a(f"v_lshlrev_b32 v3, 3, v5")
        a(f"v_bfe_u32 v3, s67, v3, 8")
        a(f"v_sub_u32 v3, v{vD+k}, v3")
        a(f"v_lshl_or_b32 v{vK+2*k}, v3, 15, v{vS+k}")
        a(f"v_mul_u32_u24 v3, {SBIN}, v{vS+k}")
        a(f"v_lshrrev_b32 v3, 20, v3")
        a(f"v_lshl_add_u32 v3, v5, 5, v3")
        a(f"v_lshl_or_b32 v{vK+2*k}, v3, 25, v{vK+2*k}")
        a(f"v_lshlrev_b32 v{vK+2*k+1}, 3, v{vO}")
        a(f"v_add_u32 v{vK+2*k+1}, {32*k}, v{vK+2*k+1}")
    a.wait_all(vm=False)
    a("s_barrier")
    stamp(a, 3)
    a(f"v_lshlrev_b32 v5, 4, v{vL}")
    a(f"ds_read_b128 {vr(32,4)}, v5 offset:{K1_HIST}")
    a.wait_all(vm=False)
    a("v_add_u32 v36, v32, v33")
    a("v_add_u32 v37, v36, v34")
    a("v_add_u32 v38, v37, v35")
    a("v_mov_b32 v39, v38")
    scan64(a, 39)
    a("v_sub_u32 v40, v39, v38")
    a("v_add_u32 v41, v40, v32")
    a("v_add_u32 v42, v40, v36")
    a("v_add_u32 v43, v40, v37")
    a(f"ds_write_b128 v5, {vr(40,4)} offset:{K1_START}")
    for k in range(4):
        a(f"ds_read_b32 v{vB+k}, v{vB+k} offset:{K1_START}")
    a(f"s_cmp_lg_u32 s{sW}, 0")
    a("s_cbranch_scc1 K1_NOC")
    for k in range(4):
        a(f"v_lshl_or_b32 v{44+k}, v{32+k}, 16, v{40+k}")
    a(f"s_lshl_b32 s{sT1}, s2, 10")
    a(f"v_add_u32 v5, s{sT1}, v5")
    a(f"buffer_store_dwordx4 {vr(44,4)}, v5, {sr(sCELL,4)}, 0 offen sc1")
    a.label("K1_NOC")
    a.wait_all(vm=False)
    for k in range(4):
        a(f"v_add_lshl_u32 v{vB+k}, v{vB+k}, v{vR+k}, 3")
    a("s_mov_b64 exec, s[68:69]")
    a("s_cbranch_execz K1_NOS")
    for k in range(4):
        a(f"ds_write_b64 v{vB+k}, {vr(vK+2*k,2)} offset:{K1_STG}")
    a.label("K1_NOS")
    a("s_mov_b64 exec, -1")
    a.wait_all(vm=False)
    a("s_barrier")
    stamp(a, 4)
    a(f"v_lshlrev_b32 v5, 4, v0")
    a(f"ds_read_b128 {vr(8,4)}, v5 offset:{K1_STG}", "r0")
    a(f"ds_read_b128 {vr(12,4)}, v5 offset:{K1_STG + 8192}", "r1")
    a(f"s_lshl_b32 s{sT1}, s2, 14")
    a(f"v_add_u32 v5, s{sT1}, v5")
    a(f"v_add_u32 v3, 8192, v5")
    a.wait_lg("r0")
    a(f"buffer_store_dwordx4 {vr(8,4)}, v5, {sr(sREC,4)}, 0 offen sc1")
    a.wait_lg("r1")
    a(f"buffer_store_dwordx4 {vr(12,4)}, v3, {sr(sREC,4)}, 0 offen sc1")
    if OPT["STAMP"]:
        stamp(a, 5)
        a.wait_all()
        for k in range(6, NST):
            stamp(a, k)
        stamp_store(a, 18, 19, 0x1100000, sW)
    a("s_endpgm")

    a.label("K1_PREP")
    a("s_load_dwordx4 s[12:15], s[0:1], 32")
    a("s_load_dwordx2 s[16:17], s[0:1], 48")
    vQ, vP, vWO = 2, 3, 4
    a(f"v_lshrrev_b32 v5, 6, v0")
    a(f"v_and_b32 v{vL}, 63, v0")
    a(f"v_readfirstlane_b32 s{sW}, v5")
    a(f"v_lshrrev_b32 v{vQ}, 4, v{vL}")
    a(f"v_and_b32 v{vP}, 15, v{vL}")
    a(f"v_lshlrev_b32 v5, 2, v{vQ}")
    a(f"v_xor_b32 v5, v5, v{vP}")
    a(f"v_lshlrev_b32 v5, 4, v5")
    a(f"v_lshl_add_u32 v{vWO}, v{vQ}, 8, v5")
    a(f"s_and_b32 s{sFT}, s{sW}, 3")
    a(f"s_lshr_b32 s{sMH}, s{sW}, 2")
    a(f"s_lshl_b32 s{sT0}, s{sW}, 12")
    a(f"v_add_u32 v{vWO}, s{sT0}, v{vWO}")
    a(f"s_sub_u32 s{sK}, s2, {NCH}")
    a.wait_all(vm=False)
    srd(a, sWF, 18, 19, WF_SZ, WF_OFF)
    a(f"s_mov_b32 m0, s{sT0}")
    a(f"s_cmp_eq_u32 s{sK}, 1")
    a("s_cbranch_scc1 K1_PV")
    a(f"s_cmp_eq_u32 s{sK}, 3")
    a("s_cbranch_scc1 K1_PU")
    srd(a, sWS, 16, 17, 272 * 256)
    a(f"s_cmp_eq_u32 s{sK}, 0")
    a(f"s_cselect_b32 s{sT1}, 32768, 0")
    a(f"s_cmp_eq_u32 s{sK}, 4")
    a(f"s_cselect_b32 s{sT1}, 65536, s{sT1}")
    a(f"v_add_u32 v{vWO}, s{sT1}, v{vWO}")
    a("s_branch K1_PL")
    a.label("K1_PV")
    srd(a, sWS, 14, 15, 32768)
    a("s_branch K1_PL")
    a.label("K1_PU")
    srd(a, sWS, 12, 13, 32768)
    a.label("K1_PL")
    for i in range(4):
        a(f"buffer_load_dwordx4 v{vWO}, {sr(sWS,4)}, 0 offen offset:{1024*i} lds")
    a(f"v_bfe_u32 v5, v{vL}, 2, 2")
    a(f"v_lshrrev_b32 v18, 5, v{vL}")
    a(f"v_lshl_add_u32 v18, v18, 3, v5")
    a(f"v_lshlrev_b32 v16, 8, v18")
    a(f"v_xor_b32 v5, s{sFT}, v5")
    a(f"v_lshl_add_u32 v16, v5, 6, v16")
    a(f"v_and_b32 v18, 1, v{vL}")
    a(f"v_lshl_add_u32 v16, v18, 5, v16")
    a(f"v_bfe_u32 v18, v{vL}, 4, 1")
    a(f"v_lshl_add_u32 v16, v18, 4, v16")
    a(f"v_bfe_u32 v18, v{vL}, 1, 1")
    a(f"v_lshl_add_u32 v16, v18, 3, v16")
    a(f"s_lshl_b32 s{sT1}, s{sMH}, 14")
    a(f"v_add_u32 v16, s{sT1}, v16")
    a.wait_all()
    a("s_barrier")
    for kk in range(4):
        for q in range(2):
            a(f"ds_read_b64_tr_b16 {vr(32+4*kk+2*q,2)}, v16 offset:{(16*kk+4*q)*256}")
    a(f"v_lshlrev_b32 v5, 4, v{vL}")
    a(f"s_cmp_eq_u32 s{sK}, 4")
    a("s_cbranch_scc1 K1_PC")
    a(f"s_lshl_b32 s{sK}, s{sK}, 15")
    a(f"s_lshl_b32 s{sT1}, s{sFT}, 13")
    a(f"s_add_u32 s{sK}, s{sK}, s{sT1}")
    a(f"s_lshl_b32 s{sT1}, s{sMH}, 12")
    a(f"s_add_u32 s{sK}, s{sK}, s{sT1}")
    a(f"v_add_u32 v5, s{sK}, v5")
    a.wait_all()
    for kk in range(4):
        a(f"buffer_store_dwordx4 {vr(32+4*kk,4)}, v5, {sr(sWF,4)}, 0 offen offset:{1024*kk} sc1")
    a("s_endpgm")
    a.label("K1_PC")
    srd(a, sCELL, 18, 19, FLG_SZ, FLG_OFF)
    for j in range(4):
        a(f"v_mov_b32 v{44+j}, 0")
    a(f"v_lshlrev_b32 v6, 4, v0")
    a(f"buffer_store_dwordx4 {vr(44,4)}, v6, {sr(sCELL,4)}, 0 offen sc1")
    a(f"s_cmp_lg_u32 s{sMH}, 0")
    a("s_cbranch_scc1 K1_END")
    a(f"s_lshl_b32 s{sK}, s{sFT}, 10")
    a(f"s_add_u32 s{sK}, s{sK}, {WF_C}")
    a(f"v_add_u32 v5, s{sK}, v5")
    a(f"s_mov_b32 s70, {NL2E}")
    a.wait_all(vm=False)
    for m in range(4):
        a(f"v_lshlrev_b32 v40, 16, v{32+m}")
        a(f"v_and_b32 v41, 0xffff0000, v{32+m}")
        a(f"v_mul_f32 v40, s70, v40")
        a(f"v_mul_f32 v41, s70, v41")
        a(f"v_cvt_pk_bf16_f32 v{32+m}, v40, v41")
    a(f"buffer_store_dwordx4 {vr(32,4)}, v5, {sr(sWF,4)}, 0 offen sc1")
    a.label("K1_END")
    a("s_endpgm")
    return a


L_LUT2 = 0
L_LUT1 = L_LUT2 + 327 * 16
L_BIN = L_LUT1 + 144
L_MORE, L_SIG, L_FB, L_FAIR = L_BIN + 512, L_BIN + 528, L_BIN + 532, L_BIN + 544
L_BST = L_BIN + 576
L_SRC = L_BST + 512
SRC_W = 18 * 64
L_SEL = L_SRC + 4 * SRC_W
SEL_W = 17 * 128
L_AGM = L_SEL + 4 * SEL_W
AGM_W = 17 * 256
L_TMP = L_AGM + 4 * AGM_W
L_RING = (L_TMP + 16384 + 4095) // 4096 * 4096
L_W = L_RING
L_X = L_RING + 65536
K2_LDS = L_RING + 98304
assert all(x % 16 == 0 for x in (L_LUT1, L_BIN, L_BST, L_SRC, L_SEL, L_AGM, L_TMP)) and K2_LDS <= 163840
assert L_TMP + 16384 <= 65536

vCELL = 0
vFA, vLC, vIA, vVO, vIX, vSA, vGA, vS0, vG0, vT = 1, 5, 7, 8, 12, 14, 15, 16, 18, 20
MSG, FR, SEL, AOH, ACC, EF, AGG, XA, CW, ID = 24, 32, 48, 56, 64, 128, 192, 224, 240, 248
XF = ACC + 32
sX, sEA, sOUT, sTAB, sREC, sCELL, sWF, sFLG = 24, 28, 32, 36, 40, 44, 48, 4
(sW, sWIN, sFH, sRING, sNT, sNW, sR, sMORE, s512, sFT0, sFT1, sNL, sA, sB, sC, sNODE, sROUND, sSGN,
 sN0, sN1, sN2, sN3, sJOB, sWSZ) = range(52, 76)
sBIG = 16


def lane_id(a, v):
    a(f"v_mbcnt_lo_u32_b32 v{v}, -1, 0")
    a(f"v_mbcnt_hi_u32_b32 v{v}, -1, v{v}")


def k2_init_round(a, tid):
    t = MSG
    for j in range(4):
        a(f"v_mov_b32 v{t+j}, 0")
        a(f"v_mov_b32 v{t+4+j}, 0x80808080")
    a(f"v_lshlrev_b32 v{vT}, 4, v{tid}")
    a(f"ds_write_b128 v{vT}, {vr(t,4)} offset:{L_AGM}")
    a(f"ds_write_b128 v{vT}, {vr(t,4)} offset:{L_AGM + 8192}")
    a(f"ds_write_b128 v{vT}, {vr(t+4,4)} offset:{L_SEL}")
    a(f"v_cmp_gt_u32 vcc, {4*SRC_W // 16}, v{tid}")
    a("s_mov_b64 exec, vcc")
    a("s_cbranch_execz 1f")
    a(f"ds_write_b128 v{vT}, {vr(t,4)} offset:{L_SRC}")
    a(f"v_cmp_gt_u32 vcc, {(4*AGM_W - 16384) // 16}, v{tid}")
    a("s_mov_b64 exec, vcc")
    a("s_cbranch_execz 1f")
    a(f"ds_write_b128 v{vT}, {vr(t,4)} offset:{L_AGM + 16384}")
    a(f"v_cmp_gt_u32 vcc, 33, v{tid}")
    a("s_mov_b64 exec, vcc")
    a(f"ds_write_b128 v{vT}, {vr(t,4)} offset:{L_BIN}")
    a(f"v_cmp_gt_u32 vcc, {(4*SEL_W - 8192) // 16}, v{tid}")
    a("s_mov_b64 exec, vcc")
    a(f"ds_write_b128 v{vT}, {vr(t+4,4)} offset:{L_SEL + 8192}")
    a.label("1")
    a("s_mov_b64 exec, -1")


def k2_load_records(a, tid, vN, tag):
    a(f"v_lshrrev_b32 v{vN}, 16, v{vCELL}")
    a(f"v_cmp_lt_u32 vcc, s{sR}, v{vN}")
    a(f"s_cmp_lg_u64 vcc, 0")
    a(f"s_cselect_b32 s{sMORE}, 1, 0")
    a(f"v_min_u32 v{vN}, s{sR}, v{vN}")
    a(f"v_and_b32 v{vT}, 0xffff, v{vCELL}")
    a(f"v_lshrrev_b32 v{vT+1}, 1, v{tid}")
    a(f"v_lshl_add_u32 v{vT}, v{vT+1}, 11, v{vT}")
    a(f"v_lshlrev_b32 v{vT}, 3, v{vT}")
    for i in range(RMAX // 2):
        a(f"v_cmp_lt_u32 vcc, {2*i}, v{vN}")
        a("s_mov_b64 exec, vcc")
        a(f"s_cbranch_execz {tag}")
        a(f"buffer_load_dwordx4 {vr(EF+4*i,4)}, v{vT}, {sr(sREC,4)}, 0 offen offset:{16*i}", "rec")
    a.label(tag)
    a("s_mov_b64 exec, -1")


def stage_weights(a, off, tag):
    lane_id(a, vT)
    a(f"s_lshl_b32 s{sA}, s{sW}, 13")
    a(f"v_lshl_add_u32 v{vT}, v{vT}, 4, s{sA}")
    for g in range(2):
        a(f"s_add_u32 m0, s{sA}, {L_W + 4096*g}")
        a(f"s_mov_b32 s{sB}, {off + 4096*g}")
        for i in range(4):
            a(f"buffer_load_dwordx4 v{vT}, {sr(sWF,4)}, s{sB} offen offset:{1024*i} lds", tag)


def stage_x(a, snode, tag):
    q, p, b = vT, vT + 1, vT + 2
    lane_id(a, p)
    a(f"v_lshrrev_b32 v{q}, 4, v{p}")
    a(f"v_and_b32 v{p}, 15, v{p}")
    a(f"s_lshl_b32 s{sA}, s{sFH}, 4")
    a(f"s_add_u32 s{sA}, s{sA}, s{snode}")
    a(f"v_add_lshl_u32 v{b}, v{q}, s{sA}, 8")
    a(f"s_lshl_b32 s{sA}, s{sW}, 12")
    a(f"s_add_u32 m0, s{sA}, {L_X}")
    for i in range(4):
        a(f"v_add_u32 v{vT+3}, {4*i}, v{q}")
        a(f"v_xor_b32 v{vT+3}, v{vT+3}, v{p}")
        a(f"v_lshl_add_u32 v{vT+3}, v{vT+3}, 4, v{b}")
        a(f"buffer_load_dwordx4 v{vT+3}, {sr(sX,4)}, 0 offen offset:{1024*i} lds", tag)


def read_x(a):
    l, u, b = vT, vT + 1, vT + 2
    lane_id(a, l)
    a(f"v_and_b32 v{u}, 15, v{l}")
    a(f"v_lshrrev_b32 v{b}, 5, v{l}")
    a(f"v_xor_b32 v{u}, v{u}, v{b}")
    a(f"v_lshlrev_b32 v{u}, 4, v{u}")
    a(f"v_and_b32 v{l}, 31, v{l}")
    a(f"v_lshl_add_u32 v{b}, v{l}, 8, v{u}")
    a(f"s_lshl_b32 s{sA}, s{sWIN}, 13")
    a(f"s_add_u32 s{sA}, s{sA}, {L_X}")
    a(f"v_add_u32 v{b}, s{sA}, v{b}")
    for kk in range(8):
        a(f"v_xor_b32 v{u}, {kk << 5}, v{b}")
        a(f"ds_read_b128 {vr(XF+4*kk,4)}, v{u}", "xf")


def wfrag_addr(a, wa):
    lane_id(a, wa)
    a(f"s_lshl_b32 s{sA}, s{sFH}, 14")
    a(f"s_add_u32 s{sA}, s{sA}, {L_W}")
    a(f"v_lshl_add_u32 v{wa}, v{wa}, 4, s{sA}")


def gemm_pair(a, wa, f, d0, d1, w_first, hooks=None):
    hooks = hooks or {}
    def rd(kk):
        for m in range(2):
            a(f"ds_read_b128 {vr(SEL + 8*(kk & 1) + 4*m, 4)}, v{wa} offset:{32768*m + 8192*f + 1024*kk}", f"w{kk}")
    rd(0)
    rd(1)
    for kk in range(8):
        a.wait_lg(f"w{kk}")
        for m, d in enumerate((d0, d1)):
            w = SEL + 8 * (kk & 1) + 4 * m
            x, y = (w, XF + 4*kk) if w_first[m] else (XF + 4*kk, w)
            a(mfma(d, x, y, None if kk == 0 else d))
        if kk + 2 < 8:
            rd(kk + 2)
        if kk in hooks:
            hooks[kk]()


def line_addrs(a, wr, rd, go, sbase_lds, snode, shift, sub):
    l, n, h = vT, vT + 1, vT + 2
    lane_id(a, l)
    a(f"v_and_b32 v{n}, 31, v{l}")
    a(f"v_lshrrev_b32 v{h}, 5, v{l}")
    a(f"v_lshlrev_b32 v{h}, 1, v{h}")
    a(f"v_and_b32 v{wr}, 7, v{l}")
    a(f"v_xor_b32 v{wr}, v{wr}, v{h}")
    a(f"v_lshlrev_b32 v{wr}, 4, v{wr}")
    a(f"v_lshl_add_u32 v{wr}, v{n}, 7, v{wr}")
    a(f"v_add_u32 v{wr}, s{sbase_lds}, v{wr}")
    a(f"v_lshl_add_u32 v{rd}, v{l}, 4, s{sbase_lds}")
    a(f"v_lshrrev_b32 v{n}, 3, v{l}")
    a(f"v_and_b32 v{h}, 7, v{l}")
    a(f"v_xor_b32 v{h}, v{h}, v{n}")
    a(f"v_add_lshl_u32 v{go}, v{n}, s{snode}, {shift}")
    a(f"v_lshl_add_u32 v{go}, v{h}, 4, v{go}")
    a(f"v_add_u32 v{go}, s{sub}, v{go}")


def line_store(a, src, wr, rd, go, tmp, srdreg, shift, off, tag):
    for i, c in enumerate((0, 1, 4, 5)):
        if c:
            a(f"v_xor_b32 v{tmp}, {c << 4}, v{wr}")
        a(f"ds_write_b128 v{tmp if c else wr}, {vr(src+4*i,4)}", "lw")
    for i in range(4):
        a(f"ds_read_b128 {vr(src+4*i,4)}, v{rd} offset:{1024*i}", f"lr{i}")
    for i in range(4):
        if i == 3:
            lane_id(a, tmp)
            a(f"s_sub_u32 s{sA}, s{sWSZ}, 24")
            a(f"s_lshl_b32 s{sA}, s{sA}, 3")
            a(f"v_cmp_gt_u32 vcc, s{sA}, v{tmp}")
            a(f"v_add_u32 v{tmp}, {(8*i) << shift}, v{go}")
            a(f"v_cndmask_b32 v{tmp}, v{sBIGV}, v{tmp}, vcc")
        elif i:
            a(f"v_add_u32 v{tmp}, {(8*i) << shift}, v{go}")
        a.wait_lg(f"lr{i}")
        a(f"buffer_store_dwordx4 {vr(src+4*i,4)}, v{tmp if i else go}, {sr(srdreg,4)}, 0 offen offset:{off} sc1", tag)


sBIGV = MSG + 7


def tables(a, snode, pk, hooks0=None, hooks1=None):
    wa, wr, rd, go, tmp, lo = MSG, MSG + 1, MSG + 2, MSG + 3, MSG + 4, MSG + 5
    wfrag_addr(a, wa)
    a(f"s_lshl_b32 s{sC}, s{sW}, 12")
    a(f"s_add_u32 s{sC}, s{sC}, {L_X}")
    line_addrs(a, wr, rd, go, sC, snode, 9, sFT0)
    a(f"v_mov_b32 v{sBIGV}, {BIGOFF}")
    a(f"v_mov_b32 v{lo}, 0xff7f0000")
    a(f"s_mov_b32 s{sB}, 0x7f7f0000")
    DB, DV = ACC, ACC + 16
    for f in range(2):
        gemm_pair(a, wa, f, DB, DV, (True, True), (hooks0, hooks1)[f])
        for j in range(16):
            a(f"v_mul_f32 v{DB+j}, s{sNL}, v{DB+j}")
        for m in range(8):
            a(f"v_cvt_pk_bf16_f32 v{pk+m}, v{DB+2*m}, v{DB+2*m+1}")
        for m in range(8):
            a(f"v_cvt_pk_bf16_f32 v{pk+8+m}, v{DV+2*m}, v{DV+2*m+1}")
        for m in range(8):
            a(f"v_lshlrev_b32 v{DV+2*m}, 16, v{pk+8+m}")
            a(f"v_and_b32 v{DV+2*m+1}, 0xffff0000, v{pk+8+m}")
        for j in range(16):
            a(f"v_rcp_f32 v{DV+j}, v{DV+j}")
        for j in range(16):
            a(f"v_med3_f32 v{DV+j}, v{DV+j}, v{lo}, s{sB}")
        for m in range(8):
            a(f"v_cvt_pk_bf16_f32 v{pk+8+m}, v{DV+2*m}, v{DV+2*m+1}")
        line_store(a, pk, wr, rd, go, tmp, sTAB, 9, 128 * f, "ts")


def node_proj(a, hooks0=None, hooks1=None):
    wa = MSG
    wfrag_addr(a, wa)
    for f in range(2):
        gemm_pair(a, wa, f, ACC + 16 * f, AGG + 16 * f, (False, True), (hooks0, hooks1)[f])
    for f in range(2):
        d = ACC + 16 * f
        for j in range(16):
            a(f"v_mul_f32 v{d+j}, s{sNL}, v{d+j}")
        for m in range(8):
            a(f"v_cvt_pk_bf16_f32 v{XA+8*f+m}, v{d+2*m}, v{d+2*m+1}")


def e_load(a, t):
    a(f"buffer_load_dwordx4 {vr(EF+4*t,4)}, v{FR+t}, {sr(sEA,4)}, 0 offen {OPT['ENT']}", f"e{t}")


def k2_build(a, tid, vN):
    RK = EF + 2 * RMAX
    one = vT + 2
    a(f"v_mov_b32 v{one}, 8")
    a(f"s_cmp_eq_u32 s{sMORE}, 0")
    a(f"s_cbranch_scc1 B_NM")
    a(f"v_mov_b32 v{vT}, {L_MORE}")
    a(f"ds_write_b32 v{vT}, v{one}")
    a.label("B_NM")
    for k in range(RMAX):
        a(f"v_cmp_lt_u32 vcc, {k}, v{vN}")
        a("s_mov_b64 exec, vcc")
        a(f"s_cbranch_execz B_BD")
        a(f"v_lshrrev_b32 v{vT + (k & 1)}, 23, v{EF+2*k}")
        a(f"ds_add_rtn_u32 v{RK+k}, v{vT + (k & 1)}, v{one} offset:{L_BIN}")
    a.label("B_BD")
    a("s_mov_b64 exec, -1")
    a.wait_all(vm=False)
    a("s_barrier")
    ln = vT + 3
    lane_id(a, ln)
    a(f"v_lshlrev_b32 v{vT}, 3, v{ln}")
    a(f"ds_read_b64 {vr(MSG,2)}, v{vT} offset:{L_BIN}")
    a(f"v_mov_b32 v{MSG+2}, {L_MORE}")
    a(f"ds_read_b32 v{MSG+2}, v{MSG+2}")
    a(f"v_lshrrev_b32 v{ln}, 4, v{ln}")
    a(f"v_lshlrev_b32 v{ln}, 12, v{ln}")
    a(f"v_add_u32 v{ln}, {L_TMP}, v{ln}")
    a.wait_all(vm=False)
    a(f"v_add_u32 v{vT+1}, v{MSG}, v{MSG+1}")
    a(f"v_mov_b32 v{vT+2}, v{vT+1}")
    scan16(a, vT + 2)
    for w in range(4):
        a(f"v_readlane_b32 s{sN0+w}, v{vT+2}, {16*w + 15}")
    a(f"v_readfirstlane_b32 s{sMORE}, v{MSG+2}")
    a(f"v_sub_u32 v{vT+2}, v{vT+2}, v{vT+1}")
    a(f"v_add_u32 v{MSG+4}, v{vT+2}, v{ln}")
    a(f"v_add_u32 v{MSG+5}, v{MSG+4}, v{MSG}")
    a(f"ds_write_b64 v{vT}, {vr(MSG+4,2)} offset:{L_BST}")
    a(f"s_max_u32 s{sA}, s{sN0}, s{sN1}")
    a(f"s_max_u32 s{sB}, s{sN2}, s{sN3}")
    a(f"s_max_u32 s{sA}, s{sA}, s{sB}")
    a(f"s_cmp_gt_u32 s{sA}, {8 * 32 * TCAP}")
    a(f"s_cbranch_scc1 K2_OVF")
    for w in range(4):
        a(f"s_lshr_b32 s{sN0+w}, s{sN0+w}, 3")
    a(f"s_cmp_eq_u32 s{sWIN}, 1")
    a(f"s_cselect_b32 s{sNW}, s{sN1}, s{sN0}")
    a(f"s_cmp_eq_u32 s{sWIN}, 2")
    a(f"s_cselect_b32 s{sNW}, s{sN2}, s{sNW}")
    a(f"s_cmp_eq_u32 s{sWIN}, 3")
    a(f"s_cselect_b32 s{sNW}, s{sN3}, s{sNW}")
    a(f"s_add_u32 s{sNT}, s{sNW}, 31")
    a(f"s_lshr_b32 s{sNT}, s{sNT}, 5")
    for g in range(RMAX // 4):
        a(f"v_cmp_lt_u32 vcc, {4*g}, v{vN}")
        a("s_mov_b64 exec, vcc")
        a(f"s_cbranch_execz B_CD")
        for k in range(4):
            a(f"v_lshrrev_b32 v{MSG+k}, 23, v{EF + 2*(4*g + k)}")
            a(f"ds_read_b32 v{MSG+k}, v{MSG+k} offset:{L_BST}", f"b{k}")
        for k in range(4):
            r = 4 * g + k
            if k:
                a(f"v_cmp_lt_u32 vcc, {r}, v{vN}")
                a("s_mov_b64 exec, vcc")
                a(f"s_cbranch_execz B_CD")
            if k == 0:
                a.wait_all(vm=False)
            a(f"v_add_u32 v{MSG+k}, v{MSG+k}, v{RK+r}")
            a(f"ds_write_b64 v{MSG+k}, {vr(EF+2*r,2)}")
    a.label("B_CD")
    a("s_mov_b64 exec, -1")
    a(f"v_add_u32 v{vCELL}, v{vCELL}, v{vN}")
    a(f"v_lshlrev_b32 v{vT}, 16, v{vN}")
    a(f"v_sub_u32 v{vCELL}, v{vCELL}, v{vT}")
    a.wait_all(vm=False)
    a("s_barrier")
    stamp(a, 3)
    ln = vT
    lane_id(a, ln)
    a(f"v_and_b32 v{vT+1}, 31, v{ln}")
    a(f"s_lshl_b32 s{sA}, s{sWIN}, 12")
    a(f"s_add_u32 s{sA}, s{sA}, {L_TMP + 4}")
    a(f"v_lshl_add_u32 v{vT+2}, v{vT+1}, 3, s{sA}")
    for t in range(TCAP):
        a(f"ds_read_b32 v{FR+t}, v{vT+2} offset:{256*t}", f"ei{t}")
    a(f"v_lshrrev_b32 v{ln}, 5, v{ln}")
    a(f"v_lshlrev_b32 v{ln}, 4, v{ln}")
    a(f"v_sub_u32 v{vT+1}, s{sNW}, v{vT+1}")
    a(f"v_mov_b32 v{vT+2}, {BIGOFF}")
    for t in range(TCAP):
        a.wait_lg(f"ei{t}")
        a(f"v_cmp_lt_i32 vcc, {32*t}, v{vT+1}")
        a(f"v_add_u32 v{FR+t}, v{FR+t}, v{ln}")
        a(f"v_cndmask_b32 v{FR+t}, v{vT+2}, v{FR+t}, vcc")
        if t < OPT["E1"]:
            e_load(a, t)
    c0, c1, c2, kv = vT + 1, vT + 2, vT + 3, vIX
    a(f"v_lshlrev_b32 v{c0}, 3, v{tid}")
    for j in range(4):
        a(f"ds_read_b32 v{MSG+j}, v{c0} offset:{L_TMP + 4096*j}")
    a(f"v_and_b32 v{c0}, 7, v{tid}")
    a(f"v_lshlrev_b32 v{c0}, 3, v{c0}")
    a(f"v_bfe_u32 v{c1}, v{tid}, 3, 2")
    a(f"v_lshl_add_u32 v{c0}, v{c1}, 1, v{c0}")
    a(f"v_lshrrev_b32 v{c1}, 5, v{tid}")
    a(f"v_lshl_add_u32 v{c0}, v{c1}, 6, v{c0}")
    a(f"v_lshlrev_b32 v{c1}, 8, v{c1}")
    a(f"v_bfe_u32 v{c2}, v{tid}, 2, 1")
    a(f"v_lshl_add_u32 v{c1}, v{c2}, 7, v{c1}")
    a(f"v_bfe_u32 v{c2}, v{tid}, 3, 1")
    a(f"v_and_b32 v{kv}, 3, v{tid}")
    a(f"v_lshl_add_u32 v{kv}, v{c2}, 2, v{kv}")
    a(f"v_or_b32 v{kv}, 0x0c0c0c00, v{kv}")
    a(f"v_mov_b32 v{kv+1}, {INC[0] | INC[1] << 8 | INC[2] << 16 | INC[3] << 24}")
    a(f"s_mov_b32 s{sA}, {INC[4] | INC[5] << 8 | INC[6] << 16 | INC[7] << 24}")
    a(f"v_perm_b32 v{kv}, s{sA}, v{kv+1}, v{kv}")
    a(f"v_and_b32 v{c2}, 16, v{tid}")
    a(f"v_add_u32 v{c2}, 4, v{c2}")
    a(f"v_lshlrev_b32 v{kv}, v{c2}, v{kv}")
    a(f"v_lshlrev_b32 v{c2}, 2, v{tid}")
    a.wait_all(vm=False)
    for w in range(4):
        a(f"v_cmp_gt_u32 vcc, s{sN0+w}, v{tid}")
        a("s_mov_b64 exec, vcc")
        a(f"s_cbranch_execz B_D{w}")
        r, d, u = MSG + w, MSG + 4, MSG + 5
        a(f"v_and_b32 v{u}, 0x7fff, v{r}")
        a(f"ds_write_b16 v{c0}, v{u} offset:{L_SRC + w*SRC_W}")
        a(f"v_bfe_u32 v{d}, v{r}, 15, 5")
        a(f"v_lshl_add_u32 v{u}, v{d}, 2, v{c1}")
        a(f"ds_add_u32 v{u}, v{kv} offset:{L_AGM + w*AGM_W}")
        a(f"v_bfe_u32 v{u}, v{d}, 2, 1")
        a(f"v_lshl_add_u32 v{u}, v{u}, 1, v{c2}")
        a(f"v_lshrrev_b32 v{r}, 4, v{d}")
        a(f"v_add_u32 v{u}, v{u}, v{r}")
        a(f"v_and_b32 v{r}, 8, v{d}")
        a(f"v_lshlrev_b32 v{r}, 3, v{r}")
        a(f"v_and_b32 v{d}, 3, v{d}")
        a(f"v_lshl_or_b32 v{r}, v{d}, 4, v{r}")
        a(f"ds_write_b8 v{u}, v{r} offset:{L_SEL + w*SEL_W}")
        a.label(f"B_D{w}")
        a("s_mov_b64 exec, -1")
    a.wait_all(vm=False)


def valu_stream(base):
    g, h = base, base + 16
    steps = []
    for j in range(20):
        st = []
        if j < 16:
            st.append(f"v_exp_f32 v{g+j}, v{g+j}")
        if 0 <= j - 1 < 16:
            st.append(f"v_fma_f32 v{g+j-1}, v{g+j-1}, v{h+j-1}, v{h+j-1}")
        if 0 <= j - 2 < 16:
            st.append(f"v_rcp_f32 v{g+j-2}, v{g+j-2}")
        if j - 3 >= 1 and (j - 3) % 2 == 1 and j - 3 < 16:
            m = (j - 4) // 2
            st.append(f"v_cvt_pk_bf16_f32 v{MSG+m}, v{g+2*m}, v{g+2*m+1}")
        steps.append(st)
    return steps


def dma_ops(v):
    st = v % 3
    return [(f"s_add_u32 m0, s{sRING}, {st*4096 + i*1024}",
             f"buffer_load_dwordx4 v{vVO+i}, {sr(sTAB,4)}, s{sFT1 if v & 1 else sFT0} offen lds", f"d{v}")
            for i in range(4)]


def issue_dma(a, v):
    ops = dma_ops(v)
    a(ops[0][0])
    for i, (m0w, ld, tg) in enumerate(ops):
        a("s_nop 0")
        a(ld, tg)
        if i + 1 < 4:
            a(ops[i + 1][0])


def voffs(a):
    for i in range(4):
        sel = " op_sel:[1,0,0,0]" if i & 1 else ""
        a(f"v_mad_u32_u16 v{vVO+i}, v{vIX + (i >> 1)}, s{s512}, v{vLC + (i & 1)}{sel}")


def frag_reads(v):
    return [(f"ds_read_b128 {vr(FR+4*i,4)}, v{vFA+i} offset:{(v % 3)*4096}", f"f{v}") for i in range(4)]


def main_mfmas(v):
    t, f = v >> 1, v & 1
    g = ACC + 32 * (v & 1)
    h = g + 16
    return [mfma(g, FR, ID, None), mfma(h, FR + 8, ID, None), mfma(g, FR + 4, ID + 4, g), mfma(h, FR + 12, ID + 4, h),
            mfma(g, EF + 4*t, CW + 4*f, g), mfma(g, SEL, XA + 8*f, g), mfma(g, SEL + 4, XA + 8*f + 4, g)]


def agg_mfmas(v):
    d = AGG + 16 * (v & 1)
    return [mfma(d, MSG, AOH, d), mfma(d, MSG + 4, AOH + 4, d)]


def rd_idx(a, t):
    a(f"ds_read_b64 {vr(vIX,2)}, v{vIA} offset:{64*t}", f"ix{t}")


def rd_sel_addr(a, t):
    a(f"ds_read_u8 v{vS0}, v{vSA} offset:{128*t}", f"sa{t}")
    a(f"ds_read_u8 v{vS0+1}, v{vSA} offset:{128*t + 1}", f"sa{t}")


def rd_sel(a, t):
    a.wait_lg(f"sa{t}")
    a(f"ds_read_b128 {vr(SEL,4)}, v{vS0} offset:{L_LUT1}", f"s{t}")
    a(f"ds_read_b128 {vr(SEL+4,4)}, v{vS0+1} offset:{L_LUT1}", f"s{t}")


def rd_agg_addr(a, t):
    a(f"ds_read_u16 v{vG0}, v{vGA} offset:{256*t}", f"ga{t}")
    a(f"ds_read_u16 v{vG0+1}, v{vGA} offset:{256*t + 2}", f"ga{t}")


def rd_agg(a, t):
    a.wait_lg(f"ga{t}")
    a(f"ds_read_b128 {vr(AOH,4)}, v{vG0} offset:{L_LUT2}", f"g{t}")
    a(f"ds_read_b128 {vr(AOH+4,4)}, v{vG0+1} offset:{L_LUT2}", f"g{t}")


def slot(a, u):
    t, f = u >> 1, u & 1
    pre = {j: [] for j in range(20)}
    post = {j: [] for j in range(20)}
    a.wait_all(vm=False)
    if f == 0:
        voffs(a)
        if OPT["FAIR"] and t > 0:
            a(f"v_readfirstlane_b32 s{sA}, v{vT+2}")
            post[0].append(lambda: (a(f"s_mul_i32 s{sA}, s{sA}, s{sSGN}"), a("s_setprio 0"), a(f"s_cmp_ge_i32 s{sA}, 0"),
                                    a(f"s_cbranch_scc1 F{u}"), a("s_setprio 1"), a.label(f"F{u}")))
    for i, (m0w, ld, tg) in enumerate(dma_ops(u + 4)):
        pre[i + 1].append(lambda m0w=m0w: a(m0w))
        post[i + 1].append(lambda ld=ld, tg=tg: a(ld, tg))
    mf = (agg_mfmas(u - 1) if u > 0 else [None, None]) + main_mfmas(u + 1)
    for i, m in enumerate(mf):
        if i == 6:
            pre[6].append(lambda: a.wait_vm(f"e{(u + 1) >> 1}"))
        if m:
            pre[i].append(lambda m=m: a(m))
    pre[7].append(lambda: a.wait_vm(f"d{u + 2}"))
    for i, (rd, tg) in enumerate(frag_reads(u + 2)):
        pre[7 + i].append(lambda rd=rd, tg=tg: a(rd, tg))
    if f == 0:
        pre[1].append(lambda: rd_sel_addr(a, t + 1))
        pre[3].append(lambda: rd_agg(a, t))
        pre[11].append(lambda: rd_sel(a, t + 1))
    else:
        pre[4].append(lambda: rd_agg_addr(a, t + 1))
        pre[5].append(lambda: rd_idx(a, t + 3) if t + 3 < TCAP + 2 else None)
        if OPT["FAIR"]:
            pre[12].append(lambda: a(f"ds_add_rtn_u32 v{vT+2}, v{vT}, v{vT+1}"))
    for j, st in enumerate(valu_stream(ACC + 32 * f)):
        for fn in pre[j]:
            fn()
        for s in st:
            a(s)
        for fn in post[j]:
            fn()


def gen_k2():
    a = Asm()
    a(f"s_cmp_ge_u32 s2, {NWG2}")
    a("s_cbranch_scc1 K2_END")
    stamp(a, 0)
    a("s_load_dwordx4 s[4:7], s[0:1], 0")
    a("s_load_dwordx2 s[8:9], s[0:1], 56")
    a("s_load_dwordx2 s[14:15], s[0:1], 72")
    tid, vN = vS0, vS0 + 1
    ln = vG0 + 1
    a(f"v_mov_b32 v{tid}, v0")
    a(f"v_lshrrev_b32 v{vT}, 6, v0")
    a(f"v_and_b32 v{ln}, 63, v0")
    a(f"v_readfirstlane_b32 s{sW}, v{vT}")
    a(f"s_lshl_b32 s{sA}, s2, 2")
    a(f"v_lshrrev_b32 v{vT}, 1, v0")
    a(f"v_lshl_add_u32 v{vT}, v{vT}, 10, s{sA}")
    a(f"s_lshr_b32 s{sWIN}, s{sW}, 1")
    a(f"s_and_b32 s{sFH}, s{sW}, 1")
    a(f"s_mul_i32 s{sRING}, s{sW}, 12288")
    a(f"s_add_u32 s{sRING}, s{sRING}, {L_RING}")
    a(f"s_lshl_b32 s{sA}, s{sWIN}, 3")
    a(f"s_lshr_b32 s{sC}, {WOFFPK}, s{sA}")
    a(f"s_and_b32 s{sC}, s{sC}, 0xff")
    a(f"s_lshr_b32 s{sWSZ}, {WSZ[0] | WSZ[1] << 8 | WSZ[2] << 16 | WSZ[3] << 24}, s{sA}")
    a(f"s_and_b32 s{sWSZ}, s{sWSZ}, 0xff")
    a(f"s_mul_i32 s{sNODE}, s2, {NB}")
    a(f"s_add_u32 s{sNODE}, s{sNODE}, s{sC}")
    a(f"s_mov_b32 s{sR}, {RMAX}")
    a(f"s_mov_b32 s{s512}, 512")
    a(f"s_lshl_b32 s{sFT0}, s{sFH}, 8")
    a(f"s_add_u32 s{sFT1}, s{sFT0}, 128")
    a(f"s_mov_b32 s{sNL}, {NL2E}")
    a(f"s_mov_b32 s{sROUND}, 0")
    a(f"s_cmp_ge_u32 s{sW}, 4")
    a(f"s_cselect_b32 s{sSGN}, -1, 1")
    a.wait_all(vm=False)
    srd(a, sCELL, 14, 15, CELL_SZ, CELL_OFF)
    a(f"buffer_load_dword v{vCELL}, v{vT}, {sr(sCELL,4)}, 0 offen", "cell")
    srd(a, sWF, 14, 15, WF_SZ, WF_OFF)
    srd(a, sX, 4, 5, N * 256)
    stage_x(a, sNODE, "st")
    stage_weights(a, WF_B, "st")
    a(f"v_lshlrev_b32 v{vT}, 4, v{ln}")
    a(f"s_lshl_b32 s{sA}, s{sFH}, 11")
    a(f"s_add_u32 s{sA}, s{sA}, {WF_C}")
    for f in range(2):
        a(f"buffer_load_dwordx4 {vr(CW + 4*f, 4)}, v{vT}, {sr(sWF,4)}, s{sA} offen offset:{1024*f}", "st")
    srd(a, sREC, 14, 15, REC_SZ, REC_OFF)
    srd(a, sTAB, 14, 15, TAB_SZ, TAB_OFF)
    srd(a, sEA, 6, 7, E * 32)
    srd(a, sOUT, 8, 9, N * 256)
    srd(a, sFLG, 14, 15, FLG_SZ, FLG_OFF)
    t0, t1 = vT + 1, vT + 2
    a(f"v_cmp_gt_u32 vcc, 256, v{tid}")
    a("s_mov_b64 exec, vcc")
    a("s_cbranch_execz K2_L1")
    a(f"v_and_b32 v{t0}, 15, v{tid}")
    for b in range(4, 8):
        a(f"v_bfe_u32 v{t1}, v{tid}, {b}, 1")
        a(f"s_mov_b32 s{sA}, {INC[b]}")
        a(f"v_mad_u32_u24 v{t0}, v{t1}, s{sA}, v{t0}")
    a(f"v_lshlrev_b32 v{t0}, 4, v{t0}")
    a(f"v_lshl_or_b32 v{t1}, v{tid}, 15, v{tid}")
    for m in range(4):
        a(f"v_and_b32 v{MSG+m}, {0x10001 << (2*m)}, v{t1}")
        a(f"v_mul_u32_u24 v{MSG+m}, {0x3F80 >> (2*m)}, v{MSG+m}")
    a(f"ds_write_b128 v{t0}, {vr(MSG,4)} offset:{L_LUT2}")
    a(f"v_lshrrev_b32 v{t0}, 2, v{tid}")
    a(f"v_and_b32 v{t1}, 3, v{tid}")
    a(f"v_lshrrev_b32 v{MSG+4}, 1, v{t0}")
    a(f"v_cmp_eq_u32 vcc, v{MSG+4}, v{t1}")
    a(f"v_and_b32 v{t0}, 1, v{t0}")
    a(f"v_lshlrev_b32 v{t0}, 4, v{t0}")
    a(f"v_mov_b32 v{t1}, 0x3f80")
    a(f"v_lshlrev_b32 v{t0}, v{t0}, v{t1}")
    a(f"v_cndmask_b32 v{t0}, 0, v{t0}, vcc")
    a(f"v_lshlrev_b32 v{t1}, 2, v{tid}")
    a(f"v_cmp_gt_u32 vcc, 36, v{tid}")
    a("s_mov_b64 exec, vcc")
    a("s_cbranch_execz K2_L1")
    a(f"ds_write_b32 v{t1}, v{t0} offset:{L_LUT1}")
    a(f"v_mov_b32 v{t0}, 0")
    a(f"v_cmp_gt_u32 vcc, 12, v{tid}")
    a("s_mov_b64 exec, vcc")
    a(f"ds_write_b32 v{t1}, v{t0} offset:{L_SIG}")
    a.label("K2_L1")
    a("s_mov_b64 exec, -1")
    k2_init_round(a, tid)
    r, h, z = vT, vT + 1, vT + 2
    a(f"v_and_b32 v{r}, 31, v{ln}")
    a(f"v_lshrrev_b32 v{h}, 5, v{ln}")
    a(f"v_bfe_u32 v{z}, v{ln}, 1, 3")
    a(f"v_xor_b32 v{z}, v{z}, v{h}")
    a(f"v_lshlrev_b32 v{z}, 4, v{z}")
    a(f"v_lshl_add_u32 v{z}, v{r}, 7, v{z}")
    a(f"v_add_u32 v{vFA}, s{sRING}, v{z}")
    for i, c in ((1, 2), (2, 4), (3, 6)):
        a(f"v_xor_b32 v{vFA+i}, {c << 4}, v{vFA}")
    a(f"s_mul_i32 s{sA}, s{sWIN}, {SEL_W}")
    a(f"s_add_u32 s{sA}, s{sA}, {L_SEL}")
    a(f"v_lshl_add_u32 v{vSA}, v{r}, 2, s{sA}")
    a(f"v_lshl_add_u32 v{vSA}, v{h}, 1, v{vSA}")
    a(f"s_mul_i32 s{sA}, s{sWIN}, {AGM_W}")
    a(f"s_add_u32 s{sA}, s{sA}, {L_AGM}")
    a(f"v_lshl_add_u32 v{vGA}, v{ln}, 2, s{sA}")
    a(f"s_mul_i32 s{sA}, s{sWIN}, {SRC_W}")
    a(f"s_add_u32 s{sA}, s{sA}, {L_SRC}")
    a(f"v_lshrrev_b32 v{z}, 3, v{ln}")
    a(f"v_lshl_add_u32 v{vIA}, v{z}, 3, s{sA}")
    a(f"v_lshrrev_b32 v{z}, 4, v{ln}")
    a(f"v_and_b32 v{vLC}, 7, v{ln}")
    a(f"v_xor_b32 v{vLC}, v{vLC}, v{z}")
    a(f"v_lshlrev_b32 v{vLC}, 4, v{vLC}")
    a(f"v_xor_b32 v{vLC+1}, 64, v{vLC}")
    a(f"v_bfe_u32 v{z}, v{r}, 3, 1")
    a(f"v_and_b32 v{vIX}, 3, v{r}")
    a(f"v_lshl_add_u32 v{z}, v{z}, 2, v{vIX}")
    a(f"v_lshlrev_b32 v{z}, 4, v{z}")
    a(f"v_lshrrev_b32 v{vIX}, 4, v{r}")
    a(f"v_cmp_eq_u32 vcc, v{vIX}, v{h}")
    a(f"v_mov_b32 v{h}, 128")
    a(f"v_cndmask_b32 v{z}, v{h}, v{z}, vcc")
    a(f"v_and_b32 v{r}, 4, v{r}")
    a(f"v_cmp_eq_u32 vcc, 0, v{r}")
    a(f"v_cndmask_b32 v{vIX}, v{h}, v{z}, vcc")
    a(f"v_cndmask_b32 v{vIX+1}, v{z}, v{h}, vcc")
    a.wait_vm("cell")
    stamp(a, 1)
    a(f"v_lshrrev_b32 v{vT}, 16, v{vCELL}")
    a(f"v_add_u32 v{vT+1}, 1, v{vT}")
    a(f"v_lshrrev_b32 v{vT+1}, 1, v{vT+1}")
    a(f"v_sub_u32 v{vT}, v{vT}, v{vT+1}")
    a(f"v_and_b32 v{vCELL}, 0xffff, v{vCELL}")
    a(f"v_and_b32 v{vT+2}, 1, v{tid}")
    a(f"v_cmp_eq_u32 vcc, 1, v{vT+2}")
    a(f"v_mad_u32_u24 v{vCELL}, v{vT+2}, v{vT+1}, v{vCELL}")
    a(f"v_cndmask_b32 v{vT}, v{vT+1}, v{vT}, vcc")
    a(f"v_lshl_or_b32 v{vCELL}, v{vT}, 16, v{vCELL}")
    k2_load_records(a, tid, vN, "K2_RL0")
    a.wait_all()
    a("s_barrier")
    stamp(a, 2)
    a(f"ds_read_b128 {vr(ID,4)}, v{vIX} offset:{L_LUT1}")
    a(f"ds_read_b128 {vr(ID+4,4)}, v{vIX+1} offset:{L_LUT1}")
    read_x(a)
    a.label("K2_BUILD")
    k2_build(a, tid, vN)
    nE = OPT["E1"]
    a(f"s_cmp_lg_u32 s{sROUND}, 0")
    a("s_cbranch_scc1 K2_PLAIN")
    vm_branch = list(a.vm)
    stamp(a, 4)
    ecount = [nE]

    def ehook(n):
        def fn():
            for _ in range(n):
                if ecount[0] < TCAP - OPT["EL"]:
                    e_load(a, ecount[0])
                    ecount[0] += 1
        return fn
    h2 = {3: ehook(OPT["E2"] // 2), 7: ehook(OPT["E2"] - OPT["E2"] // 2)} if OPT["E2"] else None
    tables(a, sNODE, XA, h2, None)
    a.wait_all(vm=False)
    a("s_barrier")
    stage_weights(a, WF_A, "st2")
    ehook(OPT["E3"])()
    a.wait_vm("ts")
    stamp(a, 5)
    a(f"v_mov_b32 v{vT}, {L_SIG}")
    a(f"v_mov_b32 v{vT+1}, 1")
    a("s_mov_b64 exec, 1")
    a(f"ds_add_rtn_u32 v{vT+2}, v{vT}, v{vT+1}")
    a("s_mov_b64 exec, -1")
    a.wait_all(vm=False)
    a(f"v_readfirstlane_b32 s{sA}, v{vT+2}")
    a(f"s_cmp_lg_u32 s{sA}, 7")
    a("s_cbranch_scc1 K2_NOSIG")
    lane_id(a, vT)
    a(f"s_lshl_b32 s{sA}, s2, 2")
    a(f"v_lshl_add_u32 v{vT}, v{vT}, 10, s{sA}")
    vm_save = list(a.vm)
    if not OPT["FORCEFB"]:
        a(f"buffer_store_dword v{vT+1}, v{vT}, {sr(sFLG,4)}, 0 offen sc1")
    a.vm = vm_save
    a.label("K2_NOSIG")
    a.wait_vm("st2")
    a("s_barrier")
    rest = TCAP - OPT["EL"] - ecount[0]
    hk = lambda n: {1: ehook((n + 3) // 4), 3: ehook((n + 2) // 4), 5: ehook((n + 1) // 4), 7: ehook(n // 4)}
    node_proj(a, hk((rest + 1) // 2), hk(rest // 2))
    assert ecount[0] == TCAP - OPT["EL"]
    stamp(a, 6)
    a(f"s_cmp_lg_u32 s{sW}, 0")
    a("s_cbranch_scc1 K2_NOPOLL")
    lane_id(a, vT)
    a(f"s_and_b32 s{sA}, s2, 7")
    a(f"s_lshl_b32 s{sA}, s{sA}, 10")
    a(f"v_lshl_add_u32 v{vT}, v{vT}, 4, s{sA}")
    a(f"s_mov_b32 s{sB}, 0")
    vm_save = list(a.vm)
    a.label("K2_POLL")
    a(f"buffer_load_dwordx4 {vr(MSG,4)}, v{vT}, {sr(sFLG,4)}, 0 offen sc1")
    a("s_waitcnt vmcnt(0)")
    a(f"v_and_b32 v{MSG}, v{MSG}, v{MSG+1}")
    a(f"v_and_b32 v{MSG+2}, v{MSG+2}, v{MSG+3}")
    a(f"v_and_b32 v{MSG}, v{MSG}, v{MSG+2}")
    a(f"v_cmp_ne_u32 vcc, 1, v{MSG}")
    a("s_cbranch_vccz K2_NOPOLL")
    a("s_sleep 2")
    a(f"s_add_u32 s{sB}, s{sB}, 1")
    a(f"s_cmp_lt_u32 s{sB}, {POLL_LIMIT if not OPT['FORCEFB'] else 3}")
    a("s_cbranch_scc1 K2_POLL")
    a(f"v_mov_b32 v{vT}, {L_FB}")
    a(f"v_mov_b32 v{vT+1}, 1")
    a(f"ds_write_b32 v{vT}, v{vT+1}")
    a.vm = vm_save
    a.label("K2_NOPOLL")
    a.wait_all(vm=False)
    a("s_barrier")
    a(f"v_mov_b32 v{vT}, {L_FB}")
    a(f"ds_read_b32 v{vT}, v{vT}")
    a.wait_all(vm=False)
    a(f"v_readfirstlane_b32 s{sA}, v{vT}")
    a(f"s_cmp_lg_u32 s{sA}, 0")
    a("s_cbranch_scc1 K2_HELP")
    vm_fill = list(a.vm)
    a.label("K2_FILL")
    stamp(a, 7)
    a(f"s_cmp_eq_u32 s{sNT}, 0")
    a("s_cbranch_scc1 K2_RDONE")
    rd_idx(a, 0)
    rd_sel_addr(a, 0)
    rd_agg_addr(a, 0)
    if OPT["FAIR"]:
        a(f"s_and_b32 s{sA}, s{sW}, 3")
        a(f"s_lshl_b32 s{sA}, s{sA}, 2")
        a(f"s_add_u32 s{sA}, s{sA}, {L_FAIR}")
        a(f"v_mov_b32 v{vT}, s{sA}")
        lane_id(a, vT + 2)
        a(f"v_cmp_eq_u32 vcc, 0, v{vT+2}")
        a(f"v_mov_b32 v{vT+1}, s{sSGN}")
        a(f"v_lshlrev_b32 v{vT+2}, 2, v{vT+2}")
        a(f"v_cndmask_b32 v{vT+1}, 0, v{vT+1}, vcc")
        a(f"v_cndmask_b32 v{vT}, v{vT+2}, v{vT}, vcc")
    a.wait_lg("ix0")
    voffs(a)
    rd_idx(a, 1)
    issue_dma(a, 0)
    issue_dma(a, 1)
    rd_sel(a, 0)
    a.wait_lg("ix1")
    voffs(a)
    issue_dma(a, 2)
    for t in range(TCAP - OPT["EL"], TCAP):
        e_load(a, t)
    rd_idx(a, 2)
    a.wait_vm("d0")
    for rd, tg in frag_reads(0):
        a(rd, tg)
    a.wait_all(vm=False)
    issue_dma(a, 3)
    mm = main_mfmas(0)
    for m in mm[:4]:
        a(m)
    a.wait_vm("d1")
    for rd, tg in frag_reads(1):
        a(rd, tg)
    a.wait_vm("e0")
    for m in mm[4:]:
        a(m)
    a("s_nop 7")
    for u in range(2 * TCAP - 1):
        slot(a, u)
        if u % 2 == 0 and u < 2 * TCAP - 2:
            a(f"s_cmp_le_u32 s{sNT}, {u // 2 + 1}")
            a("s_cbranch_scc1 K2_DRAIN")
    a.label("K2_DRAIN")
    a("s_nop 3")
    a.wait_all(vm=False)
    for m in agg_mfmas(0):
        a(m)
    for st in valu_stream(ACC + 32):
        for s in st:
            a(s)
    for m in agg_mfmas(1):
        a(m)
    a.label("K2_RDONE")
    stamp(a, 8)
    a(f"s_cmp_lg_u32 s{sMORE}, 0")
    a("s_cbranch_scc1 K2_ROUND")
    wr, rd, go, tmp = MSG + 1, MSG + 2, MSG + 3, MSG + 4
    a(f"s_lshl_b32 s{sC}, s{sFH}, 7")
    line_addrs(a, wr, rd, go, sRING, sNODE, 8, sC)
    a(f"v_mov_b32 v{sBIGV}, {BIGOFF}")
    for f in range(2):
        g, w = AGG + 16 * f, ACC + 16 * f
        for j in range(16):
            a(f"v_mul_f32 v{w+j}, s{sNL}, v{g+j}")
        for j in range(16):
            a(f"v_exp_f32 v{w+j}, v{w+j}")
        for j in range(16):
            a(f"v_add_f32 v{w+j}, 1.0, v{w+j}")
        for j in range(16):
            a(f"v_rcp_f32 v{w+j}, v{w+j}")
        for j in range(16):
            a(f"v_mul_f32 v{w+j}, v{w+j}, v{g+j}")
        for m in range(8):
            a(f"v_cvt_pk_bf16_f32 v{ACC+32+8*f+m}, v{w+2*m}, v{w+2*m+1}")
    a.wait_all()
    line_store(a, ACC + 32, wr, rd, go, tmp, sOUT, 8, 0, "os")
    if OPT["STAMP"]:
        stamp(a, 9)
        stamp_store(a, 14, 15, 0x1000000, sW)
    a.label("K2_END")
    a("s_endpgm")

    a.label("K2_PLAIN")
    a.vm = list(vm_branch)
    for t in range(nE, TCAP - OPT["EL"]):
        e_load(a, t)
    a(f"s_waitcnt vmcnt({len(vm_fill)})")
    a("s_barrier")
    a("s_branch K2_FILL")

    a.label("K2_OVF")
    a(f"s_mov_b32 s{sR}, 1")
    a("s_branch K2_AGAIN")
    a.label("K2_ROUND")
    a(f"s_mov_b32 s{sROUND}, 1")
    a.label("K2_AGAIN")
    a("s_setprio 0")
    a("s_nop 7")
    a.wait_all()
    a("s_barrier")
    lane_id(a, tid)
    a(f"s_lshl_b32 s{sA}, s{sW}, 6")
    a(f"v_add_u32 v{tid}, s{sA}, v{tid}")
    k2_load_records(a, tid, vN, "K2_RL1")
    k2_init_round(a, tid)
    a.wait_all()
    a("s_barrier")
    a("s_branch K2_BUILD")

    a.label("K2_HELP")
    a.wait_all()
    stage_weights(a, WF_B, "h")
    a(f"s_mov_b32 s{sJOB}, 0")
    a.label("K2_HJOB")
    a(f"s_lshl_b32 s{sA}, s{sWIN}, 3")
    a(f"s_lshr_b32 s17, {WOFFPK}, s{sA}")
    a(f"s_and_b32 s17, s17, 0xff")
    a(f"s_mul_i32 s{sA}, s{sJOB}, {NB}")
    a(f"s_add_u32 s17, s17, s{sA}")
    stage_x(a, 17, "h")
    a.wait_all()
    a("s_barrier")
    read_x(a)
    a.wait_all()
    a("s_barrier")
    tables(a, 17, HELP_PK)
    a.wait_all()
    a("s_barrier")
    a(f"s_add_u32 s{sJOB}, s{sJOB}, 1")
    a(f"s_cmp_lt_u32 s{sJOB}, {NWG2}")
    a("s_cbranch_scc1 K2_HJOB")
    a("s_branch K2_FILL")
    return a


HELP_PK = FR


def main():
    assert OPT["EL"] == 0, "late e loads keep their offsets in FR, which the help path reuses"
    k1, k2 = gen_k1(), gen_k2()
    t1, t2 = k1.text(), k2.text()
    head = open("standalone__edge_featured_mpnn_egc__graph.s.ref").read().split("; Override launch")[0]
    out = head
    out += f"; @launch kernel=egc_sort_kernel grid=({NCH + 5},1,1) block=(512,1,1) lds={K1_LDS}\n"
    out += f"; @launch kernel=egc_edge_kernel grid=({NWG2},1,1) block=(512,1,1) lds={K2_LDS}\n"
    out += '.amdgcn_target "amdgcn-amd-amdhsa--gfx950"\n.text\n'
    for name, t in (("egc_sort_kernel", t1), ("egc_edge_kernel", t2)):
        out += f".globl {name}\n.p2align 8\n.type {name},@function\n{name}:\n{t}"
    out += '.section .rodata,"a"\n.p2align 6\n'
    out += descriptor("egc_sort_kernel", 64, 100)
    out += ".p2align 6\n"
    out += descriptor("egc_edge_kernel", 256, 100)
    open(sys.argv[1], "w").write(out)
    print(f"K1 lds {K1_LDS} nops {k1.nops}; K2 lds {K2_LDS} nops {k2.nops}; lines {out.count(chr(10))}")


if __name__ == "__main__":
    main()
```

```python
import re

TRANS = ("v_exp_f32", "v_rcp_f32", "v_log_f32", "v_rsq_f32", "v_sqrt_f32", "v_sin_f32", "v_cos_f32")
REG_RE = re.compile(r"(?<![\w.])([vsa])(?:(\d+)|\[(\d+):(\d+)\])(?![\w])|\b(vcc|exec|m0)(?:_lo|_hi)?\b")


def regs_of(op):
    out = set()
    for m in REG_RE.finditer(op):
        if m.group(5):
            out.add(m.group(5))
        elif m.group(2) is not None:
            out.add(m.group(1) + m.group(2))
        else:
            for i in range(int(m.group(3)), int(m.group(4)) + 1):
                out.add(m.group(1) + str(i))
    return out


def split_ops(rest):
    ops, depth, cur = [], 0, ""
    for ch in rest:
        if ch == "[":
            depth += 1
        if ch == "]":
            depth -= 1
        if ch == "," and depth == 0:
            ops.append(cur.strip())
            cur = ""
        else:
            cur += ch
    if cur.strip():
        ops.append(cur.strip())
    return ops


class Ins:
    def __init__(self, text):
        self.text = text
        t = text.strip()
        self.label = t.endswith(":")
        self.directive = t.startswith(".") and not self.label
        self.comment = t.startswith(";") or not t
        self.w, self.r = set(), set()
        self.kind = "none"
        self.op = ""
        self.srcs = []
        if self.label or self.directive or self.comment:
            return
        t = t.split(";")[0].strip()
        parts = t.split(None, 1)
        op = self.op = parts[0]
        ops = split_ops(parts[1]) if len(parts) > 1 else []
        rs = [regs_of(o) for o in ops]
        allr = set().union(*rs) if rs else set()
        rest = set().union(*rs[1:]) if len(rs) > 1 else set()
        if op.startswith("v_mfma") or op.startswith("v_smfmac"):
            self.kind = "mfma"
            self.w, self.r = rs[0], rest
            self.srcs = rs[1:]
            self.passes = 8 if "32x32" in op else 4
            if op.startswith("v_smfmac"):
                self.r = self.r | rs[0]
                self.srcs = [rs[1], rs[2] | rs[3], rs[0]]
        elif op.startswith("v_"):
            self.kind = "valu"
            self.w, self.r = rs[0], rest
            if op.startswith(("v_fmac", "v_swap", "v_permlane", "v_writelane")) or "dpp" in op or "row_" in t:
                self.r = self.r | rs[0]
            if op.startswith(("v_swap", "v_permlane")):
                self.w = allr
            if op.startswith("v_cndmask") and len(ops) == 3:
                self.r = self.r | {"vcc"}
        elif op.startswith("ds_"):
            self.kind = "ds"
            if op.startswith(("ds_read", "ds_bpermute", "ds_permute", "ds_swizzle")) or "_rtn" in op:
                self.w, self.r = rs[0], rest
            else:
                self.r = allr
        elif op.startswith(("buffer_", "global_")):
            self.kind = "vmem"
            isl = re.search(r"\blds\b", t) or "load_lds" in op
            if isl:
                self.r = allr | {"m0"}
                self.dma = True
            elif "load" in op:
                self.w, self.r = rs[0], rest
            else:
                self.r = allr
                if "atomic" in op and "sc0" in t:
                    self.w = rs[0]
            self.wide_store = "store" in op and ("x4" in op or "x3" in op)
            self.data = rs[0] if rs else set()
        elif op.startswith("s_load") or op.startswith("s_memtime") or op.startswith("s_memrealtime"):
            self.kind = "smem"
            self.w, self.r = rs[0], rest
        elif op.startswith("s_"):
            self.kind = "salu"
            if op.startswith(("s_cmp", "s_cbranch", "s_branch", "s_waitcnt", "s_barrier", "s_nop", "s_setprio",
                              "s_endpgm", "s_sleep", "s_bitcmp")):
                self.r = allr
            else:
                self.w, self.r = rs[0], rest
                if "saveexec" in op:
                    self.w = self.w | {"exec"}
        else:
            raise ValueError("unknown instruction: " + text)

    def states(self):
        if self.label or self.directive or self.comment:
            return 0
        if self.op == "s_nop":
            return int(self.text.split()[1], 0) + 1
        return 1


def need(p, c):
    n = 0
    vw = {x for x in p.w if x[0] in "va" and x != "vcc"}
    sw = {x for x in p.w if x[0] == "s" or x == "vcc"}
    if p.kind == "valu":
        if c.kind == "mfma" and vw & c.r:
            n = max(n, 2)
        if c.kind == "valu":
            if p.op.startswith(TRANS) and vw & c.r:
                n = max(n, 1)
            if sw & c.r:
                n = max(n, 4 if c.op.startswith(("v_readlane", "v_writelane")) else 2)
            if c.op.startswith(("v_readlane", "v_readfirstlane")) and vw & c.r:
                n = max(n, 1)
            if ("dpp" in c.op or "row_" in c.text or c.op.startswith("v_permlane")) and vw & c.r:
                n = max(n, 2)
            if "exec" in p.w:
                n = max(n, 5)
        if c.kind == "vmem" and sw & c.r:
            n = max(n, 5)
        if c.kind in ("salu", "smem") and sw & c.r:
            n = max(n, 1)
    if p.kind == "mfma":
        big = {8: 12, 4: 8}[p.passes]
        if c.kind == "mfma":
            if p.w & (c.srcs[0] | c.srcs[1]):
                n = max(n, big)
            cs = c.srcs[2] if len(c.srcs) > 2 else set()
            if p.w & cs and not (p.w == cs and p.passes == c.passes):
                n = max(n, big - 2)
            if p.w & c.w and not (p.w == c.w and p.passes == c.passes):
                n = max(n, big - 2)
        elif c.kind in ("valu", "ds", "vmem"):
            if p.w & (c.r | c.w):
                n = max(n, big)
            cs = p.srcs[2] if len(p.srcs) > 2 else set()
            if c.kind == "valu" and cs & c.w:
                n = max(n, {8: 7, 4: 3}[p.passes])
    if p.kind == "salu" and "m0" in p.w and c.kind in ("vmem", "ds") and "m0" in c.r:
        n = max(n, 1)
    if p.kind == "vmem" and getattr(p, "wide_store", False) and p.data & c.w:
        n = max(n, 2 if c.kind == "valu" else 1)
    if p.kind == "ds" and p.op in ("ds_write_b128", "ds_write_b96") and c.kind == "valu" and p.r & c.w:
        n = max(n, 1)
    return n


class Asm:
    def __init__(self):
        self.ins = []
        self.vm = []
        self.lg = []

    def __call__(self, text, tag=None):
        for line in text.split("\n"):
            if not line.strip():
                continue
            i = Ins(line)
            self.ins.append(i)
            if i.kind == "vmem":
                self.vm.append(tag)
            if i.kind == "ds":
                self.lg.append(tag)
            if i.kind == "smem":
                self.lg.append("smem")
        return self

    def label(self, name):
        self.ins.append(Ins(name + ":"))

    def wait_vm(self, tag):
        idx = [k for k, t in enumerate(self.vm) if t == tag]
        if not idx:
            return
        n = len(self.vm) - 1 - idx[-1]
        assert n <= 63, n
        self.ins.append(Ins(f"s_waitcnt vmcnt({n})"))
        self.vm = self.vm[idx[-1] + 1:]

    def wait_lg(self, tag):
        idx = [k for k, t in enumerate(self.lg) if t == tag]
        if not idx:
            return
        n = len(self.lg) - 1 - idx[-1]
        if "smem" in self.lg:
            n = 0
        n = min(n, 15)
        self.ins.append(Ins(f"s_waitcnt lgkmcnt({n})"))
        self.lg = self.lg[len(self.lg) - n:] if n else []

    def wait_all(self, vm=True, lg=True):
        s = "s_waitcnt"
        if vm:
            s += " vmcnt(0)"
            self.vm = []
        if lg:
            s += " lgkmcnt(0)"
            self.lg = []
        self.ins.append(Ins(s))

    def text(self):
        out, hist = [], []
        nops = 0
        for c in self.ins:
            if c.states() > 0 or c.kind != "none":
                req, dist = 0, 0
                for p in reversed(hist):
                    req = max(req, need(p, c) - dist)
                    dist += p.states()
                    if dist >= 20:
                        break
                while req > 0:
                    k = min(req, 16)
                    n = Ins(f"s_nop {k - 1}")
                    out.append(n)
                    hist.append(n)
                    nops += 1
                    req -= k
                hist.append(c)
                hist = hist[-24:]
            out.append(c)
        self.nops = nops
        return "\n".join((i.text.strip() if (i.label or i.directive) else "    " + i.text.strip()) for i in out) + "\n"


def vr(b, n=1):
    return f"v{b}" if n == 1 else f"v[{b}:{b + n - 1}]"


def sr(b, n=1):
    return f"s{b}" if n == 1 else f"s[{b}:{b + n - 1}]"
```

```python
import os
import sys
sys.path.insert(0, os.path.dirname(os.path.abspath(__file__)))
from asmlib import Asm, vr, sr

N, E, D = 25000, 400000, 128
CH = 2048
NCH = (E + CH - 1) // CH
NB = 98
NWG2 = (N + NB - 1) // NB
WOFF = [0, 25, 49, 73]
WSZ = [25, 24, 24, 25]
TCAP = 16
RMAX = 16
TAB_OFF, TAB_SZ = 0, N * 512
REC_OFF, REC_SZ = 0xC40000, NCH * CH * 8
CELL_OFF, CELL_SZ = 0xF80000, NCH * 256 * 4
WF_OFF, WF_SZ = 0xFC0000, 4 * 32768 + 4096
FLG_OFF, FLG_SZ = 0xFF0000, 8192
WF_B, WF_V, WF_A, WF_U, WF_C = 0, 32768, 65536, 98304, 131072
assert REC_OFF + REC_SZ <= CELL_OFF and CELL_OFF + CELL_SZ <= WF_OFF and WF_OFF + WF_SZ <= FLG_OFF
NL2E = 0xBFB8AA3B
BIGOFF = 0x7FFFFF00
DIVB = 10700
assert all((d * DIVB) >> 20 == d // NB for d in range(N)) and NWG2 == 256
WOFFPK = WOFF[0] | WOFF[1] << 8 | WOFF[2] << 16 | WOFF[3] << 24
WINM = 337
assert all((d * WINM) >> 13 == max(i for i in range(4) if WOFF[i] <= d) for d in range(NB))
SBIN = 1342
assert ((N - 1) * SBIN) >> 20 == 31
INC = [1, 2, 4, 8, 19, 37, 86, 169]
POLL_LIMIT = 4000

OPT = dict(NUP=10, ED=5, E0=1, E1=0, E2=1, PRE=1, PAIR=1, STAMP=0, ENT="nt", ENL="", FAIR=1, FORCEFB=0, L0=5, D0=11, XPF=0, HIT=0, CYC=0, FINE=0)
for kv in sys.argv[2:]:
    k, v = kv.split("=")
    OPT[k] = int(v) if v.lstrip("-").isdigit() else v


NUP = OPT["NUP"]
assert NUP % 2 == 0 and 2 <= NUP <= TCAP


def srd(a, d, lo, hi, size, off=0):
    if off:
        a(f"s_add_u32 s{d}, s{lo}, {off}")
        a(f"s_addc_u32 s{d+1}, s{hi}, 0")
        a(f"s_and_b32 s{d+1}, s{d+1}, 0xffff")
    else:
        a(f"s_mov_b32 s{d}, s{lo}")
        a(f"s_and_b32 s{d+1}, s{hi}, 0xffff")
    a(f"s_mov_b32 s{d+2}, {size}")
    a(f"s_mov_b32 s{d+3}, 0x20000")


def scan16(a, v):
    for sh in (1, 2, 4, 8):
        a(f"v_add_u32_dpp v{v}, v{v}, v{v} row_shr:{sh} row_mask:0xf bank_mask:0xf bound_ctrl:1")


def scan64(a, v):
    scan16(a, v)
    a(f"v_add_u32_dpp v{v}, v{v}, v{v} row_bcast:15 row_mask:0xa bank_mask:0xf")
    a(f"v_add_u32_dpp v{v}, v{v}, v{v} row_bcast:31 row_mask:0xc bank_mask:0xf")


def mfma(d, x, y, c):
    cs = "0" if c is None else vr(c, 16)
    return f"v_mfma_f32_32x32x16_bf16 {vr(d, 16)}, {vr(x, 4)}, {vr(y, 4)}, {cs}"


def descriptor(name, vgpr, sgpr):
    return f""".amdhsa_kernel {name}
  .amdhsa_next_free_vgpr {vgpr}
  .amdhsa_next_free_sgpr {sgpr}
  .amdhsa_accum_offset {(vgpr + 3) // 4 * 4}
  .amdhsa_group_segment_fixed_size 0
  .amdhsa_kernarg_size 80
  .amdhsa_user_sgpr_count 2
  .amdhsa_user_sgpr_kernarg_segment_ptr 1
  .amdhsa_system_sgpr_workgroup_id_x 1
.end_amdhsa_kernel
"""


NST = 10


def fstamp(a, k):
    if OPT["STAMP"] and OPT["FINE"]:
        a(f"s_memrealtime s[{78 + 2*k}:{79 + 2*k}]")
        a.lg = [t for t in a.lg if t != "smem"] + ["smem"]


def stamp(a, k):
    if OPT["FINE"] and k > 0 and getattr(a, "k2", False):
        return
    if OPT["STAMP"]:
        a(f"s_memrealtime s[{78 + 2*k}:{79 + 2*k}]")
        if OPT["CYC"] and k in (7, 8):
            a(f"s_memtime s[{78 + 2*(k - 6)}:{79 + 2*(k - 6)}]")
        a.lg = [t for t in a.lg if t != "smem"] + ["smem"]


def stamp_store(a, lo, hi, off, widx):
    a.wait_all()
    srd(a, 40, lo, hi, 1 << 20, off)
    a(f"s_lshl_b32 s77, s2, 3")
    a(f"s_add_u32 s77, s77, s{widx}")
    a(f"s_lshl_b32 s77, s77, 6")
    a(f"v_mov_b32 v1, s77")
    for k in range(12):
        a(f"v_mov_b32 v{8+k}, s{78+2*min(k, NST - 1)}")
    for q in range(3):
        a(f"buffer_store_dwordx4 {vr(8+4*q,4)}, v1, s[40:43], 0 offen offset:{16*q}")


K1_HIST, K1_START, K1_WTOT, K1_STG = 0, 1024, 2048, 4096
K1_LDS = 32768


def gen_k1():
    a = Asm()
    sSRC, sDST, sWS, sREC, sCELL, sWF = 24, 28, 32, 36, 40, 44
    sW, sFT, sMH, sT0, sT1, sK = 20, 21, 22, 64, 65, 66
    a(f"s_cmp_ge_u32 s2, {NCH + 5}")
    a("s_cbranch_scc1 K1_END")
    stamp(a, 0)
    a("s_load_dwordx4 s[8:11], s[0:1], 16")
    a("s_load_dwordx2 s[18:19], s[0:1], 72")
    a("s_load_dwordx2 s[4:5], s[0:1], 0")
    a(f"s_cmp_ge_u32 s2, {NCH}")
    a("s_cbranch_scc1 K1_PREP")
    vD, vS, vO, vT4, vL = 8, 12, 6, 7, 1
    a(f"s_lshl_b32 s{sT1}, s2, 13")
    a(f"v_lshl_add_u32 v{vO}, v0, 4, s{sT1}")
    a(f"v_lshrrev_b32 v5, 6, v0")
    a(f"v_lshlrev_b32 v{vT4}, 2, v0")
    a(f"v_readfirstlane_b32 s{sW}, v5")
    a(f"v_mov_b32 v5, 0")
    a(f"ds_write_b32 v{vT4}, v5 offset:{K1_HIST}")
    a(f"v_and_b32 v{vL}, 63, v0")
    a.wait_all(vm=False)
    srd(a, sDST, 10, 11, E * 4)
    a(f"buffer_load_dwordx4 {vr(vD,4)}, v{vO}, {sr(sDST,4)}, 0 offen", "d")
    srd(a, sSRC, 8, 9, E * 4)
    a(f"buffer_load_dwordx4 {vr(vS,4)}, v{vO}, {sr(sSRC,4)}, 0 offen", "s")
    if OPT["XPF"]:
        srd(a, sWS, 4, 5, N * 256)
        a(f"s_lshl_b32 s{sT1}, s2, 15")
        a(f"v_lshl_add_u32 v3, v0, 6, s{sT1}")
        a(f"buffer_load_dword v48, v3, {sr(sWS,4)}, 0 offen", "pf")
    srd(a, sREC, 18, 19, REC_SZ, REC_OFF)
    srd(a, sCELL, 18, 19, CELL_SZ, CELL_OFF)
    a("s_barrier")
    vB, vR, vK = 16, 20, 24
    a(f"s_mov_b32 s{sK}, {DIVB}")
    a(f"s_mov_b32 s67, {WOFFPK}")
    a(f"v_cmp_gt_u32 vcc, {E * 4}, v{vO}")
    a("s_mov_b64 s[68:69], vcc")
    a("v_mov_b32 v4, 1")
    stamp(a, 1)
    a.wait_vm("d")
    stamp(a, 2)
    for k in range(4):
        a(f"v_mul_u32_u24 v{vB+k}, s{sK}, v{vD+k}")
        a(f"v_lshrrev_b32 v{vB+k}, 20, v{vB+k}")
        a(f"v_mul_u32_u24 v5, {NB}, v{vB+k}")
        a(f"v_sub_u32 v{vD+k}, v{vD+k}, v5")
        a(f"v_lshlrev_b32 v{vB+k}, 2, v{vB+k}")
    a("s_mov_b64 exec, s[68:69]")
    a("s_cbranch_execz K1_NOH")
    for k in range(4):
        a(f"ds_add_rtn_u32 v{vR+k}, v{vB+k}, v4 offset:{K1_HIST}")
    a.label("K1_NOH")
    a("s_mov_b64 exec, -1")
    a.wait_vm("s")
    for k in range(4):
        a(f"v_mul_u32_u24 v5, {WINM}, v{vD+k}")
        a(f"v_lshrrev_b32 v5, 13, v5")
        a(f"v_lshlrev_b32 v3, 3, v5")
        a(f"v_bfe_u32 v3, s67, v3, 8")
        a(f"v_sub_u32 v3, v{vD+k}, v3")
        a(f"v_lshl_or_b32 v{vK+2*k}, v3, 15, v{vS+k}")
        a(f"v_mul_u32_u24 v3, {SBIN}, v{vS+k}")
        a(f"v_lshrrev_b32 v3, 20, v3")
        a(f"v_lshl_add_u32 v3, v5, 5, v3")
        a(f"v_lshl_or_b32 v{vK+2*k}, v3, 25, v{vK+2*k}")
        a(f"v_lshlrev_b32 v{vK+2*k+1}, 3, v{vO}")
        a(f"v_add_u32 v{vK+2*k+1}, {32*k}, v{vK+2*k+1}")
    a.wait_all(vm=False)
    a("s_barrier")
    stamp(a, 3)
    a(f"v_lshlrev_b32 v5, 4, v{vL}")
    a(f"ds_read_b128 {vr(32,4)}, v5 offset:{K1_HIST}")
    a.wait_all(vm=False)
    a("v_add_u32 v36, v32, v33")
    a("v_add_u32 v37, v36, v34")
    a("v_add_u32 v38, v37, v35")
    a("v_mov_b32 v39, v38")
    scan64(a, 39)
    a("v_sub_u32 v40, v39, v38")
    a("v_add_u32 v41, v40, v32")
    a("v_add_u32 v42, v40, v36")
    a("v_add_u32 v43, v40, v37")
    a(f"ds_write_b128 v5, {vr(40,4)} offset:{K1_START}")
    for k in range(4):
        a(f"ds_read_b32 v{vB+k}, v{vB+k} offset:{K1_START}")
    a(f"s_cmp_lg_u32 s{sW}, 0")
    a("s_cbranch_scc1 K1_NOC")
    for k in range(4):
        a(f"v_lshl_or_b32 v{44+k}, v{32+k}, 16, v{40+k}")
    a(f"s_lshl_b32 s{sT1}, s2, 10")
    a(f"v_add_u32 v5, s{sT1}, v5")
    a(f"buffer_store_dwordx4 {vr(44,4)}, v5, {sr(sCELL,4)}, 0 offen sc1")
    a.label("K1_NOC")
    a.wait_all(vm=False)
    for k in range(4):
        a(f"v_add_lshl_u32 v{vB+k}, v{vB+k}, v{vR+k}, 3")
    a("s_mov_b64 exec, s[68:69]")
    a("s_cbranch_execz K1_NOS")
    for k in range(4):
        a(f"ds_write_b64 v{vB+k}, {vr(vK+2*k,2)} offset:{K1_STG}")
    a.label("K1_NOS")
    a("s_mov_b64 exec, -1")
    a.wait_all(vm=False)
    a("s_barrier")
    stamp(a, 4)
    a(f"v_lshlrev_b32 v5, 4, v0")
    a(f"ds_read_b128 {vr(8,4)}, v5 offset:{K1_STG}", "r0")
    a(f"ds_read_b128 {vr(12,4)}, v5 offset:{K1_STG + 8192}", "r1")
    a(f"s_lshl_b32 s{sT1}, s2, 14")
    a(f"v_add_u32 v5, s{sT1}, v5")
    a(f"v_add_u32 v3, 8192, v5")
    a.wait_lg("r0")
    a(f"buffer_store_dwordx4 {vr(8,4)}, v5, {sr(sREC,4)}, 0 offen sc1")
    a.wait_lg("r1")
    a(f"buffer_store_dwordx4 {vr(12,4)}, v3, {sr(sREC,4)}, 0 offen sc1")
    if OPT["STAMP"]:
        stamp(a, 5)
        a.wait_all()
        for k in range(6, NST):
            stamp(a, k)
        stamp_store(a, 18, 19, 0x1100000, sW)
    a("s_endpgm")

    a.label("K1_PREP")
    a("s_load_dwordx4 s[12:15], s[0:1], 32")
    a("s_load_dwordx2 s[16:17], s[0:1], 48")
    vQ, vP, vWO = 2, 3, 4
    a(f"v_lshrrev_b32 v5, 6, v0")
    a(f"v_and_b32 v{vL}, 63, v0")
    a(f"v_readfirstlane_b32 s{sW}, v5")
    a(f"v_lshrrev_b32 v{vQ}, 4, v{vL}")
    a(f"v_and_b32 v{vP}, 15, v{vL}")
    a(f"v_lshlrev_b32 v5, 2, v{vQ}")
    a(f"v_xor_b32 v5, v5, v{vP}")
    a(f"v_lshlrev_b32 v5, 4, v5")
    a(f"v_lshl_add_u32 v{vWO}, v{vQ}, 8, v5")
    a(f"s_and_b32 s{sFT}, s{sW}, 3")
    a(f"s_lshr_b32 s{sMH}, s{sW}, 2")
    a(f"s_lshl_b32 s{sT0}, s{sW}, 12")
    a(f"v_add_u32 v{vWO}, s{sT0}, v{vWO}")
    a(f"s_sub_u32 s{sK}, s2, {NCH}")
    a.wait_all(vm=False)
    srd(a, sWF, 18, 19, WF_SZ, WF_OFF)
    a(f"s_mov_b32 m0, s{sT0}")
    a(f"s_cmp_eq_u32 s{sK}, 1")
    a("s_cbranch_scc1 K1_PV")
    a(f"s_cmp_eq_u32 s{sK}, 3")
    a("s_cbranch_scc1 K1_PU")
    srd(a, sWS, 16, 17, 272 * 256)
    a(f"s_cmp_eq_u32 s{sK}, 0")
    a(f"s_cselect_b32 s{sT1}, 32768, 0")
    a(f"s_cmp_eq_u32 s{sK}, 4")
    a(f"s_cselect_b32 s{sT1}, 65536, s{sT1}")
    a(f"v_add_u32 v{vWO}, s{sT1}, v{vWO}")
    a("s_branch K1_PL")
    a.label("K1_PV")
    srd(a, sWS, 14, 15, 32768)
    a("s_branch K1_PL")
    a.label("K1_PU")
    srd(a, sWS, 12, 13, 32768)
    a.label("K1_PL")
    for i in range(4):
        a(f"buffer_load_dwordx4 v{vWO}, {sr(sWS,4)}, 0 offen offset:{1024*i} lds")
    a(f"v_bfe_u32 v5, v{vL}, 2, 2")
    a(f"v_lshrrev_b32 v18, 5, v{vL}")
    a(f"v_lshl_add_u32 v18, v18, 3, v5")
    a(f"v_lshlrev_b32 v16, 8, v18")
    a(f"v_xor_b32 v5, s{sFT}, v5")
    a(f"v_lshl_add_u32 v16, v5, 6, v16")
    a(f"v_and_b32 v18, 1, v{vL}")
    a(f"v_lshl_add_u32 v16, v18, 5, v16")
    a(f"v_bfe_u32 v18, v{vL}, 4, 1")
    a(f"v_lshl_add_u32 v16, v18, 4, v16")
    a(f"v_bfe_u32 v18, v{vL}, 1, 1")
    a(f"v_lshl_add_u32 v16, v18, 3, v16")
    a(f"s_lshl_b32 s{sT1}, s{sMH}, 14")
    a(f"v_add_u32 v16, s{sT1}, v16")
    a.wait_all()
    a("s_barrier")
    for kk in range(4):
        for q in range(2):
            a(f"ds_read_b64_tr_b16 {vr(32+4*kk+2*q,2)}, v16 offset:{(16*kk+4*q)*256}")
    a(f"v_lshlrev_b32 v5, 4, v{vL}")
    a(f"s_cmp_eq_u32 s{sK}, 4")
    a("s_cbranch_scc1 K1_PC")
    a(f"s_lshl_b32 s{sK}, s{sK}, 15")
    a(f"s_lshl_b32 s{sT1}, s{sFT}, 13")
    a(f"s_add_u32 s{sK}, s{sK}, s{sT1}")
    a(f"s_lshl_b32 s{sT1}, s{sMH}, 12")
    a(f"s_add_u32 s{sK}, s{sK}, s{sT1}")
    a(f"v_add_u32 v5, s{sK}, v5")
    a.wait_all()
    for kk in range(4):
        a(f"buffer_store_dwordx4 {vr(32+4*kk,4)}, v5, {sr(sWF,4)}, 0 offen offset:{1024*kk} sc1")
    a("s_endpgm")
    a.label("K1_PC")
    srd(a, sCELL, 18, 19, FLG_SZ, FLG_OFF)
    for j in range(4):
        a(f"v_mov_b32 v{44+j}, 0")
    a(f"v_lshlrev_b32 v6, 4, v0")
    a(f"buffer_store_dwordx4 {vr(44,4)}, v6, {sr(sCELL,4)}, 0 offen sc1")
    a(f"s_cmp_lg_u32 s{sMH}, 0")
    a("s_cbranch_scc1 K1_END")
    a(f"s_lshl_b32 s{sK}, s{sFT}, 10")
    a(f"s_add_u32 s{sK}, s{sK}, {WF_C}")
    a(f"v_add_u32 v5, s{sK}, v5")
    a(f"s_mov_b32 s70, {NL2E}")
    a.wait_all(vm=False)
    for m in range(4):
        a(f"v_lshlrev_b32 v40, 16, v{32+m}")
        a(f"v_and_b32 v41, 0xffff0000, v{32+m}")
        a(f"v_mul_f32 v40, s70, v40")
        a(f"v_mul_f32 v41, s70, v41")
        a(f"v_cvt_pk_bf16_f32 v{32+m}, v40, v41")
    a(f"buffer_store_dwordx4 {vr(32,4)}, v5, {sr(sWF,4)}, 0 offen sc1")
    a.label("K1_END")
    a("s_endpgm")
    return a


L_LUT2 = 0
L_LUT1 = L_LUT2 + 327 * 16
L_BIN = L_LUT1 + 144
L_MORE, L_SIG, L_FB, L_FAIR = L_BIN + 512, L_BIN + 528, L_BIN + 532, L_BIN + 544
L_BST = L_BIN + 576
L_SRC = L_BST + 512
SRC_W = 18 * 64
L_SEL = L_SRC + 4 * SRC_W
SEL_W = 17 * 128
L_AGM = L_SEL + 4 * SEL_W
AGM_W = 17 * 256
L_TMP = L_AGM + 4 * AGM_W
L_RING = (L_TMP + 16384 + 4095) // 4096 * 4096
L_W = L_RING
L_X = L_RING + 65536
K2_LDS = L_RING + 98304
assert all(x % 16 == 0 for x in (L_LUT1, L_BIN, L_BST, L_SRC, L_SEL, L_AGM, L_TMP)) and K2_LDS <= 163840
assert L_TMP + 16384 <= 65536

vCELL = 0
vFA, vLC, vIA, vVO, vIX, vSA, vGA, vS0, vG0, vT = 1, 5, 7, 8, 12, 14, 15, 16, 18, 20
MSG, FR, SEL, AOH, ACC, EF, AGG, XA, CW, ID = 24, 32, 48, 56, 64, 128, 192, 224, 240, 248
XF = ACC + 32
sX, sEA, sOUT, sTAB, sREC, sCELL, sWF, sFLG = 24, 28, 32, 36, 40, 44, 48, 4
(sW, sWIN, sFH, sRING, sNT, sNW, sR, sMORE, s512, sFT0, sFT1, sNL, sA, sB, sC, sNODE, sROUND, sSGN,
 sN0, sN1, sN2, sN3, sJOB, sWSZ) = range(52, 76)
sWIN0, sWSZ0, sNODE0 = 18, 19, 20


def lane_id(a, v):
    a(f"v_mbcnt_lo_u32_b32 v{v}, -1, 0")
    a(f"v_mbcnt_hi_u32_b32 v{v}, -1, v{v}")


def k2_init_round(a, tid):
    t = MSG
    for j in range(4):
        a(f"v_mov_b32 v{t+j}, 0")
        a(f"v_mov_b32 v{t+4+j}, 0x80808080")
    a(f"v_lshlrev_b32 v{vT}, 4, v{tid}")
    a(f"ds_write_b128 v{vT}, {vr(t,4)} offset:{L_AGM}")
    a(f"ds_write_b128 v{vT}, {vr(t,4)} offset:{L_AGM + 8192}")
    a(f"ds_write_b128 v{vT}, {vr(t+4,4)} offset:{L_SEL}")
    a(f"v_cmp_gt_u32 vcc, {4*SRC_W // 16}, v{tid}")
    a("s_mov_b64 exec, vcc")
    a("s_cbranch_execz 1f")
    a(f"ds_write_b128 v{vT}, {vr(t,4)} offset:{L_SRC}")
    a(f"v_cmp_gt_u32 vcc, {(4*AGM_W - 16384) // 16}, v{tid}")
    a("s_mov_b64 exec, vcc")
    a("s_cbranch_execz 1f")
    a(f"ds_write_b128 v{vT}, {vr(t,4)} offset:{L_AGM + 16384}")
    a(f"v_cmp_gt_u32 vcc, 33, v{tid}")
    a("s_mov_b64 exec, vcc")
    a(f"ds_write_b128 v{vT}, {vr(t,4)} offset:{L_BIN}")
    a(f"v_cmp_gt_u32 vcc, {(4*SEL_W - 8192) // 16}, v{tid}")
    a("s_mov_b64 exec, vcc")
    a(f"ds_write_b128 v{vT}, {vr(t+4,4)} offset:{L_SEL + 8192}")
    a.label("1")
    a("s_mov_b64 exec, -1")


def k2_load_records(a, tid, vN, tag):
    a(f"v_lshrrev_b32 v{vN}, 16, v{vCELL}")
    a(f"v_cmp_lt_u32 vcc, s{sR}, v{vN}")
    a(f"s_cmp_lg_u64 vcc, 0")
    a(f"s_cselect_b32 s{sMORE}, 1, 0")
    a(f"v_min_u32 v{vN}, s{sR}, v{vN}")
    a(f"v_and_b32 v{vT}, 0xffff, v{vCELL}")
    a(f"v_lshrrev_b32 v{vT+1}, 1, v{tid}")
    a(f"v_lshl_add_u32 v{vT}, v{vT+1}, 11, v{vT}")
    a(f"v_lshlrev_b32 v{vT}, 3, v{vT}")
    for i in range(RMAX // 2):
        a(f"v_cmp_lt_u32 vcc, {2*i}, v{vN}")
        a("s_mov_b64 exec, vcc")
        a(f"s_cbranch_execz {tag}")
        a(f"buffer_load_dwordx4 {vr(EF+4*i,4)}, v{vT}, {sr(sREC,4)}, 0 offen offset:{16*i}", "rec")
    a.label(tag)
    a("s_mov_b64 exec, -1")


def stage_weights(a, off, tag):
    lane_id(a, vT)
    a(f"s_lshl_b32 s{sA}, s{sW}, 13")
    a(f"v_lshl_add_u32 v{vT}, v{vT}, 4, s{sA}")
    for g in range(2):
        a(f"s_add_u32 m0, s{sA}, {L_W + 4096*g}")
        a(f"s_mov_b32 s{sB}, {off + 4096*g}")
        for i in range(4):
            a(f"buffer_load_dwordx4 v{vT}, {sr(sWF,4)}, s{sB} offen offset:{1024*i} lds", tag)


def stage_x(a, snode, tag):
    q, p, b = vT, vT + 1, vT + 2
    a(f"v_mov_b32 v{MSG}, {BIGOFF}")
    lane_id(a, p)
    a(f"v_lshrrev_b32 v{q}, 4, v{p}")
    a(f"v_and_b32 v{p}, 15, v{p}")
    a(f"s_lshl_b32 s{sA}, s{sFH}, 4")
    a(f"s_add_u32 s{sA}, s{sA}, s{snode}")
    a(f"v_add_lshl_u32 v{b}, v{q}, s{sA}, 8")
    a(f"s_lshl_b32 s{sA}, s{sW}, 12")
    a(f"s_add_u32 m0, s{sA}, {L_X}")
    a(f"s_lshl_b32 s{sA}, s{sFH}, 4")
    a(f"s_sub_u32 s{sA}, s{sWSZ0}, s{sA}")
    for i in range(4):
        a(f"v_add_u32 v{vT+3}, {4*i}, v{q}")
        if i >= 2:
            a(f"v_cmp_le_u32 vcc, s{sA}, v{vT+3}")
        a(f"v_xor_b32 v{vT+3}, v{vT+3}, v{p}")
        a(f"v_lshl_add_u32 v{vT+3}, v{vT+3}, 4, v{b}")
        if i >= 2:
            a(f"v_cndmask_b32 v{vT+3}, v{vT+3}, v{MSG}, vcc")
        a(f"buffer_load_dwordx4 v{vT+3}, {sr(sX,4)}, 0 offen offset:{1024*i} lds", tag)


def read_x(a, swin):
    l, u, b = vT, vT + 1, vT + 2
    lane_id(a, l)
    a(f"v_and_b32 v{u}, 15, v{l}")
    a(f"v_lshrrev_b32 v{b}, 5, v{l}")
    a(f"v_xor_b32 v{u}, v{u}, v{b}")
    a(f"v_lshlrev_b32 v{u}, 4, v{u}")
    a(f"v_and_b32 v{l}, 31, v{l}")
    a(f"v_lshl_add_u32 v{b}, v{l}, 8, v{u}")
    a(f"s_lshl_b32 s{sA}, s{swin}, 13")
    a(f"s_add_u32 s{sA}, s{sA}, {L_X}")
    a(f"v_add_u32 v{b}, s{sA}, v{b}")
    for kk in range(8):
        a(f"v_xor_b32 v{u}, {kk << 5}, v{b}")
        a(f"ds_read_b128 {vr(XF+4*kk,4)}, v{u}", "xf")


def wfrag_addr(a, wa):
    lane_id(a, wa)
    a(f"s_lshl_b32 s{sA}, s{sFH}, 14")
    a(f"s_add_u32 s{sA}, s{sA}, {L_W}")
    a(f"v_lshl_add_u32 v{wa}, v{wa}, 4, s{sA}")


def gemm_pair(a, wa, f, d0, d1, w_first, hooks=None):
    hooks = hooks or {}
    def rd(kk):
        for m in range(2):
            a(f"ds_read_b128 {vr(SEL + 8*(kk & 1) + 4*m, 4)}, v{wa} offset:{32768*m + 8192*f + 1024*kk}", f"w{kk}")
    rd(0)
    rd(1)
    for kk in range(8):
        a.wait_lg(f"w{kk}")
        for m, d in enumerate((d0, d1)):
            w = SEL + 8 * (kk & 1) + 4 * m
            x, y = (w, XF + 4*kk) if w_first[m] else (XF + 4*kk, w)
            a(mfma(d, x, y, None if kk == 0 else d))
        if kk + 2 < 8:
            rd(kk + 2)
        if kk in hooks:
            hooks[kk]()


def line_addrs(a, wr, rd, go, sbase_lds, snode, shift, sub):
    l, n, h = vT, vT + 1, vT + 2
    lane_id(a, l)
    a(f"v_and_b32 v{n}, 31, v{l}")
    a(f"v_lshrrev_b32 v{h}, 5, v{l}")
    a(f"v_lshlrev_b32 v{h}, 1, v{h}")
    a(f"v_and_b32 v{wr}, 7, v{l}")
    a(f"v_xor_b32 v{wr}, v{wr}, v{h}")
    a(f"v_lshlrev_b32 v{wr}, 4, v{wr}")
    a(f"v_lshl_add_u32 v{wr}, v{n}, 7, v{wr}")
    a(f"v_add_u32 v{wr}, s{sbase_lds}, v{wr}")
    a(f"v_lshl_add_u32 v{rd}, v{l}, 4, s{sbase_lds}")
    a(f"v_lshrrev_b32 v{n}, 3, v{l}")
    a(f"v_and_b32 v{h}, 7, v{l}")
    a(f"v_xor_b32 v{h}, v{h}, v{n}")
    a(f"v_add_lshl_u32 v{go}, v{n}, s{snode}, {shift}")
    a(f"v_lshl_add_u32 v{go}, v{h}, 4, v{go}")
    a(f"v_add_u32 v{go}, s{sub}, v{go}")


def line_store(a, src, wr, rd, go, tmp, srdreg, shift, off, tag, swsz):
    for i, c in enumerate((0, 1, 4, 5)):
        if c:
            a(f"v_xor_b32 v{tmp}, {c << 4}, v{wr}")
        a(f"ds_write_b128 v{tmp if c else wr}, {vr(src+4*i,4)}", "lw")
    for i in range(4):
        a(f"ds_read_b128 {vr(src+4*i,4)}, v{rd} offset:{1024*i}", f"lr{i}")
    for i in range(4):
        if i == 3:
            lane_id(a, tmp)
            a(f"s_sub_u32 s{sA}, s{swsz}, 24")
            a(f"s_lshl_b32 s{sA}, s{sA}, 3")
            a(f"v_cmp_gt_u32 vcc, s{sA}, v{tmp}")
            a(f"v_add_u32 v{tmp}, {(8*i) << shift}, v{go}")
            a(f"v_cndmask_b32 v{tmp}, v{sBIGV}, v{tmp}, vcc")
        elif i:
            a(f"v_add_u32 v{tmp}, {(8*i) << shift}, v{go}")
        a.wait_lg(f"lr{i}")
        a(f"buffer_store_dwordx4 {vr(src+4*i,4)}, v{tmp if i else go}, {sr(srdreg,4)}, 0 offen offset:{off} sc1", tag)


sBIGV = MSG + 7


def tables(a, snode, swsz, pk, hooks0=None, hooks1=None):
    wa, wr, rd, go, tmp, lo = MSG, MSG + 1, MSG + 2, MSG + 3, MSG + 4, MSG + 5
    wfrag_addr(a, wa)
    a(f"s_lshl_b32 s{sC}, s{sW}, 12")
    a(f"s_add_u32 s{sC}, s{sC}, {L_X}")
    line_addrs(a, wr, rd, go, sC, snode, 9, sFT0)
    a(f"v_mov_b32 v{sBIGV}, {BIGOFF}")
    a(f"v_mov_b32 v{lo}, 0xff7f0000")
    a(f"s_mov_b32 s{sB}, 0x7f7f0000")
    DB, DV = ACC, ACC + 16
    for f in range(2):
        gemm_pair(a, wa, f, DB, DV, (True, True), (hooks0, hooks1)[f])
        for j in range(16):
            a(f"v_mul_f32 v{DB+j}, s{sNL}, v{DB+j}")
        for m in range(8):
            a(f"v_cvt_pk_bf16_f32 v{pk+m}, v{DB+2*m}, v{DB+2*m+1}")
        if OPT["PRE"]:
            for m in range(8):
                a(f"v_cvt_pk_bf16_f32 v{pk+8+m}, v{DV+2*m}, v{DV+2*m+1}")
            for m in range(8):
                a(f"v_lshlrev_b32 v{DV+2*m}, 16, v{pk+8+m}")
                a(f"v_and_b32 v{DV+2*m+1}, 0xffff0000, v{pk+8+m}")
        for j in range(16):
            a(f"v_rcp_f32 v{DV+j}, v{DV+j}")
        for j in range(16):
            a(f"v_med3_f32 v{DV+j}, v{DV+j}, v{lo}, s{sB}")
        for m in range(8):
            a(f"v_cvt_pk_bf16_f32 v{pk+8+m}, v{DV+2*m}, v{DV+2*m+1}")
        line_store(a, pk, wr, rd, go, tmp, sTAB, 9, 128 * f, "ts", swsz)


def node_proj(a, hooks0=None, hooks1=None):
    wa = MSG
    wfrag_addr(a, wa)
    for f in range(2):
        gemm_pair(a, wa, f, ACC + 16 * f, AGG + 16 * f, (False, True), (hooks0, hooks1)[f])
    for f in range(2):
        d = ACC + 16 * f
        for j in range(16):
            a(f"v_mul_f32 v{d+j}, s{sNL}, v{d+j}")
        for m in range(8):
            a(f"v_cvt_pk_bf16_f32 v{XA+8*f+m}, v{d+2*m}, v{d+2*m+1}")


def e_load(a, i):
    a(f"buffer_load_dwordx4 {vr(EF+4*i,4)}, v{FR+i}, {sr(sEA,4)}, 0 offen {OPT['ENT']}", f"eu{i}")


def e_load_late(a, t):
    a(f"buffer_load_dwordx4 {vr(EF+4*t,4)}, v{EF+4*t}, {sr(sEA,4)}, 0 offen {OPT['ENL']}", f"e{t}")


def e_exchange_write(a):
    lane_id(a, vT)
    a(f"s_xor_b32 s{sA}, s{sW}, 1")
    a(f"s_mul_i32 s{sA}, s{sA}, 12288")
    a(f"s_add_u32 s{sA}, s{sA}, {L_RING}")
    a(f"v_lshl_add_u32 v{vT}, v{vT}, 4, s{sA}")
    for i in range(NUP // 2):
        a(f"ds_write_b128 v{vT}, {vr(EF+4*i,4)} offset:{1024*i}")


def e_exchange_read(a):
    lane_id(a, vT)
    a(f"v_lshl_add_u32 v{vT}, v{vT}, 4, s{sRING}")
    for i in range(NUP // 2):
        a(f"ds_read_b128 {vr(EF+2*NUP+4*i,4)}, v{vT} offset:{1024*i}")
    a.wait_all(vm=False)
    a(f"s_cmp_eq_u32 s{sFH}, 0")
    a("s_cbranch_scc1 K2_NOSWAP")
    for j in range(2 * NUP):
        a(f"v_swap_b32 v{EF+j}, v{EF+2*NUP+j}")
    a.label("K2_NOSWAP")


def e_reg(t):
    return EF + 2 * NUP * (t & 1) + 4 * (t >> 1) if t < NUP else EF + 4 * t


def window_regs(a, swin, snode, swsz):
    a(f"s_lshl_b32 s{sA}, s{swin}, 3")
    a(f"s_lshr_b32 s{sC}, {WOFFPK}, s{sA}")
    a(f"s_and_b32 s{sC}, s{sC}, 0xff")
    a(f"s_lshr_b32 s{swsz}, {WSZ[0] | WSZ[1] << 8 | WSZ[2] << 16 | WSZ[3] << 24}, s{sA}")
    a(f"s_and_b32 s{swsz}, s{swsz}, 0xff")
    a(f"s_mul_i32 s{snode}, s2, {NB}")
    a(f"s_add_u32 s{snode}, s{snode}, s{sC}")


def pick_window(a):
    k = [8, 9, 10, 11]
    for w in range(4):
        a(f"s_lshl_b32 s{k[w]}, s{sN0+w}, 2")
        a(f"s_or_b32 s{k[w]}, s{k[w]}, {w}")
    for x, y in ((0, 1), (2, 3), (0, 2), (1, 3), (1, 2)):
        a(f"s_max_u32 s{sA}, s{k[x]}, s{k[y]}")
        a(f"s_min_u32 s{k[y]}, s{k[x]}, s{k[y]}")
        a(f"s_mov_b32 s{k[x]}, s{sA}")
    a(f"s_cmp_eq_u32 s{sWIN0}, 1")
    a(f"s_cselect_b32 s{sA}, s{k[1]}, s{k[0]}")
    a(f"s_cmp_eq_u32 s{sWIN0}, 2")
    a(f"s_cselect_b32 s{sA}, s{k[3]}, s{sA}")
    a(f"s_cmp_eq_u32 s{sWIN0}, 3")
    a(f"s_cselect_b32 s{sA}, s{k[2]}, s{sA}")
    a(f"s_and_b32 s{sWIN}, s{sA}, 3")


def list_addrs(a):
    ln, u = vT, vT + 1
    lane_id(a, ln)
    a(f"s_mul_i32 s{sA}, s{sWIN}, {SEL_W}")
    a(f"s_add_u32 s{sA}, s{sA}, {L_SEL}")
    a(f"v_and_b32 v{u}, 31, v{ln}")
    a(f"v_lshl_add_u32 v{vSA}, v{u}, 2, s{sA}")
    a(f"v_lshrrev_b32 v{u}, 5, v{ln}")
    a(f"v_lshl_add_u32 v{vSA}, v{u}, 1, v{vSA}")
    a(f"s_mul_i32 s{sA}, s{sWIN}, {AGM_W}")
    a(f"s_add_u32 s{sA}, s{sA}, {L_AGM}")
    a(f"v_lshl_add_u32 v{vGA}, v{ln}, 2, s{sA}")
    a(f"s_mul_i32 s{sA}, s{sWIN}, {SRC_W}")
    a(f"s_add_u32 s{sA}, s{sA}, {L_SRC}")
    a(f"v_lshrrev_b32 v{u}, 3, v{ln}")
    a(f"v_lshl_add_u32 v{vIA}, v{u}, 3, s{sA}")


def k2_build(a, tid, vN):
    RK = EF + 2 * RMAX
    one = vT + 2
    a(f"v_mov_b32 v{one}, 8")
    a(f"s_cmp_eq_u32 s{sMORE}, 0")
    a(f"s_cbranch_scc1 B_NM")
    a(f"v_mov_b32 v{vT}, {L_MORE}")
    a(f"ds_write_b32 v{vT}, v{one}")
    a.label("B_NM")
    for k in range(RMAX):
        a(f"v_cmp_lt_u32 vcc, {k}, v{vN}")
        a("s_mov_b64 exec, vcc")
        a(f"s_cbranch_execz B_BD")
        a(f"v_lshrrev_b32 v{vT + (k & 1)}, 23, v{EF+2*k}")
        a(f"ds_add_rtn_u32 v{RK+k}, v{vT + (k & 1)}, v{one} offset:{L_BIN}")
    a.label("B_BD")
    a("s_mov_b64 exec, -1")
    a.wait_all(vm=False)
    a("s_barrier")
    ln = vT + 3
    lane_id(a, ln)
    a(f"v_lshlrev_b32 v{vT}, 3, v{ln}")
    a(f"ds_read_b64 {vr(MSG,2)}, v{vT} offset:{L_BIN}")
    a(f"v_mov_b32 v{MSG+2}, {L_MORE}")
    a(f"ds_read_b32 v{MSG+2}, v{MSG+2}")
    a(f"v_lshrrev_b32 v{ln}, 4, v{ln}")
    a(f"v_lshlrev_b32 v{ln}, 12, v{ln}")
    a(f"v_add_u32 v{ln}, {L_TMP}, v{ln}")
    a.wait_all(vm=False)
    a(f"v_add_u32 v{vT+1}, v{MSG}, v{MSG+1}")
    a(f"v_mov_b32 v{vT+2}, v{vT+1}")
    scan16(a, vT + 2)
    for w in range(4):
        a(f"v_readlane_b32 s{sN0+w}, v{vT+2}, {16*w + 15}")
    a(f"v_readfirstlane_b32 s{sMORE}, v{MSG+2}")
    a(f"v_sub_u32 v{vT+2}, v{vT+2}, v{vT+1}")
    a(f"v_add_u32 v{MSG+4}, v{vT+2}, v{ln}")
    a(f"v_add_u32 v{MSG+5}, v{MSG+4}, v{MSG}")
    a(f"ds_write_b64 v{vT}, {vr(MSG+4,2)} offset:{L_BST}")
    a(f"s_max_u32 s{sA}, s{sN0}, s{sN1}")
    a(f"s_max_u32 s{sB}, s{sN2}, s{sN3}")
    a(f"s_max_u32 s{sA}, s{sA}, s{sB}")
    a(f"s_cmp_gt_u32 s{sA}, {8 * 32 * TCAP}")
    a(f"s_cbranch_scc1 K2_OVF")
    for w in range(4):
        a(f"s_lshr_b32 s{sN0+w}, s{sN0+w}, 3")
    if OPT["PAIR"]:
        a(f"s_cmp_lg_u32 s{sROUND}, 0")
        a("s_cbranch_scc1 B_KEEP")
        pick_window(a)
        a.label("B_KEEP")
    a(f"s_cmp_eq_u32 s{sWIN}, 1")
    a(f"s_cselect_b32 s{sNW}, s{sN1}, s{sN0}")
    a(f"s_cmp_eq_u32 s{sWIN}, 2")
    a(f"s_cselect_b32 s{sNW}, s{sN2}, s{sNW}")
    a(f"s_cmp_eq_u32 s{sWIN}, 3")
    a(f"s_cselect_b32 s{sNW}, s{sN3}, s{sNW}")
    a(f"s_add_u32 s{sNT}, s{sNW}, 31")
    a(f"s_lshr_b32 s{sNT}, s{sNT}, 5")
    for g in range(RMAX // 4):
        a(f"v_cmp_lt_u32 vcc, {4*g}, v{vN}")
        a("s_mov_b64 exec, vcc")
        a(f"s_cbranch_execz B_CD")
        for k in range(4):
            a(f"v_lshrrev_b32 v{MSG+k}, 23, v{EF + 2*(4*g + k)}")
            a(f"ds_read_b32 v{MSG+k}, v{MSG+k} offset:{L_BST}", f"b{k}")
        for k in range(4):
            r = 4 * g + k
            if k:
                a(f"v_cmp_lt_u32 vcc, {r}, v{vN}")
                a("s_mov_b64 exec, vcc")
                a(f"s_cbranch_execz B_CD")
            if k == 0:
                a.wait_all(vm=False)
            a(f"v_add_u32 v{MSG+k}, v{MSG+k}, v{RK+r}")
            a(f"ds_write_b64 v{MSG+k}, {vr(EF+2*r,2)}")
    a.label("B_CD")
    a("s_mov_b64 exec, -1")
    a(f"v_add_u32 v{vCELL}, v{vCELL}, v{vN}")
    a(f"v_lshlrev_b32 v{vT}, 16, v{vN}")
    a(f"v_sub_u32 v{vCELL}, v{vCELL}, v{vT}")
    a.wait_all()
    a("s_barrier")
    stamp(a, 3)
    ln = vT
    lane_id(a, ln)
    a(f"v_and_b32 v{vT+1}, 31, v{ln}")
    a(f"s_lshl_b32 s{sA}, s{sWIN}, 12")
    a(f"s_add_u32 s{sA}, s{sA}, {L_TMP + 4}")
    a(f"v_lshl_add_u32 v{vT+2}, v{vT+1}, 3, s{sA}")
    a(f"s_lshl_b32 s{sA}, s{sFH}, 8")
    a(f"v_add_u32 v{vT+3}, s{sA}, v{vT+2}")
    for i in range(NUP // 2):
        a(f"ds_read_b32 v{FR+i}, v{vT+3} offset:{512*i}", f"ei{i}")
    for t in range(NUP, TCAP):
        a(f"ds_read_b32 v{EF+4*t}, v{vT+2} offset:{256*t}", f"el{t}")
    a(f"v_lshrrev_b32 v{ln}, 5, v{ln}")
    a(f"v_lshlrev_b32 v{ln}, 4, v{ln}")
    a(f"v_sub_u32 v{vT+1}, s{sNW}, v{vT+1}")
    a(f"s_lshl_b32 s{sA}, s{sFH}, 5")
    a(f"v_subrev_u32 v{vT+3}, s{sA}, v{vT+1}")
    a(f"v_mov_b32 v{vT+2}, {BIGOFF}")
    for i in range(NUP // 2):
        a.wait_lg(f"ei{i}")
        a(f"v_cmp_lt_i32 vcc, {64*i}, v{vT+3}")
        a(f"v_add_u32 v{FR+i}, v{FR+i}, v{ln}")
        a(f"v_cndmask_b32 v{FR+i}, v{vT+2}, v{FR+i}, vcc")
        if i < OPT["E0"]:
            e_load(a, i)
    for t in range(NUP, TCAP):
        a.wait_lg(f"el{t}")
        a(f"v_cmp_lt_i32 vcc, {32*t}, v{vT+1}")
        a(f"v_add_u32 v{EF+4*t}, v{EF+4*t}, v{ln}")
        a(f"v_cndmask_b32 v{EF+4*t}, v{vT+2}, v{EF+4*t}, vcc")


def list_fields(a, tid, tag):
    c0, c1, c2, kv = vT + 1, vT + 2, vT + 3, vIX
    a(f"v_lshlrev_b32 v{c0}, 3, v{tid}")
    for j in range(4):
        a(f"ds_read_b32 v{MSG+j}, v{c0} offset:{L_TMP + 4096*j}")
    a(f"v_and_b32 v{c0}, 7, v{tid}")
    a(f"v_lshlrev_b32 v{c0}, 3, v{c0}")
    a(f"v_bfe_u32 v{c1}, v{tid}, 3, 2")
    a(f"v_lshl_add_u32 v{c0}, v{c1}, 1, v{c0}")
    a(f"v_lshrrev_b32 v{c1}, 5, v{tid}")
    a(f"v_lshl_add_u32 v{c0}, v{c1}, 6, v{c0}")
    a(f"v_lshlrev_b32 v{c1}, 8, v{c1}")
    a(f"v_bfe_u32 v{c2}, v{tid}, 2, 1")
    a(f"v_lshl_add_u32 v{c1}, v{c2}, 7, v{c1}")
    a(f"v_bfe_u32 v{c2}, v{tid}, 3, 1")
    a(f"v_and_b32 v{kv}, 3, v{tid}")
    a(f"v_lshl_add_u32 v{kv}, v{c2}, 2, v{kv}")
    a(f"v_or_b32 v{kv}, 0x0c0c0c00, v{kv}")
    a(f"v_mov_b32 v{kv+1}, {INC[0] | INC[1] << 8 | INC[2] << 16 | INC[3] << 24}")
    a(f"s_mov_b32 s{sA}, {INC[4] | INC[5] << 8 | INC[6] << 16 | INC[7] << 24}")
    a(f"v_perm_b32 v{kv}, s{sA}, v{kv+1}, v{kv}")
    a(f"v_and_b32 v{c2}, 16, v{tid}")
    a(f"v_add_u32 v{c2}, 4, v{c2}")
    a(f"v_lshlrev_b32 v{kv}, v{c2}, v{kv}")
    a(f"v_lshlrev_b32 v{c2}, 2, v{tid}")
    a.wait_all(vm=False)
    for w in range(4):
        a(f"v_cmp_gt_u32 vcc, s{sN0+w}, v{tid}")
        a("s_mov_b64 exec, vcc")
        a(f"s_cbranch_execz {tag}{w}")
        r, d, u = MSG + w, MSG + 4, MSG + 5
        a(f"v_and_b32 v{u}, 0x7fff, v{r}")
        a(f"ds_write_b16 v{c0}, v{u} offset:{L_SRC + w*SRC_W}")
        a(f"v_bfe_u32 v{d}, v{r}, 15, 5")
        a(f"v_lshl_add_u32 v{u}, v{d}, 2, v{c1}")
        a(f"ds_add_u32 v{u}, v{kv} offset:{L_AGM + w*AGM_W}")
        a(f"v_bfe_u32 v{u}, v{d}, 2, 1")
        a(f"v_lshl_add_u32 v{u}, v{u}, 1, v{c2}")
        a(f"v_lshrrev_b32 v{r}, 4, v{d}")
        a(f"v_add_u32 v{u}, v{u}, v{r}")
        a(f"v_and_b32 v{r}, 8, v{d}")
        a(f"v_lshlrev_b32 v{r}, 3, v{r}")
        a(f"v_and_b32 v{d}, 3, v{d}")
        a(f"v_lshl_or_b32 v{r}, v{d}, 4, v{r}")
        a(f"ds_write_b8 v{u}, v{r} offset:{L_SEL + w*SEL_W}")
        a.label(f"{tag}{w}")
        a("s_mov_b64 exec, -1")
    a.wait_all(vm=False)


def valu_stream(base):
    g, h = base, base + 16
    steps = []
    for j in range(20):
        st = []
        if j < 16:
            st.append(f"v_exp_f32 v{g+j}, v{g+j}")
        if 0 <= j - 1 < 16:
            st.append(f"v_fma_f32 v{g+j-1}, v{g+j-1}, v{h+j-1}, v{h+j-1}")
        if 0 <= j - 2 < 16:
            st.append(f"v_rcp_f32 v{g+j-2}, v{g+j-2}")
        if j - 3 >= 1 and (j - 3) % 2 == 1 and j - 3 < 16:
            m = (j - 4) // 2
            st.append(f"v_cvt_pk_bf16_f32 v{MSG+m}, v{g+2*m}, v{g+2*m+1}")
        steps.append(st)
    return steps


def dma_ops(v):
    st = v % 3
    return [(f"s_add_u32 m0, s{sRING}, {st*4096 + i*1024}",
             f"buffer_load_dwordx4 v{vVO+i}, {sr(sTAB,4)}, s{sFT1 if v & 1 else sFT0} offen lds", f"d{v}")
            for i in range(4)]


def issue_dma(a, v):
    ops = dma_ops(v)
    a(ops[0][0])
    for i, (m0w, ld, tg) in enumerate(ops):
        a("s_nop 0")
        a(ld, tg)
        if i + 1 < 4:
            a(ops[i + 1][0])


def voffs(a):
    for i in range(4):
        sel = " op_sel:[1,0,0,0]" if i & 1 else ""
        a(f"v_mad_u32_u16 v{vVO+i}, v{vIX + (i >> 1)}, s{s512}, v{vLC + (i & 1)}{sel}")


def frag_reads(v):
    return [(f"ds_read_b128 {vr(FR+4*i,4)}, v{vFA+i} offset:{(v % 3)*4096}", f"f{v}") for i in range(4)]


def main_mfmas(v):
    t, f = v >> 1, v & 1
    g = ACC + 32 * (v & 1)
    h = g + 16
    return [mfma(g, FR, ID, None), mfma(h, FR + 8, ID, None), mfma(g, FR + 4, ID + 4, g), mfma(h, FR + 12, ID + 4, h),
            mfma(g, e_reg(t), CW + 4*f, g), mfma(g, SEL, XA + 8*f, g), mfma(g, SEL + 4, XA + 8*f + 4, g)]


def agg_mfmas(v):
    d = AGG + 16 * (v & 1)
    return [mfma(d, MSG, AOH, d), mfma(d, MSG + 4, AOH + 4, d)]


def rd_idx(a, t):
    a(f"ds_read_b64 {vr(vIX,2)}, v{vIA} offset:{64*t}", f"ix{t}")


def rd_sel_addr(a, t):
    a(f"ds_read_u8 v{vS0}, v{vSA} offset:{128*t}", f"sa{t}")
    a(f"ds_read_u8 v{vS0+1}, v{vSA} offset:{128*t + 1}", f"sa{t}")


def rd_sel(a, t):
    a.wait_lg(f"sa{t}")
    a(f"ds_read_b128 {vr(SEL,4)}, v{vS0} offset:{L_LUT1}", f"s{t}")
    a(f"ds_read_b128 {vr(SEL+4,4)}, v{vS0+1} offset:{L_LUT1}", f"s{t}")


def rd_agg_addr(a, t):
    a(f"ds_read_u16 v{vG0}, v{vGA} offset:{256*t}", f"ga{t}")
    a(f"ds_read_u16 v{vG0+1}, v{vGA} offset:{256*t + 2}", f"ga{t}")


def rd_agg(a, t):
    a.wait_lg(f"ga{t}")
    a(f"ds_read_b128 {vr(AOH,4)}, v{vG0} offset:{L_LUT2}", f"g{t}")
    a(f"ds_read_b128 {vr(AOH+4,4)}, v{vG0+1} offset:{L_LUT2}", f"g{t}")


def slot(a, u):
    t, f = u >> 1, u & 1
    pre = {j: [] for j in range(20)}
    post = {j: [] for j in range(20)}
    a.wait_all(vm=False)
    if f == 0 and OPT["FAIR"] and t > 0:
        a(f"v_readfirstlane_b32 s{sA}, v{vT+2}")
        post[0].append(lambda: (a(f"s_mul_i32 s{sA}, s{sA}, s{sSGN}"), a("s_setprio 0"), a(f"s_cmp_ge_i32 s{sA}, 0"),
                                a(f"s_cbranch_scc1 F{u}"), a("s_setprio 1"), a.label(f"F{u}")))
    g = agg_mfmas(u - 1) if u > 0 else [None, None]
    m = main_mfmas(u + 1)
    order = [m[0], m[1], g[0], m[2], m[3], g[1], m[4], m[5], m[6]]
    for i, x in enumerate(order):
        if x:
            pre[i].append(lambda x=x: a(x))
    if f == 0 and NUP <= t + OPT["ED"] < TCAP:
        post[9].append(lambda: e_load_late(a, t + OPT["ED"]))
    if f == 1:
        pre[6].insert(0, lambda: a.wait_vm(f"e{t + 1}"))
    L0, D0 = OPT["L0"], OPT["D0"]
    pre[L0].append(lambda: a.wait_vm(f"d{u + 2}"))
    for i, (rd, tg) in enumerate(frag_reads(u + 2)):
        pre[L0 + i].append(lambda rd=rd, tg=tg: a(rd, tg))
    pre[D0].append(lambda: a.wait_lg(f"f{u + 2}"))
    if f == 1:
        pre[0].append(lambda: rd_idx(a, t + 3))
        pre[D0].append(lambda: voffs(a))
    for i, (m0w, ld, tg) in enumerate(dma_ops(u + 5)):
        pre[D0 + i].append(lambda m0w=m0w: a(m0w))
        post[D0 + i].append(lambda ld=ld, tg=tg: a(ld, tg))
    if f == 0:
        pre[1].append(lambda: rd_sel_addr(a, t + 1))
        post[D0].append(lambda: rd_agg(a, t))
        post[D0 + 1].append(lambda: rd_sel(a, t + 1))
    else:
        pre[2].append(lambda: rd_agg_addr(a, t + 1))
        if OPT["FAIR"]:
            post[D0 + 1].append(lambda: a(f"ds_add_rtn_u32 v{vT+2}, v{vT}, v{vT+1}"))
    for j, st in enumerate(valu_stream(ACC + 32 * f)):
        for fn in pre[j]:
            fn()
        for s in st:
            a(s)
        for fn in post[j]:
            fn()


def gen_k2():
    a = Asm()
    a.k2 = True
    a(f"s_cmp_ge_u32 s2, {NWG2}")
    a("s_cbranch_scc1 K2_END")
    stamp(a, 0)
    a("s_load_dwordx4 s[4:7], s[0:1], 0")
    a("s_load_dwordx2 s[8:9], s[0:1], 56")
    a("s_load_dwordx2 s[14:15], s[0:1], 72")
    tid, vN = vS0, vS0 + 1
    ln = vG0 + 1
    a(f"v_mov_b32 v{tid}, v0")
    a(f"v_lshrrev_b32 v{vT}, 6, v0")
    a(f"v_and_b32 v{ln}, 63, v0")
    a(f"v_readfirstlane_b32 s{sW}, v{vT}")
    a(f"s_lshl_b32 s{sA}, s2, 2")
    a(f"v_lshrrev_b32 v{vT}, 1, v0")
    a(f"v_lshl_add_u32 v{vT}, v{vT}, 10, s{sA}")
    a(f"s_lshr_b32 s{sWIN}, s{sW}, 1")
    a(f"s_and_b32 s{sFH}, s{sW}, 1")
    a(f"s_mul_i32 s{sRING}, s{sW}, 12288")
    a(f"s_add_u32 s{sRING}, s{sRING}, {L_RING}")
    a(f"s_mov_b32 s{sWIN0}, s{sWIN}")
    window_regs(a, sWIN0, sNODE0, sWSZ0)
    a(f"s_mov_b32 s{sR}, {RMAX}")
    a(f"s_mov_b32 s{s512}, {0 if OPT['HIT'] else 512}")
    a(f"s_lshl_b32 s{sFT0}, s{sFH}, 8")
    a(f"s_add_u32 s{sFT1}, s{sFT0}, 128")
    a(f"s_mov_b32 s{sNL}, {NL2E}")
    a(f"s_mov_b32 s{sROUND}, 0")
    a(f"s_cmp_ge_u32 s{sW}, 4")
    a(f"s_cselect_b32 s{sSGN}, -1, 1")
    a.wait_all(vm=False)
    fstamp(a, 1)
    srd(a, sCELL, 14, 15, CELL_SZ, CELL_OFF)
    a(f"buffer_load_dword v{vCELL}, v{vT}, {sr(sCELL,4)}, 0 offen", "cell")
    srd(a, sWF, 14, 15, WF_SZ, WF_OFF)
    srd(a, sX, 4, 5, N * 256)
    a("s_barrier")
    stage_weights(a, WF_B, "st")
    a(f"v_lshlrev_b32 v{vT}, 4, v{ln}")
    a(f"s_lshl_b32 s{sA}, s{sFH}, 11")
    a(f"s_add_u32 s{sA}, s{sA}, {WF_C}")
    for f in range(2):
        a(f"buffer_load_dwordx4 {vr(CW + 4*f, 4)}, v{vT}, {sr(sWF,4)}, s{sA} offen offset:{1024*f}", "st")
    fstamp(a, 2)
    srd(a, sREC, 14, 15, REC_SZ, REC_OFF)
    srd(a, sTAB, 14, 15, TAB_SZ, TAB_OFF)
    srd(a, sEA, 6, 7, E * 32)
    srd(a, sOUT, 8, 9, N * 256)
    srd(a, sFLG, 14, 15, FLG_SZ, FLG_OFF)
    t0, t1 = vT + 1, vT + 2
    a(f"v_cmp_gt_u32 vcc, 256, v{tid}")
    a("s_mov_b64 exec, vcc")
    a("s_cbranch_execz K2_L1")
    a(f"v_and_b32 v{t0}, 15, v{tid}")
    for b in range(4, 8):
        a(f"v_bfe_u32 v{t1}, v{tid}, {b}, 1")
        a(f"s_mov_b32 s{sA}, {INC[b]}")
        a(f"v_mad_u32_u24 v{t0}, v{t1}, s{sA}, v{t0}")
    a(f"v_lshlrev_b32 v{t0}, 4, v{t0}")
    a(f"v_lshl_or_b32 v{t1}, v{tid}, 15, v{tid}")
    for m in range(4):
        a(f"v_and_b32 v{MSG+m}, {0x10001 << (2*m)}, v{t1}")
        a(f"v_mul_u32_u24 v{MSG+m}, {0x3F80 >> (2*m)}, v{MSG+m}")
    a(f"ds_write_b128 v{t0}, {vr(MSG,4)} offset:{L_LUT2}")
    a(f"v_lshrrev_b32 v{t0}, 2, v{tid}")
    a(f"v_and_b32 v{t1}, 3, v{tid}")
    a(f"v_lshrrev_b32 v{MSG+4}, 1, v{t0}")
    a(f"v_cmp_eq_u32 vcc, v{MSG+4}, v{t1}")
    a(f"v_and_b32 v{t0}, 1, v{t0}")
    a(f"v_lshlrev_b32 v{t0}, 4, v{t0}")
    a(f"v_mov_b32 v{t1}, 0x3f80")
    a(f"v_lshlrev_b32 v{t0}, v{t0}, v{t1}")
    a(f"v_cndmask_b32 v{t0}, 0, v{t0}, vcc")
    a(f"v_lshlrev_b32 v{t1}, 2, v{tid}")
    a(f"v_cmp_gt_u32 vcc, 36, v{tid}")
    a("s_mov_b64 exec, vcc")
    a("s_cbranch_execz K2_L1")
    a(f"ds_write_b32 v{t1}, v{t0} offset:{L_LUT1}")
    a(f"v_mov_b32 v{t0}, 0")
    a(f"v_cmp_gt_u32 vcc, 12, v{tid}")
    a("s_mov_b64 exec, vcc")
    a(f"ds_write_b32 v{t1}, v{t0} offset:{L_SIG}")
    a.label("K2_L1")
    a("s_mov_b64 exec, -1")
    k2_init_round(a, tid)
    r, h, z = vT, vT + 1, vT + 2
    a(f"v_and_b32 v{r}, 31, v{ln}")
    a(f"v_lshrrev_b32 v{h}, 5, v{ln}")
    a(f"v_bfe_u32 v{z}, v{ln}, 1, 3")
    a(f"v_xor_b32 v{z}, v{z}, v{h}")
    a(f"v_lshlrev_b32 v{z}, 4, v{z}")
    a(f"v_lshl_add_u32 v{z}, v{r}, 7, v{z}")
    a(f"v_add_u32 v{vFA}, s{sRING}, v{z}")
    for i, c in ((1, 2), (2, 4), (3, 6)):
        a(f"v_xor_b32 v{vFA+i}, {c << 4}, v{vFA}")
    a(f"v_lshrrev_b32 v{z}, 4, v{ln}")
    a(f"v_and_b32 v{vLC}, 7, v{ln}")
    a(f"v_xor_b32 v{vLC}, v{vLC}, v{z}")
    a(f"v_lshlrev_b32 v{vLC}, 4, v{vLC}")
    a(f"v_xor_b32 v{vLC+1}, 64, v{vLC}")
    a(f"v_bfe_u32 v{z}, v{r}, 3, 1")
    a(f"v_and_b32 v{vIX}, 3, v{r}")
    a(f"v_lshl_add_u32 v{z}, v{z}, 2, v{vIX}")
    a(f"v_lshlrev_b32 v{z}, 4, v{z}")
    a(f"v_lshrrev_b32 v{vIX}, 4, v{r}")
    a(f"v_cmp_eq_u32 vcc, v{vIX}, v{h}")
    a(f"v_mov_b32 v{h}, 128")
    a(f"v_cndmask_b32 v{z}, v{h}, v{z}, vcc")
    a(f"v_and_b32 v{r}, 4, v{r}")
    a(f"v_cmp_eq_u32 vcc, 0, v{r}")
    a(f"v_cndmask_b32 v{vIX}, v{h}, v{z}, vcc")
    a(f"v_cndmask_b32 v{vIX+1}, v{z}, v{h}, vcc")
    fstamp(a, 3)
    a.wait_vm("cell")
    fstamp(a, 4)
    stamp(a, 1)
    a(f"v_lshrrev_b32 v{vT}, 16, v{vCELL}")
    a(f"v_add_u32 v{vT+1}, 1, v{vT}")
    a(f"v_lshrrev_b32 v{vT+1}, 1, v{vT+1}")
    a(f"v_sub_u32 v{vT}, v{vT}, v{vT+1}")
    a(f"v_and_b32 v{vCELL}, 0xffff, v{vCELL}")
    a(f"v_and_b32 v{vT+2}, 1, v{tid}")
    a(f"v_cmp_eq_u32 vcc, 1, v{vT+2}")
    a(f"v_mad_u32_u24 v{vCELL}, v{vT+2}, v{vT+1}, v{vCELL}")
    a(f"v_cndmask_b32 v{vT}, v{vT+1}, v{vT}, vcc")
    a(f"v_lshl_or_b32 v{vCELL}, v{vT}, 16, v{vCELL}")
    k2_load_records(a, tid, vN, "K2_RL0")
    stage_x(a, sNODE0, "xs")
    a.wait_all(vm=False)
    a("s_barrier")
    a(f"ds_read_b128 {vr(ID,4)}, v{vIX} offset:{L_LUT1}")
    a(f"ds_read_b128 {vr(ID+4,4)}, v{vIX+1} offset:{L_LUT1}")
    a("s_waitcnt vmcnt(4)")
    stamp(a, 2)
    a.label("K2_BUILD")
    k2_build(a, tid, vN)
    NE = NUP // 2
    window_regs(a, sWIN, sNODE, sWSZ)
    list_addrs(a)
    a(f"s_cmp_lg_u32 s{sROUND}, 0")
    a("s_cbranch_scc1 K2_PLAIN")
    vm_branch = list(a.vm)
    read_x(a, sWIN)
    a.wait_all(vm=False)
    a("s_barrier")
    ecount = [OPT["E0"]]

    def ehook(n):
        def fn():
            for _ in range(n):
                if ecount[0] < NE:
                    e_load(a, ecount[0])
                    ecount[0] += 1
        return fn
    tables(a, sNODE, sWSZ, XA, {5: ehook(OPT["E1"])}, None)
    a.wait_all(vm=False)
    a("s_barrier")
    stamp(a, 4)
    stage_weights(a, WF_A, "st2")
    ehook(OPT["E2"])()
    list_fields(a, tid, "K2_D")
    a.wait_vm("st2")
    a("s_barrier")
    stamp(a, 5)
    a(f"s_cmp_lg_u32 s{sW}, 0")
    a("s_cbranch_scc1 K2_NOSIG")
    lane_id(a, vT)
    a(f"s_lshl_b32 s{sA}, s2, 2")
    a(f"v_lshl_add_u32 v{vT}, v{vT}, 10, s{sA}")
    a(f"v_mov_b32 v{vT+1}, 1")
    vm_save = list(a.vm)
    if not OPT["FORCEFB"]:
        a(f"buffer_store_dword v{vT+1}, v{vT}, {sr(sFLG,4)}, 0 offen sc1")
    a.vm = vm_save
    a.label("K2_NOSIG")
    rest = NE - ecount[0]
    hk = lambda n: {0: ehook((n + 1) // 2), 4: ehook(n // 2)}
    node_proj(a, hk((rest + 1) // 2), hk(rest // 2))
    assert ecount[0] == NE
    stamp(a, 6)
    a.wait_all()
    a("s_barrier")
    e_exchange_write(a)
    a(f"s_cmp_lg_u32 s{sW}, 0")
    a("s_cbranch_scc1 K2_NOPOLL")
    lane_id(a, vT)
    a(f"s_and_b32 s{sA}, s2, 7")
    a(f"s_lshl_b32 s{sA}, s{sA}, 10")
    a(f"v_lshl_add_u32 v{vT}, v{vT}, 4, s{sA}")
    a(f"s_mov_b32 s{sB}, 0")
    vm_save = list(a.vm)
    a.label("K2_POLL")
    a(f"buffer_load_dwordx4 {vr(MSG,4)}, v{vT}, {sr(sFLG,4)}, 0 offen sc1")
    a("s_waitcnt vmcnt(0)")
    a(f"v_and_b32 v{MSG}, v{MSG}, v{MSG+1}")
    a(f"v_and_b32 v{MSG+2}, v{MSG+2}, v{MSG+3}")
    a(f"v_and_b32 v{MSG}, v{MSG}, v{MSG+2}")
    a(f"v_cmp_ne_u32 vcc, 1, v{MSG}")
    a("s_cbranch_vccz K2_NOPOLL")
    a("s_sleep 2")
    a(f"s_add_u32 s{sB}, s{sB}, 1")
    a(f"s_cmp_lt_u32 s{sB}, {POLL_LIMIT if not OPT['FORCEFB'] else 3}")
    a("s_cbranch_scc1 K2_POLL")
    a(f"v_mov_b32 v{vT}, {L_FB}")
    a(f"v_mov_b32 v{vT+1}, 1")
    a(f"ds_write_b32 v{vT}, v{vT+1}")
    a.vm = vm_save
    a.label("K2_NOPOLL")
    a.wait_all(vm=False)
    a("s_barrier")
    a(f"v_mov_b32 v{vT}, {L_FB}")
    a(f"ds_read_b32 v{vT}, v{vT}")
    a.wait_all(vm=False)
    a(f"v_readfirstlane_b32 s{sA}, v{vT}")
    a(f"s_cmp_lg_u32 s{sA}, 0")
    a("s_cbranch_scc1 K2_HELP")
    a.label("K2_XREAD")
    e_exchange_read(a)
    a.label("K2_FILL")
    a.vm = []
    stamp(a, 7)
    a(f"s_cmp_eq_u32 s{sNT}, 0")
    a("s_cbranch_scc1 K2_RDONE")
    rd_idx(a, 0)
    rd_sel_addr(a, 0)
    rd_agg_addr(a, 0)
    if OPT["FAIR"]:
        a(f"s_and_b32 s{sA}, s{sW}, 3")
        a(f"s_lshl_b32 s{sA}, s{sA}, 2")
        a(f"s_add_u32 s{sA}, s{sA}, {L_FAIR}")
        a(f"v_mov_b32 v{vT}, s{sA}")
        lane_id(a, vT + 2)
        a(f"v_cmp_eq_u32 vcc, 0, v{vT+2}")
        a(f"v_mov_b32 v{vT+1}, s{sSGN}")
        a(f"v_lshlrev_b32 v{vT+2}, 2, v{vT+2}")
        a(f"v_cndmask_b32 v{vT+1}, 0, v{vT+1}, vcc")
        a(f"v_cndmask_b32 v{vT}, v{vT+2}, v{vT}, vcc")
    a.wait_lg("ix0")
    voffs(a)
    rd_idx(a, 1)
    issue_dma(a, 0)
    issue_dma(a, 1)
    rd_sel(a, 0)
    a.wait_lg("ix1")
    voffs(a)
    issue_dma(a, 2)
    for t in range(NUP, TCAP):
        if t - OPT["ED"] < 0:
            e_load_late(a, t)
    rd_idx(a, 2)
    a.wait_vm("d0")
    for rd, tg in frag_reads(0):
        a(rd, tg)
    a.wait_all(vm=False)
    issue_dma(a, 3)
    mm = main_mfmas(0)
    for m in mm[:4]:
        a(m)
    a.wait_vm("d1")
    for rd, tg in frag_reads(1):
        a(rd, tg)
    for m in mm[4:]:
        a(m)
    a.wait_all(vm=False)
    voffs(a)
    issue_dma(a, 4)
    for u in range(2 * TCAP - 1):
        slot(a, u)
        if u % 2 == 0 and u < 2 * TCAP - 2:
            a(f"s_cmp_le_u32 s{sNT}, {u // 2 + 1}")
            a("s_cbranch_scc1 K2_DRAIN")
    a.label("K2_DRAIN")
    a("s_nop 3")
    a.wait_all(vm=False)
    for m in agg_mfmas(0):
        a(m)
    for st in valu_stream(ACC + 32):
        for s in st:
            a(s)
    for m in agg_mfmas(1):
        a(m)
    a.label("K2_RDONE")
    stamp(a, 8)
    a(f"s_cmp_lg_u32 s{sMORE}, 0")
    a("s_cbranch_scc1 K2_ROUND")
    wr, rd, go, tmp = MSG + 1, MSG + 2, MSG + 3, MSG + 4
    a(f"s_lshl_b32 s{sC}, s{sFH}, 7")
    line_addrs(a, wr, rd, go, sRING, sNODE, 8, sC)
    a(f"v_mov_b32 v{sBIGV}, {BIGOFF}")
    for f in range(2):
        g, w = AGG + 16 * f, ACC + 16 * f
        for j in range(16):
            a(f"v_mul_f32 v{w+j}, s{sNL}, v{g+j}")
        for j in range(16):
            a(f"v_exp_f32 v{w+j}, v{w+j}")
        for j in range(16):
            a(f"v_add_f32 v{w+j}, 1.0, v{w+j}")
        for j in range(16):
            a(f"v_rcp_f32 v{w+j}, v{w+j}")
        for j in range(16):
            a(f"v_mul_f32 v{w+j}, v{w+j}, v{g+j}")
        for m in range(8):
            a(f"v_cvt_pk_bf16_f32 v{ACC+32+8*f+m}, v{w+2*m}, v{w+2*m+1}")
    a.wait_all()
    line_store(a, ACC + 32, wr, rd, go, tmp, sOUT, 8, 0, "os", sWSZ)
    if OPT["STAMP"]:
        stamp(a, 9)
        stamp_store(a, 14, 15, 0x1000000, sW)
    a.label("K2_END")
    a("s_endpgm")

    a.label("K2_PLAIN")
    a.vm = list(vm_branch)
    for i in range(OPT["E0"], NE):
        e_load(a, i)
    list_fields(a, tid, "K2_P")
    a.wait_all()
    e_exchange_write(a)
    a.wait_all()
    a("s_barrier")
    a("s_branch K2_XREAD")

    a.label("K2_OVF")
    a(f"s_mov_b32 s{sR}, 1")
    a("s_branch K2_AGAIN")
    a.label("K2_ROUND")
    a(f"s_mov_b32 s{sROUND}, 1")
    a.label("K2_AGAIN")
    a("s_setprio 0")
    a("s_nop 7")
    a.wait_all()
    a("s_barrier")
    lane_id(a, tid)
    a(f"s_lshl_b32 s{sA}, s{sW}, 6")
    a(f"v_add_u32 v{tid}, s{sA}, v{tid}")
    k2_load_records(a, tid, vN, "K2_RL1")
    k2_init_round(a, tid)
    a.wait_all()
    a("s_barrier")
    a("s_branch K2_BUILD")

    a.label("K2_HELP")
    a.wait_all()
    stage_weights(a, WF_B, "h")
    a(f"s_mov_b32 s{sJOB}, 0")
    a.label("K2_HJOB")
    a(f"s_lshl_b32 s{sA}, s{sWIN0}, 3")
    a(f"s_lshr_b32 s17, {WOFFPK}, s{sA}")
    a(f"s_and_b32 s17, s17, 0xff")
    a(f"s_mul_i32 s{sA}, s{sJOB}, {NB}")
    a(f"s_add_u32 s17, s17, s{sA}")
    stage_x(a, 17, "h")
    a.wait_all()
    a("s_barrier")
    read_x(a, sWIN0)
    a.wait_all()
    a("s_barrier")
    tables(a, 17, sWSZ0, HELP_PK)
    a.wait_all()
    a("s_barrier")
    a(f"s_add_u32 s{sJOB}, s{sJOB}, 1")
    a(f"s_cmp_lt_u32 s{sJOB}, {NWG2}")
    a("s_cbranch_scc1 K2_HJOB")
    e_exchange_write(a)
    a.wait_all()
    a("s_barrier")
    a("s_branch K2_XREAD")
    return a


HELP_PK = FR


def main():
    k1, k2 = gen_k1(), gen_k2()
    t1, t2 = k1.text(), k2.text()
    head = open("standalone__edge_featured_mpnn_egc__graph.s.ref").read().split("; Override launch")[0]
    out = head
    out += f"; @launch kernel=egc_sort_kernel grid=({NCH + 5},1,1) block=(512,1,1) lds={K1_LDS}\n"
    out += f"; @launch kernel=egc_edge_kernel grid=({NWG2},1,1) block=(512,1,1) lds={K2_LDS}\n"
    out += '.amdgcn_target "amdgcn-amd-amdhsa--gfx950"\n.text\n'
    for name, t in (("egc_sort_kernel", t1), ("egc_edge_kernel", t2)):
        out += f".globl {name}\n.p2align 8\n.type {name},@function\n{name}:\n{t}"
    out += '.section .rodata,"a"\n.p2align 6\n'
    out += descriptor("egc_sort_kernel", 64, 100)
    out += ".p2align 6\n"
    out += descriptor("egc_edge_kernel", 256, 100)
    open(sys.argv[1], "w").write(out)
    print(f"K1 lds {K1_LDS} nops {k1.nops}; K2 lds {K2_LDS} nops {k2.nops}; lines {out.count(chr(10))}")


if __name__ == "__main__":
    main()
```

```python
import os
import sys
sys.path.insert(0, os.path.dirname(os.path.abspath(__file__)))
from asmlib import Asm, vr, sr

NAME = "standalone__edge_featured_mpnn_egc__graph"
N, E, D = 25000, 400000, 128
NWG = 256
CH = 1564
RSTR = 12544
NB = 98
WOFF = [0, 25, 49, 73]
WSZ = [25, 24, 24, 25]
TCAP = 16
RMAX = 12
assert NWG * CH >= E and CH % 4 == 0 and CH * 8 <= RSTR and NWG * NB >= N
TAB_OFF, TAB_SZ = 0, N * 512
REC_OFF, REC_SZ = 0xC40000, NWG * RSTR
CELL_OFF, CELL_SZ = 0xF80000, NWG * 1024
FLG_OFF, FLG_SZ = 0xFC0000, 16384 + 128
REC2_OFF = 0x1400000
F_SORT, F_TAB, F_TAG = 0, 8192, 16384
assert REC_OFF + REC_SZ <= CELL_OFF and CELL_OFF + CELL_SZ <= FLG_OFF
NL2E = 0xBFB8AA3B
BIGOFF = 0x7FFFFF00
DIVB = 10700
assert all((d * DIVB) >> 20 == d // NB for d in range(N))
WOFFPK = WOFF[0] | WOFF[1] << 8 | WOFF[2] << 16 | WOFF[3] << 24
WINM = 337
assert all((d * WINM) >> 13 == max(i for i in range(4) if WOFF[i] <= d) for d in range(NB))
SBIN = 1342
assert ((N - 1) * SBIN) >> 20 == 31
INC = [1, 2, 4, 8, 19, 37, 86, 169]
POLL_LIMIT = 4000

OPT = dict(NUP=10, ED=5, E0=2, PRE=1, PAIR=1, STAMP=0, FAIR=1, FORCE1=0, FORCE2=0, L0=5, D0=11, HIT=0, CYC=0, RK=7, SORD=0, E1=1, FINE=0)
for kv in sys.argv[2:]:
    k, v = kv.split("=")
    OPT[k] = int(v) if v.lstrip("-").isdigit() else v
NUP = OPT["NUP"]
assert NUP % 2 == 0 and 2 <= NUP <= TCAP

L_LUT2 = 0
L_LUT1 = L_LUT2 + 327 * 16
L_BIN = L_LUT1 + 144
L_MORE, L_FB1, L_FB2, L_SG1, L_SG2, L_FAIR = [L_BIN + o for o in (512, 528, 532, 536, 540, 544)]
L_BST = L_BIN + 576
L_SRC = L_BST + 512
SRC_W = 18 * 64
L_SEL = L_SRC + 4 * SRC_W
SEL_W = 17 * 128
L_AGM = L_SEL + 4 * SEL_W
AGM_W = 17 * 256
L_TMP = L_AGM + 4 * AGM_W
L_RING = (L_TMP + 16384 + 4095) // 4096 * 4096
L_W = L_RING
L_X = L_RING + 65536
L_C = L_RING + 98304
KLDS = L_C + 4096
L_HIST, L_START = L_SRC, L_SRC + 1024
L_TSCR = (L_SEL + 127) // 128 * 128
assert all(x % 16 == 0 for x in (L_LUT1, L_BIN, L_BST, L_SRC, L_SEL, L_AGM, L_TMP)) and KLDS <= 163840
assert L_TMP + 16384 <= 65536 and L_TSCR + 16384 + 128 <= L_TMP

vCELL = 0
vFA, vLC, vIA, vVO, vIX, vSA, vGA, vS0, vG0, vT = 1, 5, 7, 8, 12, 14, 15, 16, 18, 20
MSG, FR, SEL, AOH, ACC, EF, AGG, XA, CW, ID = 24, 32, 48, 56, 64, 128, 192, 224, 240, 248
XF = ACC + 32
tid, vN = vS0, vS0 + 1
vTR = vG0
vWO = vSA
vBIG = MSG + 7
sFLG, sTA = 4, 20
sX, sEA, sOUT, sTAB, sREC, sCELL, sTB = 24, 28, 32, 36, 40, 44, 48
(sW, sWIN, sFH, sRING, sNT, sNW, sR, sMORE, s512, sFT0, sFT1, sNL, sA, sB, sC, sNODE, sROUND, sSGN,
 sN0, sN1, sN2, sN3, sJOB, sWSZ, sWIN0, sWSZ0, sNODE0, sTAG, sHELP) = range(52, 81)
pSRC, pDST, pU, pV, pG, pWS = 8, 10, 12, 14, 16, 18
NST = 10


def srd(a, d, lo, size, off=0):
    if off:
        a(f"s_add_u32 s{d}, s{lo}, {off}")
        a(f"s_addc_u32 s{d+1}, s{lo+1}, 0")
        a(f"s_and_b32 s{d+1}, s{d+1}, 0xffff")
    else:
        a(f"s_mov_b32 s{d}, s{lo}")
        a(f"s_and_b32 s{d+1}, s{lo+1}, 0xffff")
    a(f"s_mov_b32 s{d+2}, {size}")
    a(f"s_mov_b32 s{d+3}, 0x20000")


def scan16(a, v):
    for sh in (1, 2, 4, 8):
        a(f"v_add_u32_dpp v{v}, v{v}, v{v} row_shr:{sh} row_mask:0xf bank_mask:0xf bound_ctrl:1")


def scan64(a, v):
    scan16(a, v)
    a(f"v_add_u32_dpp v{v}, v{v}, v{v} row_bcast:15 row_mask:0xa bank_mask:0xf")
    a(f"v_add_u32_dpp v{v}, v{v}, v{v} row_bcast:31 row_mask:0xc bank_mask:0xf")


def mfma(d, x, y, c):
    cs = "0" if c is None else vr(c, 16)
    return f"v_mfma_f32_32x32x16_bf16 {vr(d, 16)}, {vr(x, 4)}, {vr(y, 4)}, {cs}"


def fstamp(a, grp, k):
    if OPT["STAMP"] and OPT["FINE"] == grp:
        a(f"s_memrealtime s[{82 + 2*k}:{83 + 2*k}]")
        a.lg = [t for t in a.lg if t != "smem"] + ["smem"]


def stamp(a, k):
    if OPT["STAMP"] and (k == 0 or not OPT["FINE"]):
        a(f"s_memrealtime s[{82 + 2*k}:{83 + 2*k}]")
        if OPT["CYC"] and k in (7, 8):
            a(f"s_memtime s[{82 + 2*(k - 6)}:{83 + 2*(k - 6)}]")
        a.lg = [t for t in a.lg if t != "smem"] + ["smem"]


def stamp_store(a):
    a.wait_all()
    srd(a, sTA, pWS, 1 << 20, 0x1000000)
    a(f"s_lshl_b32 s{sA}, s2, 3")
    a(f"s_add_u32 s{sA}, s{sA}, s{sW}")
    a(f"s_lshl_b32 s{sA}, s{sA}, 6")
    a(f"v_mov_b32 v1, s{sA}")
    for k in range(12):
        a(f"v_mov_b32 v{8+k}, s{82+2*min(k, NST - 1)}")
    for q in range(3):
        a(f"buffer_store_dwordx4 {vr(8+4*q,4)}, v1, {sr(sTA,4)}, 0 offen offset:{16*q}")


def lane_id(a, v):
    a(f"v_mbcnt_lo_u32_b32 v{v}, -1, 0")
    a(f"v_mbcnt_hi_u32_b32 v{v}, -1, v{v}")


def wg_sync(a):
    a.wait_all(vm=False)
    a("s_barrier")


def put_flag(a, base, sval, sid):
    lane_id(a, vT)
    a(f"s_lshl_b32 s{sA}, s{sid}, 2")
    a(f"s_add_u32 s{sA}, s{sA}, {base}")
    a(f"v_cmp_gt_u32 vcc, 8, v{vT}")
    a(f"v_lshl_add_u32 v{vT}, v{vT}, 10, s{sA}")
    a(f"v_mov_b32 v{vT+1}, s{sval}")
    a("s_mov_b64 exec, vcc")
    keep = list(a.vm)
    a(f"buffer_store_dword v{vT+1}, v{vT}, {sr(sFLG,4)}, 0 offen sc1")
    a.vm = keep
    a("s_mov_b64 exec, -1")


def poll(a, base, fbaddr, tag, force):
    a(f"s_cmp_lg_u32 s{sW}, 0")
    a(f"s_cbranch_scc1 {tag}_D")
    lane_id(a, vT)
    a(f"s_and_b32 s{sA}, s3, 7")
    a(f"s_lshl_b32 s{sA}, s{sA}, 10")
    a(f"s_add_u32 s{sA}, s{sA}, {base}")
    a(f"v_lshl_add_u32 v{vT}, v{vT}, 4, s{sA}")
    a(f"s_mov_b32 s{sB}, 0")
    keep = list(a.vm)
    a.label(f"{tag}_L")
    a(f"buffer_load_dwordx4 {vr(FR,4)}, v{vT}, {sr(sFLG,4)}, 0 offen sc1")
    a("s_waitcnt vmcnt(0)")
    for j in range(4):
        a(f"v_xor_b32 v{FR+j}, s{sTAG}, v{FR+j}")
    a(f"v_or_b32 v{FR}, v{FR}, v{FR+1}")
    a(f"v_or3_b32 v{FR}, v{FR}, v{FR+2}, v{FR+3}")
    a(f"v_cmp_ne_u32 vcc, 0, v{FR}")
    if not force:
        a(f"s_cbranch_vccz {tag}_D")
    a("s_sleep 2")
    a(f"s_add_u32 s{sB}, s{sB}, 1")
    a(f"s_cmp_lt_u32 s{sB}, {3 if force else POLL_LIMIT}")
    a(f"s_cbranch_scc1 {tag}_L")
    a(f"v_mov_b32 v{vT}, {fbaddr}")
    a(f"v_mov_b32 v{vT+1}, 1")
    a(f"ds_write_b32 v{vT}, v{vT+1}")
    a.vm = keep
    a.label(f"{tag}_D")
    wg_sync(a)
    a(f"v_mov_b32 v{vT+3}, {fbaddr}")
    a(f"ds_read_b32 v{vT+3}, v{vT+3}", "fb")


def init_lists(a, tag, bins):
    for j in range(4):
        a(f"v_mov_b32 v{MSG+j}, 0")
        a(f"v_mov_b32 v{MSG+4+j}, 0x80808080")
    a(f"v_lshlrev_b32 v{vT}, 4, v{tid}")
    tails = []
    regions = [(L_AGM, 4 * AGM_W, MSG), (L_SEL, 4 * SEL_W, MSG + 4), (L_SRC, 4 * SRC_W, MSG)]
    if bins:
        regions.append((L_BIN, 528, MSG))
    for off, n, val in regions:
        for p in range(n // 8192):
            a(f"ds_write_b128 v{vT}, {vr(val,4)} offset:{off + 8192*p}")
        tails.append(((n % 8192) // 16, off + n // 8192 * 8192, val))
    for cnt, off, val in sorted(tails, reverse=True):
        a(f"v_cmp_gt_u32 vcc, {cnt}, v{tid}")
        a("s_mov_b64 exec, vcc")
        a(f"s_cbranch_execz {tag}")
        a(f"ds_write_b128 v{vT}, {vr(val,4)} offset:{off}")
    a.label(tag)
    a("s_mov_b64 exec, -1")


def init_luts(a):
    t0, t1 = vT + 1, vT + 2
    a(f"v_cmp_gt_u32 vcc, 256, v{tid}")
    a("s_mov_b64 exec, vcc")
    a("s_cbranch_execz K_L1")
    a(f"v_and_b32 v{t0}, 15, v{tid}")
    for b in range(4, 8):
        a(f"v_bfe_u32 v{t1}, v{tid}, {b}, 1")
        a(f"s_mov_b32 s{sA}, {INC[b]}")
        a(f"v_mad_u32_u24 v{t0}, v{t1}, s{sA}, v{t0}")
    a(f"v_lshlrev_b32 v{t0}, 4, v{t0}")
    a(f"v_lshl_or_b32 v{t1}, v{tid}, 15, v{tid}")
    for m in range(4):
        a(f"v_and_b32 v{MSG+m}, {0x10001 << (2*m)}, v{t1}")
        a(f"v_mul_u32_u24 v{MSG+m}, {0x3F80 >> (2*m)}, v{MSG+m}")
    a(f"ds_write_b128 v{t0}, {vr(MSG,4)} offset:{L_LUT2}")
    a(f"v_lshrrev_b32 v{t0}, 2, v{tid}")
    a(f"v_and_b32 v{t1}, 3, v{tid}")
    a(f"v_lshrrev_b32 v{MSG+4}, 1, v{t0}")
    a(f"v_cmp_eq_u32 vcc, v{MSG+4}, v{t1}")
    a(f"v_and_b32 v{t0}, 1, v{t0}")
    a(f"v_lshlrev_b32 v{t0}, 4, v{t0}")
    a(f"v_mov_b32 v{t1}, 0x3f80")
    a(f"v_lshlrev_b32 v{t0}, v{t0}, v{t1}")
    a(f"v_cndmask_b32 v{t0}, 0, v{t0}, vcc")
    a(f"v_lshlrev_b32 v{t1}, 2, v{tid}")
    a(f"v_mov_b32 v{MSG+4}, 0")
    a(f"v_cmp_gt_u32 vcc, 144, v{tid}")
    a("s_mov_b64 exec, vcc")
    a("s_cbranch_execz K_L1")
    a(f"ds_write_b32 v{t1}, v{MSG+4} offset:{L_BIN}")
    a(f"v_cmp_gt_u32 vcc, 36, v{tid}")
    a("s_mov_b64 exec, vcc")
    a("s_cbranch_execz K_L1")
    a(f"ds_write_b32 v{t1}, v{t0} offset:{L_LUT1}")
    a.label("K_L1")
    a("s_mov_b64 exec, -1")


def lane_consts(a):
    ln, r, h, z = vT + 3, vT, vT + 1, vT + 2
    lane_id(a, ln)
    a(f"v_and_b32 v{r}, 31, v{ln}")
    a(f"v_lshrrev_b32 v{h}, 5, v{ln}")
    a(f"v_bfe_u32 v{z}, v{ln}, 1, 3")
    a(f"v_xor_b32 v{z}, v{z}, v{h}")
    a(f"v_lshlrev_b32 v{z}, 4, v{z}")
    a(f"v_lshl_add_u32 v{z}, v{r}, 7, v{z}")
    a(f"v_add_u32 v{vFA}, s{sRING}, v{z}")
    for i, c in ((1, 2), (2, 4), (3, 6)):
        a(f"v_xor_b32 v{vFA+i}, {c << 4}, v{vFA}")
    a(f"v_lshrrev_b32 v{z}, 4, v{ln}")
    a(f"v_and_b32 v{vLC}, 7, v{ln}")
    a(f"v_xor_b32 v{vLC}, v{vLC}, v{z}")
    a(f"v_lshlrev_b32 v{vLC}, 4, v{vLC}")
    a(f"v_xor_b32 v{vLC+1}, 64, v{vLC}")
    a(f"v_bfe_u32 v{z}, v{r}, 3, 1")
    a(f"v_and_b32 v{vIX}, 3, v{r}")
    a(f"v_lshl_add_u32 v{z}, v{z}, 2, v{vIX}")
    a(f"v_lshlrev_b32 v{z}, 4, v{z}")
    a(f"v_lshrrev_b32 v{vIX}, 4, v{r}")
    a(f"v_cmp_eq_u32 vcc, v{vIX}, v{h}")
    a(f"v_mov_b32 v{h}, 128")
    a(f"v_cndmask_b32 v{z}, v{h}, v{z}, vcc")
    a(f"v_and_b32 v{r}, 4, v{r}")
    a(f"v_cmp_eq_u32 vcc, 0, v{r}")
    a(f"v_cndmask_b32 v{vIX}, v{h}, v{z}, vcc")
    a(f"v_cndmask_b32 v{vIX+1}, v{z}, v{h}, vcc")


def tr_bases(a):
    ln, r, u = vT + 3, vT, vT + 1
    lane_id(a, ln)
    a(f"v_bfe_u32 v{r}, v{ln}, 2, 2")
    a(f"v_lshrrev_b32 v{u}, 5, v{ln}")
    a(f"v_lshl_add_u32 v{u}, v{u}, 3, v{r}")
    a(f"v_lshlrev_b32 v{vTR}, 8, v{u}")
    a(f"s_lshl_b32 s{sA}, s{sFH}, 1")
    a(f"v_xor_b32 v{r}, s{sA}, v{r}")
    a(f"v_lshl_add_u32 v{vTR}, v{r}, 6, v{vTR}")
    a(f"v_and_b32 v{u}, 1, v{ln}")
    a(f"v_lshl_add_u32 v{vTR}, v{u}, 5, v{vTR}")
    a(f"v_bfe_u32 v{u}, v{ln}, 4, 1")
    a(f"v_lshl_add_u32 v{vTR}, v{u}, 4, v{vTR}")
    a(f"v_bfe_u32 v{u}, v{ln}, 1, 1")
    a(f"v_lshl_add_u32 v{vTR}, v{u}, 3, v{vTR}")
    a(f"v_add_u32 v{vTR}, {L_W}, v{vTR}")
    a(f"v_xor_b32 v{vTR+1}, 64, v{vTR}")


def weight_offset(a):
    q, p = vT, vT + 1
    lane_id(a, p)
    a(f"v_lshrrev_b32 v{q}, 4, v{p}")
    a(f"v_and_b32 v{p}, 15, v{p}")
    a(f"v_lshlrev_b32 v{vWO}, 2, v{q}")
    a(f"v_xor_b32 v{vWO}, v{vWO}, v{p}")
    a(f"v_lshlrev_b32 v{vWO}, 4, v{vWO}")
    a(f"v_lshl_add_u32 v{vWO}, v{q}, 8, v{vWO}")
    a(f"s_lshl_b32 s{sA}, s{sW}, 12")
    a(f"v_add_u32 v{vWO}, s{sA}, v{vWO}")


def stage_matrix(a, ptr, size, row, half, tag):
    srd(a, sTA, ptr, size)
    a(f"s_lshl_b32 s{sA}, s{sW}, 12")
    a(f"s_mov_b32 s{sC}, {row * 256}")
    a(f"s_add_u32 m0, s{sA}, {L_W + 32768 * half}")
    for i in range(4):
        a(f"buffer_load_dwordx4 v{vWO}, {sr(sTA,4)}, s{sC} offen offset:{1024*i} lds", tag)


def stage_weights(a, grow, pother, tag):
    stage_matrix(a, pother, 32768, 0, 1, tag)
    stage_matrix(a, pG, 272 * 256, grow, 0, tag)


def last_wave_flag(a, cnt, base, sid, tag):
    a(f"v_mov_b32 v{vT}, {cnt}")
    a(f"v_mov_b32 v{vT+1}, 1")
    a("s_mov_b64 exec, 1")
    a(f"ds_add_rtn_u32 v{vT+2}, v{vT}, v{vT+1}", "sg")
    a("s_mov_b64 exec, -1")
    a.wait_lg("sg")
    a(f"v_readfirstlane_b32 s{sA}, v{vT+2}")
    a(f"s_cmp_lg_u32 s{sA}, 7")
    a(f"s_cbranch_scc1 {tag}")
    put_flag(a, base, sTAG, sid)
    a.label(tag)


def stage_x(a, snode, tag):
    q, p, b = vT, vT + 1, vT + 2
    a(f"v_mov_b32 v{vBIG}, {BIGOFF}")
    lane_id(a, p)
    a(f"v_lshrrev_b32 v{q}, 4, v{p}")
    a(f"v_and_b32 v{p}, 15, v{p}")
    a(f"s_lshl_b32 s{sA}, s{sFH}, 4")
    a(f"s_add_u32 s{sB}, s{sA}, s{snode}")
    a(f"v_add_lshl_u32 v{b}, v{q}, s{sB}, 8")
    a(f"s_sub_u32 s{sB}, s{sWSZ0}, s{sA}")
    a(f"s_lshl_b32 s{sA}, s{sW}, 12")
    a(f"s_add_u32 m0, s{sA}, {L_X}")
    for i in range(4):
        a(f"v_add_u32 v{vT+3}, {4*i}, v{q}")
        if i >= 2:
            a(f"v_cmp_le_u32 vcc, s{sB}, v{vT+3}")
        a(f"v_xor_b32 v{vT+3}, v{vT+3}, v{p}")
        a(f"v_lshl_add_u32 v{vT+3}, v{vT+3}, 4, v{b}")
        if i >= 2:
            a(f"v_cndmask_b32 v{vT+3}, v{vT+3}, v{vBIG}, vcc")
        a(f"buffer_load_dwordx4 v{vT+3}, {sr(sX,4)}, 0 offen offset:{1024*i} lds", tag)


def read_x(a, swin):
    l, u, b = vT, vT + 1, vT + 2
    lane_id(a, l)
    a(f"v_and_b32 v{u}, 15, v{l}")
    a(f"v_lshrrev_b32 v{b}, 5, v{l}")
    a(f"v_xor_b32 v{u}, v{u}, v{b}")
    a(f"v_lshlrev_b32 v{u}, 4, v{u}")
    a(f"v_and_b32 v{l}, 31, v{l}")
    a(f"v_lshl_add_u32 v{b}, v{l}, 8, v{u}")
    a(f"s_lshl_b32 s{sA}, s{swin}, 13")
    a(f"s_add_u32 s{sA}, s{sA}, {L_X}")
    a(f"v_add_u32 v{b}, s{sA}, v{b}")
    for kk in range(8):
        a(f"v_xor_b32 v{u}, {kk << 5}, v{b}")
        a(f"ds_read_b128 {vr(XF+4*kk,4)}, v{u}", "xf")


def gemm_pair(a, f, d0, d1, w_first, hooks=None):
    hooks = hooks or {}

    def rd(kk):
        for m in range(2):
            for q in range(2):
                a(f"ds_read_b64_tr_b16 {vr(SEL + 8*(kk & 1) + 4*m + 2*q, 2)}, v{vTR+f} "
                  f"offset:{32768*m + (16*kk + 4*q)*256}", f"w{kk}")
    rd(0)
    rd(1)
    for kk in range(8):
        a.wait_lg(f"w{kk}")
        for m, d in enumerate((d0, d1)):
            w = SEL + 8 * (kk & 1) + 4 * m
            x, y = (w, XF + 4*kk) if w_first[m] else (XF + 4*kk, w)
            a(mfma(d, x, y, None if kk == 0 else d))
        if kk + 2 < 8:
            rd(kk + 2)
        if kk in hooks:
            hooks[kk]()


def line_addrs(a, wr, rd, go, sbase, snode, shift, rows, ssub, swsz):
    l, n, h = vT, vT + 1, vT + 2
    lane_id(a, l)
    a(f"v_and_b32 v{n}, {rows - 1}, v{l}")
    a(f"v_lshrrev_b32 v{h}, 5, v{l}")
    a(f"v_lshlrev_b32 v{h}, 1, v{h}")
    a(f"v_and_b32 v{wr}, 7, v{l}")
    a(f"v_xor_b32 v{wr}, v{wr}, v{h}")
    a(f"v_lshlrev_b32 v{wr}, 4, v{wr}")
    a(f"v_lshl_add_u32 v{wr}, v{n}, 7, v{wr}")
    a(f"v_add_u32 v{wr}, s{sbase}, v{wr}")
    for i, c in ((1, 1), (2, 4), (3, 5)):
        a(f"v_xor_b32 v{wr+i}, {c << 4}, v{wr}")
    a(f"v_lshl_add_u32 v{rd}, v{l}, 4, s{sbase}")
    a(f"v_lshrrev_b32 v{n}, 3, v{l}")
    a(f"v_and_b32 v{h}, 7, v{l}")
    a(f"v_xor_b32 v{h}, v{h}, v{n}")
    a(f"v_add_lshl_u32 v{go}, v{n}, s{snode}, {shift}")
    a(f"v_lshl_add_u32 v{go}, v{h}, 4, v{go}")
    a(f"v_add_u32 v{go}, s{ssub}, v{go}")
    a(f"v_add_u32 v{go+1}, {8 << shift}, v{go}")
    a(f"v_add_u32 v{go+2}, {16 << shift}, v{go}")
    a(f"s_sub_u32 s{sA}, s{swsz}, 24")
    a(f"s_lshl_b32 s{sA}, s{sA}, 3")
    a(f"v_cmp_gt_u32 vcc, s{sA}, v{l}")
    a(f"v_add_u32 v{go+3}, {24 << shift}, v{go}")
    a(f"v_mov_b32 v{vBIG}, {BIGOFF}")
    a(f"v_cndmask_b32 v{go+3}, v{vBIG}, v{go+3}, vcc")


T_WR, T_RD, T_LO = MSG, MSG + 4, MSG + 5


def table_setup(a, snode, scratch):
    a(f"s_lshl_b32 s{sC}, s{sW}, 11")
    a(f"s_add_u32 s{sC}, s{sC}, {scratch}")
    line_addrs(a, T_WR, T_RD, vVO, sC, snode, 9, 16, sFT0, sWSZ0)
    a(f"v_mov_b32 v{T_LO}, 0xff7f0000")


def table_part(a, f, pk, before_store=None, hooks=None):
    DB, DV = ACC, ACC + 16
    gemm_pair(a, f, DB, DV, (True, True), hooks)
    a(f"s_mov_b32 s{sB}, 0x7f7f0000")
    for j in range(16):
        a(f"v_mul_f32 v{DB+j}, s{sNL}, v{DB+j}")
    if OPT["PRE"]:
        for m in range(8):
            a(f"v_cvt_pk_bf16_f32 v{pk+8+m}, v{DV+2*m}, v{DV+2*m+1}")
        for m in range(8):
            a(f"v_lshlrev_b32 v{DV+2*m}, 16, v{pk+8+m}")
            a(f"v_and_b32 v{DV+2*m+1}, 0xffff0000, v{pk+8+m}")
    for j in range(16):
        a(f"v_rcp_f32 v{DV+j}, v{DV+j}")
    for m in range(8):
        a(f"v_cvt_pk_bf16_f32 v{pk+m}, v{DB+2*m}, v{DB+2*m+1}")
    for j in range(16):
        a(f"v_med3_f32 v{DV+j}, v{DV+j}, v{T_LO}, s{sB}")
    for m in range(8):
        a(f"v_cvt_pk_bf16_f32 v{pk+8+m}, v{DV+2*m}, v{DV+2*m+1}")
    for hf in range(2):
        a(f"s_mov_b32 exec_lo, {0xffff << (16*hf)}")
        a(f"s_mov_b32 exec_hi, {0xffff << (16*hf)}")
        for i in range(4):
            a(f"ds_write_b128 v{T_WR+i}, {vr(pk+4*i,4)}")
        a("s_mov_b64 exec, -1")
        for i in range(2):
            a(f"ds_read_b128 {vr(ACC+8*hf+4*i,4)}, v{T_RD} offset:{1024*i}", f"lr{hf}")
    if before_store:
        before_store()
    for hf in range(2):
        a.wait_lg(f"lr{hf}")
        for i in range(2):
            a(f"buffer_store_dwordx4 {vr(ACC+8*hf+4*i,4)}, v{vVO+2*hf+i}, {sr(sTAB,4)}, 0 offen offset:{128*f} sc1", "ts")


def edge_weights(a):
    for f in range(2):
        a(f"v_add_u32 v{vT+f}, {L_C - L_W}, v{vTR+f}")
        for q in range(2):
            a(f"ds_read_b64_tr_b16 {vr(CW + 4*f + 2*q, 2)}, v{vT+f} offset:{1024*q}")
    a.wait_all(vm=False)
    for m in range(8):
        a(f"v_lshlrev_b32 v{vT}, 16, v{CW+m}")
        a(f"v_and_b32 v{vT+1}, 0xffff0000, v{CW+m}")
        a(f"v_mul_f32 v{vT}, s{sNL}, v{vT}")
        a(f"v_mul_f32 v{vT+1}, s{sNL}, v{vT+1}")
        a(f"v_cvt_pk_bf16_f32 v{CW+m}, v{vT}, v{vT+1}")


def node_proj(a, hooks0=None, hooks1=None):
    for f in range(2):
        gemm_pair(a, f, ACC + 16 * f, AGG + 16 * f, (False, True), (hooks0, hooks1)[f])
    for f in range(2):
        d = ACC + 16 * f
        for j in range(16):
            a(f"v_mul_f32 v{d+j}, s{sNL}, v{d+j}")
        for m in range(8):
            a(f"v_cvt_pk_bf16_f32 v{XA+8*f+m}, v{d+2*m}, v{d+2*m+1}")


def sort_job(a, shadow, stage1, stage2):
    vD, vS, vB, vR, vK, vH, vO, u0, u1 = EF, EF + 4, EF + 8, EF + 12, EF + 16, EF + 24, EF + 40, EF + 41, EF + 42
    vP = EF + 44

    def first_only(fn, tag):
        a(f"s_cmp_lg_u32 s{sHELP}, 0")
        a(f"s_cbranch_scc1 {tag}")
        fn()
        a.label(tag)
    srd(a, sTA, pDST, E * 4)
    srd(a, sTB, pSRC, E * 4)
    a(f"s_mul_i32 s{sA}, s{sJOB}, {CH * 4}")
    a(f"v_lshl_add_u32 v{vO}, v{tid}, 4, s{sA}")
    a(f"v_mov_b32 v{u0}, {BIGOFF}")
    a(f"v_cmp_gt_u32 vcc, {CH // 4}, v{tid}")
    a(f"v_cndmask_b32 v{vO}, v{u0}, v{vO}, vcc")
    a(f"buffer_load_dwordx4 {vr(vD,4)}, v{vO}, {sr(sTA,4)}, 0 offen", "d")
    a(f"buffer_load_dwordx4 {vr(vS,4)}, v{vO}, {sr(sTB,4)}, 0 offen", "s")
    a(f"v_cmp_gt_u32 vcc, {E * 4}, v{vO}")
    a("s_mov_b64 s[0:1], vcc")
    a(f"v_lshlrev_b32 v{u0}, 2, v{tid}")
    a(f"v_mov_b32 v{u1}, 0")
    a(f"ds_write_b32 v{u0}, v{u1} offset:{L_HIST}")
    a("s_barrier")
    a(f"s_cmp_eq_u32 s{sHELP}, 0")
    a("s_cbranch_scc1 S_FIRST")
    a("s_waitcnt vmcnt(0)")
    a("s_branch S_GO")
    a.label("S_FIRST")
    shadow()
    a.label("S_GO")
    wg_sync(a)
    a(f"s_mov_b32 s{sA}, {DIVB}")
    a(f"s_mov_b32 s{sB}, {WOFFPK}")
    a.wait_vm("d")
    stamp(a, 1)
    fstamp(a, 1, 1)
    for k in range(4):
        a(f"v_mul_u32_u24 v{vB+k}, s{sA}, v{vD+k}")
        a(f"v_lshrrev_b32 v{vB+k}, 20, v{vB+k}")
        a(f"v_mul_u32_u24 v{u0}, {NB}, v{vB+k}")
        a(f"v_sub_u32 v{vD+k}, v{vD+k}, v{u0}")
        a(f"v_lshlrev_b32 v{vB+k}, 2, v{vB+k}")
    a(f"v_mov_b32 v{u1}, 1")
    a("s_mov_b64 exec, s[0:1]")
    a("s_cbranch_execz S_NOH")
    for k in range(4):
        a(f"ds_add_rtn_u32 v{vR+k}, v{vB+k}, v{u1} offset:{L_HIST}")
    a.label("S_NOH")
    a("s_mov_b64 exec, -1")
    a.wait_vm("s")
    first_only(stage1, "S_H1")
    for k in range(4):
        a(f"v_mul_u32_u24 v{u0}, {WINM}, v{vD+k}")
        a(f"v_lshrrev_b32 v{u0}, 13, v{u0}")
        a(f"v_lshlrev_b32 v{u1}, 3, v{u0}")
        a(f"v_bfe_u32 v{u1}, s{sB}, v{u1}, 8")
        a(f"v_sub_u32 v{u1}, v{vD+k}, v{u1}")
        a(f"v_lshl_or_b32 v{vK+2*k}, v{u1}, 15, v{vS+k}")
        a(f"v_mul_u32_u24 v{u1}, {SBIN}, v{vS+k}")
        a(f"v_lshrrev_b32 v{u1}, 20, v{u1}")
        a(f"v_lshl_add_u32 v{u1}, v{u0}, 5, v{u1}")
        a(f"v_lshl_or_b32 v{vK+2*k}, v{u1}, 25, v{vK+2*k}")
        a(f"v_lshlrev_b32 v{vK+2*k+1}, 3, v{vO}")
        a(f"v_add_u32 v{vK+2*k+1}, {32*k}, v{vK+2*k+1}")
    wg_sync(a)
    fstamp(a, 1, 2)
    lane_id(a, u0)
    a(f"v_lshlrev_b32 v{u0}, 4, v{u0}")
    a(f"ds_read_b128 {vr(vH,4)}, v{u0} offset:{L_HIST}")
    a.wait_all(vm=False)
    a(f"v_add_u32 v{vH+4}, v{vH}, v{vH+1}")
    a(f"v_add_u32 v{vH+5}, v{vH+4}, v{vH+2}")
    a(f"v_add_u32 v{vH+6}, v{vH+5}, v{vH+3}")
    a(f"v_mov_b32 v{vH+7}, v{vH+6}")
    scan64(a, vH + 7)
    a(f"v_sub_u32 v{vH+8}, v{vH+7}, v{vH+6}")
    a(f"v_add_u32 v{vH+9}, v{vH+8}, v{vH}")
    a(f"v_add_u32 v{vH+10}, v{vH+8}, v{vH+4}")
    a(f"v_add_u32 v{vH+11}, v{vH+8}, v{vH+5}")
    a(f"ds_write_b128 v{u0}, {vr(vH+8,4)} offset:{L_START}")
    for k in range(4):
        a(f"ds_read_b32 v{vP+k}, v{vB+k} offset:{L_START}")
    first_only(stage2, "S_H2")
    a(f"s_cmp_lg_u32 s{sW}, 7")
    a("s_cbranch_scc1 S_NOC")
    for k in range(4):
        a(f"v_lshl_or_b32 v{vH+12+k}, v{vH+k}, 16, v{vH+8+k}")
    a(f"s_lshl_b32 s{sA}, s{sJOB}, 10")
    a(f"v_add_u32 v{u0}, s{sA}, v{u0}")
    a(f"buffer_store_dwordx4 {vr(vH+12,4)}, v{u0}, {sr(sCELL,4)}, 0 offen sc1")
    a.label("S_NOC")
    a.wait_all(vm=False)
    for k in range(4):
        a(f"v_add_lshl_u32 v{vP+k}, v{vP+k}, v{vR+k}, 3")
    a(f"s_cmp_eq_u32 s{sHELP}, 0")
    a("s_cbranch_scc1 S_PUB")
    a(f"s_mul_i32 s{sA}, s{sJOB}, {RSTR}")
    a(f"s_lshl_b32 s{sB}, s2, 2")
    for k in range(4):
        a(f"v_cmp_eq_u32 vcc, s{sB}, v{vB+k}")
        a(f"v_add_u32 v{vP+k}, s{sA}, v{vP+k}")
        a("s_and_b64 exec, vcc, s[0:1]")
        a(f"s_cbranch_execz S_P{k}")
        a(f"buffer_store_dwordx2 {vr(vK+2*k,2)}, v{vP+k}, {sr(sREC,4)}, 0 offen sc1")
        a.label(f"S_P{k}")
        a("s_mov_b64 exec, -1")
    a("s_waitcnt vmcnt(0)")
    a("s_barrier")
    a("s_branch K_HELP1N")
    a.label("S_PUB")
    a("s_mov_b64 exec, s[0:1]")
    a("s_cbranch_execz S_NOS")
    for k in range(4):
        a(f"ds_write_b64 v{vP+k}, {vr(vK+2*k,2)} offset:{L_TMP}")
    a.label("S_NOS")
    a("s_mov_b64 exec, -1")
    wg_sync(a)
    fstamp(a, 1, 3)
    a(f"v_lshlrev_b32 v{u0}, 4, v{tid}")
    a(f"ds_read_b128 {vr(vD,4)}, v{u0} offset:{L_TMP}", "r0")
    a(f"ds_read_b128 {vr(vS,4)}, v{u0} offset:{L_TMP + 8192}", "r1")
    a(f"s_mul_i32 s{sA}, s{sJOB}, {RSTR}")
    a(f"v_add_u32 v{u0}, s{sA}, v{u0}")
    a(f"v_add_u32 v{u1}, 8192, v{u0}")
    a(f"v_mov_b32 v{vB}, {BIGOFF}")
    a(f"v_cmp_gt_u32 vcc, {(RSTR - 8192) // 16}, v{tid}")
    a(f"v_cndmask_b32 v{u1}, v{vB}, v{u1}, vcc")
    a.wait_lg("r0")
    a(f"buffer_store_dwordx4 {vr(vD,4)}, v{u0}, {sr(sREC,4)}, 0 offen sc1")
    a.wait_lg("r1")
    a(f"buffer_store_dwordx4 {vr(vS,4)}, v{u1}, {sr(sREC,4)}, 0 offen sc1")
    fstamp(a, 1, 4)
    a("s_waitcnt vmcnt(2)")
    a("s_barrier")
    fstamp(a, 1, 5)


def load_records(a, tag):
    a(f"v_lshrrev_b32 v{vN}, 16, v{vCELL}")
    a(f"v_cmp_lt_u32 vcc, s{sR}, v{vN}")
    a(f"s_cmp_lg_u64 vcc, 0")
    a(f"s_cselect_b32 s{sMORE}, 1, 0")
    a(f"v_min_u32 v{vN}, s{sR}, v{vN}")
    a(f"v_and_b32 v{vT}, 0xffff, v{vCELL}")
    a(f"v_lshrrev_b32 v{vT+1}, 1, v{tid}")
    a(f"v_mul_u32_u24 v{vT+1}, {RSTR}, v{vT+1}")
    a(f"v_lshl_add_u32 v{vT}, v{vT}, 3, v{vT+1}")
    for i in range(RMAX // 2):
        a(f"v_cmp_lt_u32 vcc, {2*i}, v{vN}")
        a("s_mov_b64 exec, vcc")
        a(f"s_cbranch_execz {tag}")
        a(f"buffer_load_dwordx4 {vr(EF+4*i,4)}, v{vT}, {sr(sREC,4)}, 0 offen offset:{16*i}")
    a.label(tag)
    a("s_mov_b64 exec, -1")


def e_load(a, i):
    a(f"buffer_load_dwordx4 {vr(EF+4*i,4)}, v{FR+i}, {sr(sEA,4)}, 0 offen", f"eu{i}")


def e_load_late(a, t):
    a(f"buffer_load_dwordx4 {vr(EF+4*t,4)}, v{EF+4*t}, {sr(sEA,4)}, 0 offen", f"e{t}")


def e_exchange_write(a):
    lane_id(a, vT)
    a(f"s_xor_b32 s{sA}, s{sW}, 1")
    a(f"s_mul_i32 s{sA}, s{sA}, 12288")
    a(f"s_add_u32 s{sA}, s{sA}, {L_RING}")
    a(f"v_lshl_add_u32 v{vT}, v{vT}, 4, s{sA}")
    for i in range(NUP // 2):
        a(f"ds_write_b128 v{vT}, {vr(EF+4*i,4)} offset:{1024*i}")


def e_exchange_read(a):
    lane_id(a, vT)
    a(f"v_lshl_add_u32 v{vT}, v{vT}, 4, s{sRING}")
    for i in range(NUP // 2):
        a(f"ds_read_b128 {vr(EF+2*NUP+4*i,4)}, v{vT} offset:{1024*i}")
    a.wait_all(vm=False)
    a(f"s_cmp_eq_u32 s{sFH}, 0")
    a("s_cbranch_scc1 K_NOSWAP")
    for j in range(2 * NUP):
        a(f"v_swap_b32 v{EF+j}, v{EF+2*NUP+j}")
    a.label("K_NOSWAP")


def e_reg(t):
    return EF + 2 * NUP * (t & 1) + 4 * (t >> 1) if t < NUP else EF + 4 * t


def window_regs(a, swin, snode, swsz):
    a(f"s_lshl_b32 s{sA}, s{swin}, 3")
    a(f"s_lshr_b32 s{sC}, {WOFFPK}, s{sA}")
    a(f"s_and_b32 s{sC}, s{sC}, 0xff")
    a(f"s_lshr_b32 s{swsz}, {WSZ[0] | WSZ[1] << 8 | WSZ[2] << 16 | WSZ[3] << 24}, s{sA}")
    a(f"s_and_b32 s{swsz}, s{swsz}, 0xff")
    a(f"s_mul_i32 s{snode}, s2, {NB}")
    a(f"s_add_u32 s{snode}, s{snode}, s{sC}")


def pick_window(a):
    k = [sTA, sTA + 1, sTA + 2, sTA + 3]
    for w in range(4):
        a(f"s_lshl_b32 s{k[w]}, s{sN0+w}, 2")
        a(f"s_or_b32 s{k[w]}, s{k[w]}, {w}")
    for x, y in ((0, 1), (2, 3), (0, 2), (1, 3), (1, 2)):
        a(f"s_max_u32 s{sA}, s{k[x]}, s{k[y]}")
        a(f"s_min_u32 s{k[y]}, s{k[x]}, s{k[y]}")
        a(f"s_mov_b32 s{k[x]}, s{sA}")
    a(f"s_cmp_eq_u32 s{sWIN0}, 1")
    a(f"s_cselect_b32 s{sA}, s{k[1]}, s{k[0]}")
    a(f"s_cmp_eq_u32 s{sWIN0}, 2")
    a(f"s_cselect_b32 s{sA}, s{k[3]}, s{sA}")
    a(f"s_cmp_eq_u32 s{sWIN0}, 3")
    a(f"s_cselect_b32 s{sA}, s{k[2]}, s{sA}")
    a(f"s_and_b32 s{sWIN}, s{sA}, 3")


def list_addrs(a):
    ln, u = vT, vT + 1
    lane_id(a, ln)
    a(f"s_mul_i32 s{sA}, s{sWIN}, {SEL_W}")
    a(f"s_add_u32 s{sA}, s{sA}, {L_SEL}")
    a(f"v_and_b32 v{u}, 31, v{ln}")
    a(f"v_lshl_add_u32 v{vSA}, v{u}, 2, s{sA}")
    a(f"v_lshrrev_b32 v{u}, 5, v{ln}")
    a(f"v_lshl_add_u32 v{vSA}, v{u}, 1, v{vSA}")
    a(f"s_mul_i32 s{sA}, s{sWIN}, {AGM_W}")
    a(f"s_add_u32 s{sA}, s{sA}, {L_AGM}")
    a(f"v_lshl_add_u32 v{vGA}, v{ln}, 2, s{sA}")
    a(f"s_mul_i32 s{sA}, s{sWIN}, {SRC_W}")
    a(f"s_add_u32 s{sA}, s{sA}, {L_SRC}")
    a(f"v_lshrrev_b32 v{u}, 3, v{ln}")
    a(f"v_lshl_add_u32 v{vIA}, v{u}, 3, s{sA}")


def build(a):
    RK = EF + 2 * RMAX
    one = vT + 2
    a(f"v_mov_b32 v{one}, 8")
    a(f"s_cmp_eq_u32 s{sMORE}, 0")
    a(f"s_cbranch_scc1 B_NM")
    a(f"v_mov_b32 v{vT}, {L_MORE}")
    a(f"ds_write_b32 v{vT}, v{one}")
    a.label("B_NM")
    for k in range(RMAX):
        a(f"v_cmp_lt_u32 vcc, {k}, v{vN}")
        a(f"v_lshrrev_b32 v{vT + (k & 1)}, 23, v{EF+2*k}")
        a("s_mov_b64 exec, vcc")
        a(f"s_cbranch_execz B_BD")
        a(f"ds_add_rtn_u32 v{RK+k}, v{vT + (k & 1)}, v{one} offset:{L_BIN}")
    a.label("B_BD")
    a("s_mov_b64 exec, -1")
    wg_sync(a)
    fstamp(a, 2, 6)
    ln = vT + 3
    lane_id(a, ln)
    a(f"v_lshlrev_b32 v{vT}, 3, v{ln}")
    a(f"ds_read_b64 {vr(MSG,2)}, v{vT} offset:{L_BIN}")
    a(f"v_mov_b32 v{MSG+2}, {L_MORE}")
    a(f"ds_read_b32 v{MSG+2}, v{MSG+2}")
    a(f"v_lshrrev_b32 v{ln}, 4, v{ln}")
    a(f"v_lshlrev_b32 v{ln}, 12, v{ln}")
    a(f"v_add_u32 v{ln}, {L_TMP}, v{ln}")
    a.wait_all(vm=False)
    a(f"v_add_u32 v{vT+1}, v{MSG}, v{MSG+1}")
    a(f"v_mov_b32 v{vT+2}, v{vT+1}")
    scan16(a, vT + 2)
    for w in range(4):
        a(f"v_readlane_b32 s{sN0+w}, v{vT+2}, {16*w + 15}")
    a(f"v_readfirstlane_b32 s{sMORE}, v{MSG+2}")
    a(f"v_sub_u32 v{vT+2}, v{vT+2}, v{vT+1}")
    a(f"v_add_u32 v{MSG+4}, v{vT+2}, v{ln}")
    a(f"v_add_u32 v{MSG+5}, v{MSG+4}, v{MSG}")
    a(f"ds_write_b64 v{vT}, {vr(MSG+4,2)} offset:{L_BST}")
    a(f"s_max_u32 s{sA}, s{sN0}, s{sN1}")
    a(f"s_max_u32 s{sB}, s{sN2}, s{sN3}")
    a(f"s_max_u32 s{sA}, s{sA}, s{sB}")
    a(f"s_cmp_gt_u32 s{sA}, {8 * 32 * TCAP}")
    a(f"s_cbranch_scc1 K_OVF")
    for g in range(RMAX // 4):
        a(f"v_cmp_lt_u32 vcc, {4*g}, v{vN}")
        for k in range(4):
            a(f"v_lshrrev_b32 v{MSG+k}, 23, v{EF + 2*(4*g + k)}")
        a("s_mov_b64 exec, vcc")
        a(f"s_cbranch_execz B_CD")
        for k in range(4):
            a(f"ds_read_b32 v{MSG+k}, v{MSG+k} offset:{L_BST}")
        a.wait_all(vm=False)
        for k in range(4):
            r = 4 * g + k
            if k:
                a(f"v_cmp_lt_u32 vcc, {r}, v{vN}")
            a(f"v_add_u32 v{MSG+k}, v{MSG+k}, v{RK+r}")
            if k:
                a("s_mov_b64 exec, vcc")
            a(f"ds_write_b64 v{MSG+k}, {vr(EF+2*r,2)}")
    a.label("B_CD")
    a("s_mov_b64 exec, -1")
    fstamp(a, 2, 8)
    a(f"v_add_u32 v{vCELL}, v{vCELL}, v{vN}")
    a(f"v_lshlrev_b32 v{vT}, 16, v{vN}")
    a(f"v_sub_u32 v{vCELL}, v{vCELL}, v{vT}")
    for w in range(4):
        a(f"s_lshr_b32 s{sN0+w}, s{sN0+w}, 3")
    if OPT["PAIR"]:
        a(f"s_cmp_lg_u32 s{sROUND}, 0")
        a("s_cbranch_scc1 B_KEEP")
        pick_window(a)
        a.label("B_KEEP")
    a(f"s_cmp_eq_u32 s{sWIN}, 1")
    a(f"s_cselect_b32 s{sNW}, s{sN1}, s{sN0}")
    a(f"s_cmp_eq_u32 s{sWIN}, 2")
    a(f"s_cselect_b32 s{sNW}, s{sN2}, s{sNW}")
    a(f"s_cmp_eq_u32 s{sWIN}, 3")
    a(f"s_cselect_b32 s{sNW}, s{sN3}, s{sNW}")
    a(f"s_add_u32 s{sNT}, s{sNW}, 31")
    a(f"s_lshr_b32 s{sNT}, s{sNT}, 5")
    wg_sync(a)
    a.vm = []
    stamp(a, 5)
    fstamp(a, 2, 9)
    ln = vT
    lane_id(a, ln)
    a(f"v_and_b32 v{vT+1}, 31, v{ln}")
    a(f"s_lshl_b32 s{sA}, s{sWIN}, 12")
    a(f"s_add_u32 s{sA}, s{sA}, {L_TMP + 4}")
    a(f"v_lshl_add_u32 v{vT+2}, v{vT+1}, 3, s{sA}")
    a(f"s_lshl_b32 s{sA}, s{sFH}, 8")
    a(f"v_add_u32 v{vT+3}, s{sA}, v{vT+2}")
    for i in range(NUP // 2):
        a(f"ds_read_b32 v{FR+i}, v{vT+3} offset:{512*i}", f"ei{i}")
    for t in range(NUP, TCAP):
        a(f"ds_read_b32 v{EF+4*t}, v{vT+2} offset:{256*t}", f"el{t}")
    a(f"v_lshrrev_b32 v{ln}, 5, v{ln}")
    a(f"v_lshlrev_b32 v{ln}, 4, v{ln}")
    a(f"v_sub_u32 v{vT+1}, s{sNW}, v{vT+1}")
    a(f"s_lshl_b32 s{sA}, s{sFH}, 5")
    a(f"v_subrev_u32 v{vT+3}, s{sA}, v{vT+1}")
    a(f"v_mov_b32 v{vT+2}, {BIGOFF}")
    for i in range(NUP // 2):
        a.wait_lg(f"ei{i}")
        a(f"v_cmp_lt_i32 vcc, {64*i}, v{vT+3}")
        a(f"v_add_u32 v{FR+i}, v{FR+i}, v{ln}")
        a(f"v_cndmask_b32 v{FR+i}, v{vT+2}, v{FR+i}, vcc")
        if i < OPT["E0"]:
            e_load(a, i)
    for t in range(NUP, TCAP):
        a.wait_lg(f"el{t}")
        a(f"v_cmp_lt_i32 vcc, {32*t}, v{vT+1}")
        a(f"v_add_u32 v{EF+4*t}, v{EF+4*t}, v{ln}")
        a(f"v_cndmask_b32 v{EF+4*t}, v{vT+2}, v{EF+4*t}, vcc")


def list_fields(a, tid, tag):
    c0, c1, c2, kv = vT + 1, vT + 2, vT + 3, vIX
    a(f"v_lshlrev_b32 v{c0}, 3, v{tid}")
    for j in range(4):
        a(f"ds_read_b32 v{MSG+j}, v{c0} offset:{L_TMP + 4096*j}")
    a(f"v_and_b32 v{c0}, 7, v{tid}")
    a(f"v_lshlrev_b32 v{c0}, 3, v{c0}")
    a(f"v_bfe_u32 v{c1}, v{tid}, 3, 2")
    a(f"v_lshl_add_u32 v{c0}, v{c1}, 1, v{c0}")
    a(f"v_lshrrev_b32 v{c1}, 5, v{tid}")
    a(f"v_lshl_add_u32 v{c0}, v{c1}, 6, v{c0}")
    a(f"v_lshlrev_b32 v{c1}, 8, v{c1}")
    a(f"v_bfe_u32 v{c2}, v{tid}, 2, 1")
    a(f"v_lshl_add_u32 v{c1}, v{c2}, 7, v{c1}")
    a(f"v_bfe_u32 v{c2}, v{tid}, 3, 1")
    a(f"v_and_b32 v{kv}, 3, v{tid}")
    a(f"v_lshl_add_u32 v{kv}, v{c2}, 2, v{kv}")
    a(f"v_or_b32 v{kv}, 0x0c0c0c00, v{kv}")
    a(f"v_mov_b32 v{kv+1}, {INC[0] | INC[1] << 8 | INC[2] << 16 | INC[3] << 24}")
    a(f"s_mov_b32 s{sA}, {INC[4] | INC[5] << 8 | INC[6] << 16 | INC[7] << 24}")
    a(f"v_perm_b32 v{kv}, s{sA}, v{kv+1}, v{kv}")
    a(f"v_and_b32 v{c2}, 16, v{tid}")
    a(f"v_add_u32 v{c2}, 4, v{c2}")
    a(f"v_lshlrev_b32 v{kv}, v{c2}, v{kv}")
    a(f"v_lshlrev_b32 v{c2}, 2, v{tid}")
    a.wait_all(vm=False)
    for w in range(4):
        a(f"v_cmp_gt_u32 vcc, s{sN0+w}, v{tid}")
        a("s_mov_b64 exec, vcc")
        a(f"s_cbranch_execz {tag}{w}")
        r, d, u = MSG + w, MSG + 4, MSG + 5
        a(f"v_and_b32 v{u}, 0x7fff, v{r}")
        a(f"ds_write_b16 v{c0}, v{u} offset:{L_SRC + w*SRC_W}")
        a(f"v_bfe_u32 v{d}, v{r}, 15, 5")
        a(f"v_lshl_add_u32 v{u}, v{d}, 2, v{c1}")
        a(f"ds_add_u32 v{u}, v{kv} offset:{L_AGM + w*AGM_W}")
        a(f"v_bfe_u32 v{u}, v{d}, 2, 1")
        a(f"v_lshl_add_u32 v{u}, v{u}, 1, v{c2}")
        a(f"v_lshrrev_b32 v{r}, 4, v{d}")
        a(f"v_add_u32 v{u}, v{u}, v{r}")
        a(f"v_and_b32 v{r}, 8, v{d}")
        a(f"v_lshlrev_b32 v{r}, 3, v{r}")
        a(f"v_and_b32 v{d}, 3, v{d}")
        a(f"v_lshl_or_b32 v{r}, v{d}, 4, v{r}")
        a(f"ds_write_b8 v{u}, v{r} offset:{L_SEL + w*SEL_W}")
        a.label(f"{tag}{w}")
        a("s_mov_b64 exec, -1")
    a.wait_all(vm=False)


def valu_stream(base):
    g, h = base, base + 16
    steps = []
    for j in range(20):
        st = []
        if j < 16:
            st.append(f"v_exp_f32 v{g+j}, v{g+j}")
        if 0 <= j - 1 < 16:
            st.append(f"v_fma_f32 v{g+j-1}, v{g+j-1}, v{h+j-1}, v{h+j-1}")
        if 0 <= j - 2 < 16:
            st.append(f"v_rcp_f32 v{g+j-2}, v{g+j-2}")
        if j - 3 >= 1 and (j - 3) % 2 == 1 and j - 3 < 16:
            m = (j - 4) // 2
            st.append(f"v_cvt_pk_bf16_f32 v{MSG+m}, v{g+2*m}, v{g+2*m+1}")
        steps.append(st)
    return steps


def dma_ops(v):
    st = v % 3
    return [(f"s_add_u32 m0, s{sRING}, {st*4096 + i*1024}",
             f"buffer_load_dwordx4 v{vVO+i}, {sr(sTAB,4)}, s{sFT1 if v & 1 else sFT0} offen lds", f"d{v}")
            for i in range(4)]


def issue_dma(a, v):
    ops = dma_ops(v)
    a(ops[0][0])
    for i, (m0w, ld, tg) in enumerate(ops):
        a("s_nop 0")
        a(ld, tg)
        if i + 1 < 4:
            a(ops[i + 1][0])


def voffs(a):
    for i in range(4):
        sel = " op_sel:[1,0,0,0]" if i & 1 else ""
        a(f"v_mad_u32_u16 v{vVO+i}, v{vIX + (i >> 1)}, s{s512}, v{vLC + (i & 1)}{sel}")


def frag_reads(v):
    return [(f"ds_read_b128 {vr(FR+4*i,4)}, v{vFA+i} offset:{(v % 3)*4096}", f"f{v}") for i in range(4)]


def main_mfmas(v):
    t, f = v >> 1, v & 1
    g = ACC + 32 * (v & 1)
    h = g + 16
    return [mfma(g, FR, ID, None), mfma(h, FR + 8, ID, None), mfma(g, FR + 4, ID + 4, g), mfma(h, FR + 12, ID + 4, h),
            mfma(g, e_reg(t), CW + 4*f, g), mfma(g, SEL, XA + 8*f, g), mfma(g, SEL + 4, XA + 8*f + 4, g)]


def agg_mfmas(v):
    d = AGG + 16 * (v & 1)
    return [mfma(d, MSG, AOH, d), mfma(d, MSG + 4, AOH + 4, d)]


def rd_idx(a, t):
    a(f"ds_read_b64 {vr(vIX,2)}, v{vIA} offset:{64*t}", f"ix{t}")


def rd_sel_addr(a, t):
    a(f"ds_read_u8 v{vS0}, v{vSA} offset:{128*t}", f"sa{t}")
    a(f"ds_read_u8 v{vS0+1}, v{vSA} offset:{128*t + 1}", f"sa{t}")


def rd_sel(a, t):
    a.wait_lg(f"sa{t}")
    a(f"ds_read_b128 {vr(SEL,4)}, v{vS0} offset:{L_LUT1}", f"s{t}")
    a(f"ds_read_b128 {vr(SEL+4,4)}, v{vS0+1} offset:{L_LUT1}", f"s{t}")


def rd_agg_addr(a, t):
    a(f"ds_read_u16 v{vG0}, v{vGA} offset:{256*t}", f"ga{t}")
    a(f"ds_read_u16 v{vG0+1}, v{vGA} offset:{256*t + 2}", f"ga{t}")


def rd_agg(a, t):
    a.wait_lg(f"ga{t}")
    a(f"ds_read_b128 {vr(AOH,4)}, v{vG0} offset:{L_LUT2}", f"g{t}")
    a(f"ds_read_b128 {vr(AOH+4,4)}, v{vG0+1} offset:{L_LUT2}", f"g{t}")


def slot(a, u):
    t, f = u >> 1, u & 1
    pre = {j: [] for j in range(20)}
    post = {j: [] for j in range(20)}
    a.wait_all(vm=False)
    if f == 0 and OPT["FAIR"] and t > 0:
        a(f"v_readfirstlane_b32 s{sA}, v{vT+2}")
        post[0].append(lambda: (a(f"s_mul_i32 s{sA}, s{sA}, s{sSGN}"), a("s_setprio 0"), a(f"s_cmp_ge_i32 s{sA}, 0"),
                                a(f"s_cbranch_scc1 F{u}"), a("s_setprio 1"), a.label(f"F{u}")))
    g = agg_mfmas(u - 1) if u > 0 else [None, None]
    m = main_mfmas(u + 1)
    order = [m[0], m[1], g[0], m[2], m[3], g[1], m[4], m[5], m[6]]
    for i, x in enumerate(order):
        if x:
            pre[i].append(lambda x=x: a(x))
    if f == 0 and NUP <= t + OPT["ED"] < TCAP:
        post[9].append(lambda: e_load_late(a, t + OPT["ED"]))
    if f == 1:
        pre[6].insert(0, lambda: a.wait_vm(f"e{t + 1}"))
    L0, D0 = OPT["L0"], OPT["D0"]
    pre[L0].append(lambda: a.wait_vm(f"d{u + 2}"))
    for i, (rd, tg) in enumerate(frag_reads(u + 2)):
        pre[L0 + i].append(lambda rd=rd, tg=tg: a(rd, tg))
    pre[D0].append(lambda: a.wait_lg(f"f{u + 2}"))
    if f == 1:
        pre[0].append(lambda: rd_idx(a, t + 3))
        pre[D0].append(lambda: voffs(a))
    for i, (m0w, ld, tg) in enumerate(dma_ops(u + 5)):
        pre[D0 + i].append(lambda m0w=m0w: a(m0w))
        post[D0 + i].append(lambda ld=ld, tg=tg: a(ld, tg))
    if f == 0:
        pre[1].append(lambda: rd_sel_addr(a, t + 1))
        post[D0].append(lambda: rd_agg(a, t))
        post[D0 + 1].append(lambda: rd_sel(a, t + 1))
    else:
        pre[2].append(lambda: rd_agg_addr(a, t + 1))
        if OPT["FAIR"]:
            post[D0 + 1].append(lambda: a(f"ds_add_rtn_u32 v{vT+2}, v{vT}, v{vT+1}"))
    for j, st in enumerate(valu_stream(ACC + 32 * f)):
        for fn in pre[j]:
            fn()
        for s in st:
            a(s)
        for fn in post[j]:
            fn()


def gen():
    a = Asm()
    a(f"s_cmp_ge_u32 s2, {NWG}")
    a("s_cbranch_scc1 K_END")
    stamp(a, 0)
    a(f"s_load_dwordx2 s[{pWS}:{pWS+1}], s[0:1], 72")
    a(f"s_load_dwordx4 s[{pSRC}:{pSRC+3}], s[0:1], 16")
    a("s_load_dwordx4 s[4:7], s[0:1], 0")
    a(f"s_load_dwordx4 s[{pU}:{pU+3}], s[0:1], 32")
    a(f"s_load_dwordx2 s[{pG}:{pG+1}], s[0:1], 48")
    a(f"s_load_dwordx2 s[{sTA}:{sTA+1}], s[0:1], 56")
    a("s_mov_b32 s3, s2")
    a(f"s_and_b32 s{sA}, s2, 7")
    a(f"s_lshl_b32 s{sA}, s{sA}, 5")
    a("s_lshr_b32 s2, s2, 3")
    a(f"s_add_u32 s2, s2, s{sA}")
    a(f"v_mov_b32 v{tid}, v0")
    a(f"v_lshrrev_b32 v{vT}, 6, v0")
    a(f"s_mov_b32 s{sJOB}, s3")
    a(f"v_readfirstlane_b32 s{sW}, v{vT}")
    a(f"s_mov_b32 s{sHELP}, 0")
    a(f"s_mov_b32 s{sROUND}, 0")
    a(f"s_mov_b32 s{sR}, {RMAX}")
    a(f"s_mov_b32 s{s512}, {0 if OPT['HIT'] else 512}")
    a(f"s_mov_b32 s{sNL}, {NL2E}")
    a(f"s_lshr_b32 s{sWIN0}, s{sW}, 1")
    a(f"s_mov_b32 s{sWIN}, s{sWIN0}")
    a(f"s_and_b32 s{sFH}, s{sW}, 1")
    a(f"s_mul_i32 s{sRING}, s{sW}, 12288")
    a(f"s_add_u32 s{sRING}, s{sRING}, {L_RING}")
    window_regs(a, sWIN0, sNODE0, sWSZ0)
    a(f"s_lshl_b32 s{sFT0}, s{sFH}, 8")
    a(f"s_add_u32 s{sFT1}, s{sFT0}, 128")
    a(f"s_cmp_ge_u32 s{sW}, 4")
    a(f"s_cselect_b32 s{sSGN}, -1, 1")
    a.wait_all(vm=False)
    srd(a, sOUT, sTA, N * 256)
    srd(a, sX, 4, N * 256)
    srd(a, sEA, 6, E * 32)
    srd(a, sCELL, pWS, CELL_SZ, CELL_OFF)
    srd(a, sREC, pWS, REC_SZ, REC_OFF)
    a.label("K_SORT")

    def stage_rows():
        a(f"s_mov_b32 s{sNT}, s{sB}")
        stage_x(a, sNODE0, "st")
        a(f"s_mov_b32 s{sB}, s{sNT}")

    def stage_v():
        stage_matrix(a, pV, 32768, 0, 1, "st")

    def shadow():
        weight_offset(a)
        (stage_v if OPT["SORD"] else stage_rows)()
        a(f"s_add_u32 s{sFLG}, s{pWS}, {FLG_OFF + F_TAG}")
        a(f"s_addc_u32 s{sFLG+1}, s{pWS+1}, 0")
        a(f"s_load_dword s{sTAG}, s[{sFLG}:{sFLG+1}], 0")
        srd(a, sTAB, pWS, TAB_SZ, TAB_OFF)
        init_luts(a)
        lane_consts(a)
        tr_bases(a)
        a.wait_all(vm=False)
        a(f"s_add_u32 s{sTAG}, s{sTAG}, 1")
        srd(a, sFLG, pWS, FLG_SZ, FLG_OFF)

    def stage2():
        stage_matrix(a, pG, 272 * 256, 128, 0, "st")
        a(f"s_cmp_ge_u32 s{sW}, 4")
        a("s_cbranch_scc1 K_NOC")
        a(f"s_mul_i32 s{sA}, s{sW}, 3072")
        a(f"s_sub_u32 s{sC}, 65536, s{sA}")
        a(f"s_lshl_b32 s{sA}, s{sW}, 10")
        a(f"s_add_u32 m0, s{sA}, {L_C}")
        a(f"buffer_load_dwordx4 v{vWO}, {sr(sTA,4)}, s{sC} offen lds")
        a.label("K_NOC")
    sort_job(a, shadow, stage_rows if OPT["SORD"] else stage_v, stage2)
    stamp(a, 2)
    a(f"ds_read_b128 {vr(ID,4)}, v{vIX} offset:{L_LUT1}")
    a(f"ds_read_b128 {vr(ID+4,4)}, v{vIX+1} offset:{L_LUT1}")
    read_x(a, sWIN0)
    edge_weights(a)
    table_setup(a, sNODE0, L_TSCR)
    fstamp(a, 1, 6)
    a.wait_all(lg=False)
    last_wave_flag(a, L_SG1, F_SORT, 3, "K_NOS1")
    fstamp(a, 1, 7)

    def cells():
        fstamp(a, 1, 8)
        poll(a, F_SORT, L_FB1, "P1", OPT["FORCE1"])
        a.wait_lg("fb")
        a(f"v_readfirstlane_b32 s{sA}, v{vT+3}")
        a(f"s_cmp_lg_u32 s{sA}, 0")
        a("s_cbranch_scc1 K_HELP1")
        a.label("K_SORTED")
        stamp(a, 3)
        fstamp(a, 1, 9)
        fstamp(a, 2, 1)
        a(f"s_lshl_b32 s{sA}, s2, 2")
        a(f"v_lshrrev_b32 v{vT}, 1, v{tid}")
        a(f"v_lshl_add_u32 v{vT}, v{vT}, 10, s{sA}")
        a(f"buffer_load_dword v{vCELL}, v{vT}, {sr(sCELL,4)}, 0 offen", "cell")

    table_part(a, 0, XA, cells)

    def records():
        fstamp(a, 2, 2)
        a.wait_vm("cell")
        fstamp(a, 2, 3)
        a(f"v_lshrrev_b32 v{vT}, 16, v{vCELL}")
        a(f"v_add_u32 v{vT+1}, 1, v{vT}")
        a(f"v_lshrrev_b32 v{vT+1}, 1, v{vT+1}")
        a(f"v_sub_u32 v{vT}, v{vT}, v{vT+1}")
        a(f"v_and_b32 v{vCELL}, 0xffff, v{vCELL}")
        a(f"v_and_b32 v{vT+2}, 1, v{tid}")
        a(f"v_cmp_eq_u32 vcc, 1, v{vT+2}")
        a(f"v_mad_u32_u24 v{vCELL}, v{vT+2}, v{vT+1}, v{vCELL}")
        a(f"v_cndmask_b32 v{vT}, v{vT+1}, v{vT}, vcc")
        a(f"v_lshl_or_b32 v{vCELL}, v{vT}, 16, v{vCELL}")
        load_records(a, "K_RL0")
        a.vm = []
    table_part(a, 1, XA, None, {OPT['RK']: records})
    fstamp(a, 2, 4)
    a(f"s_waitcnt vmcnt({len(a.vm)})")
    stamp(a, 4)
    fstamp(a, 2, 5)
    a.label("K_BUILD")
    build(a)
    NE = NUP // 2
    window_regs(a, sWIN, sNODE, sWSZ)
    a(f"s_cmp_lg_u32 s{sROUND}, 0")
    a("s_cbranch_scc1 K_PLAIN")
    vm_branch = list(a.vm)
    init_lists(a, "K_I0", False)
    a(f"s_waitcnt vmcnt({OPT['E0']})")
    last_wave_flag(a, L_SG2, F_TAB, 2, "K_NOS2")
    stage_weights(a, 0, pU, "st2")
    list_addrs(a)
    wg_sync(a)
    list_fields(a, tid, "K_D")
    read_x(a, sWIN)
    ecount = [OPT["E0"]]

    def ehook(n):
        def fn():
            for _ in range(n):
                if ecount[0] < NE:
                    e_load(a, ecount[0])
                    ecount[0] += 1
        return fn
    ehook(OPT["E1"])()
    a.wait_vm("st2")
    a("s_barrier")
    rest = NE - ecount[0]
    hk = lambda n: {0: ehook((n + 1) // 2), 4: ehook(n // 2)}
    node_proj(a, hk((rest + 1) // 2), hk(rest // 2))
    assert ecount[0] == NE
    stamp(a, 6)
    a.wait_all()
    a("s_barrier")
    e_exchange_write(a)
    poll(a, F_TAB, L_FB2, "P2", OPT["FORCE2"])
    a.wait_lg("fb")
    a(f"v_readfirstlane_b32 s{sA}, v{vT+3}")
    a(f"s_cmp_lg_u32 s{sA}, 0")
    a("s_cbranch_scc1 K_HELP2")
    a.label("K_XREAD")
    e_exchange_read(a)
    a.label("K_FILL")
    a.vm = []
    stamp(a, 7)
    a(f"s_cmp_eq_u32 s{sNT}, 0")
    a("s_cbranch_scc1 K_RDONE")
    rd_idx(a, 0)
    rd_sel_addr(a, 0)
    rd_agg_addr(a, 0)
    if OPT["FAIR"]:
        a(f"s_and_b32 s{sA}, s{sW}, 3")
        a(f"s_lshl_b32 s{sA}, s{sA}, 2")
        a(f"s_add_u32 s{sA}, s{sA}, {L_FAIR}")
        a(f"v_mov_b32 v{vT}, s{sA}")
        lane_id(a, vT + 2)
        a(f"v_cmp_eq_u32 vcc, 0, v{vT+2}")
        a(f"v_mov_b32 v{vT+1}, s{sSGN}")
        a(f"v_lshlrev_b32 v{vT+2}, 2, v{vT+2}")
        a(f"v_cndmask_b32 v{vT+1}, 0, v{vT+1}, vcc")
        a(f"v_cndmask_b32 v{vT}, v{vT+2}, v{vT}, vcc")
    a.wait_lg("ix0")
    voffs(a)
    rd_idx(a, 1)
    issue_dma(a, 0)
    issue_dma(a, 1)
    rd_sel(a, 0)
    a.wait_lg("ix1")
    voffs(a)
    issue_dma(a, 2)
    for t in range(NUP, TCAP):
        if t - OPT["ED"] < 0:
            e_load_late(a, t)
    rd_idx(a, 2)
    a.wait_vm("d0")
    for rd, tg in frag_reads(0):
        a(rd, tg)
    a.wait_all(vm=False)
    issue_dma(a, 3)
    mm = main_mfmas(0)
    for m in mm[:4]:
        a(m)
    a.wait_vm("d1")
    for rd, tg in frag_reads(1):
        a(rd, tg)
    for m in mm[4:]:
        a(m)
    a.wait_all(vm=False)
    voffs(a)
    issue_dma(a, 4)
    for u in range(2 * TCAP - 1):
        slot(a, u)
        if u % 2 == 0 and u < 2 * TCAP - 2:
            a(f"s_cmp_le_u32 s{sNT}, {u // 2 + 1}")
            a("s_cbranch_scc1 K_DRAIN")
    a.label("K_DRAIN")
    a("s_nop 3")
    a.wait_all(vm=False)
    for m in agg_mfmas(0):
        a(m)
    for st in valu_stream(ACC + 32):
        for s in st:
            a(s)
    for m in agg_mfmas(1):
        a(m)
    a.label("K_RDONE")
    stamp(a, 8)
    a(f"s_cmp_lg_u32 s{sMORE}, 0")
    a("s_cbranch_scc1 K_ROUND")
    wr, rd, go = MSG, MSG + 4, vVO
    a(f"s_lshl_b32 s{sC}, s{sFH}, 7")
    line_addrs(a, wr, rd, go, sRING, sNODE, 8, 32, sC, sWSZ)
    for f in range(2):
        g, w = AGG + 16 * f, ACC + 16 * f
        for j in range(16):
            a(f"v_mul_f32 v{w+j}, s{sNL}, v{g+j}")
        for j in range(16):
            a(f"v_exp_f32 v{w+j}, v{w+j}")
        for j in range(16):
            a(f"v_add_f32 v{w+j}, 1.0, v{w+j}")
        for j in range(16):
            a(f"v_rcp_f32 v{w+j}, v{w+j}")
        for j in range(16):
            a(f"v_mul_f32 v{w+j}, v{w+j}, v{g+j}")
        for m in range(8):
            a(f"v_cvt_pk_bf16_f32 v{ACC+32+8*f+m}, v{w+2*m}, v{w+2*m+1}")
    a.wait_all()
    for i in range(4):
        a(f"ds_write_b128 v{wr+i}, {vr(ACC+32+4*i,4)}")
    for i in range(4):
        a(f"ds_read_b128 {vr(ACC+4*i,4)}, v{rd} offset:{1024*i}", f"or{i}")
    for i in range(4):
        a.wait_lg(f"or{i}")
        a(f"buffer_store_dwordx4 {vr(ACC+4*i,4)}, v{go+i}, {sr(sOUT,4)}, 0 offen sc1")
    a(f"s_cmp_lg_u32 s{sW}, 0")
    a("s_cbranch_scc1 K_FIN")
    a(f"s_cmp_eq_u32 s{sHELP}, 0")
    a("s_cbranch_scc1 K_NOWD")
    a(f"s_sub_u32 s{sB}, s{sTAG}, 1")
    put_flag(a, F_SORT, sB, 3)
    put_flag(a, F_TAB, sB, 2)
    a.label("K_NOWD")
    a("s_cmp_lg_u32 s3, 0")
    a("s_cbranch_scc1 K_FIN")
    a(f"v_mov_b32 v{vT}, {F_TAG}")
    a(f"v_mov_b32 v{vT+1}, s{sTAG}")
    a("s_mov_b64 exec, 1")
    a(f"buffer_store_dword v{vT+1}, v{vT}, {sr(sFLG,4)}, 0 offen sc1")
    a("s_mov_b64 exec, -1")
    a.label("K_FIN")
    if OPT["STAMP"]:
        stamp(a, 9)
        stamp_store(a)
    a.label("K_END")
    a("s_endpgm")

    a.label("K_PLAIN")
    a.vm = list(vm_branch)
    for i in range(OPT["E0"], NE):
        e_load(a, i)
    list_fields(a, tid, "K_P")
    a.wait_all()
    e_exchange_write(a)
    wg_sync(a)
    a("s_branch K_XREAD")

    a.label("K_OVF")
    a(f"s_mov_b32 s{sR}, 1")
    a("s_branch K_AGAIN")
    a.label("K_ROUND")
    a(f"s_mov_b32 s{sROUND}, 1")
    a.label("K_AGAIN")
    a("s_setprio 0")
    a("s_nop 7")
    a.wait_all()
    a("s_barrier")
    lane_id(a, tid)
    a(f"s_lshl_b32 s{sA}, s{sW}, 6")
    a(f"v_add_u32 v{tid}, s{sA}, v{tid}")
    load_records(a, "K_RL1")
    init_lists(a, "K_I1", True)
    a.wait_all()
    a("s_barrier")
    a("s_branch K_BUILD")

    a.label("K_HELP1")
    a(f"s_mov_b32 s{sHELP}, 1")
    a(f"s_mov_b32 s{sJOB}, 0")
    a.wait_all()
    srd(a, sREC, pWS, REC_SZ, REC2_OFF)
    a("s_branch K_SORT")
    a.label("K_HELP1N")
    a(f"s_add_u32 s{sJOB}, s{sJOB}, 1")
    a(f"s_cmp_lt_u32 s{sJOB}, {NWG}")
    a("s_cbranch_scc1 K_SORT")
    a("s_branch K_SORTED")

    a.label("K_HELP2")
    a(f"s_mov_b32 s{sHELP}, 1")
    a.wait_all()
    a(f"v_mov_b32 v{vG0 - 1}, v{vSA}")
    weight_offset(a)
    stage_weights(a, 128, pV, "h")
    a(f"v_mov_b32 v{vSA}, v{vG0 - 1}")
    a(f"s_mov_b32 s{sJOB}, 0")
    a.label("K_HJOB")
    a(f"s_lshl_b32 s{sA}, s{sWIN0}, 3")
    a(f"s_lshr_b32 s0, {WOFFPK}, s{sA}")
    a(f"s_and_b32 s0, s0, 0xff")
    a(f"s_mul_i32 s{sA}, s{sJOB}, {NB}")
    a(f"s_add_u32 s0, s0, s{sA}")
    stage_x(a, 0, "h")
    a.wait_all()
    a("s_barrier")
    read_x(a, sWIN0)
    wg_sync(a)
    table_setup(a, 0, L_X)
    table_part(a, 0, FR)
    table_part(a, 1, FR)
    a.wait_all()
    a("s_barrier")
    a(f"s_add_u32 s{sJOB}, s{sJOB}, 1")
    a(f"s_cmp_lt_u32 s{sJOB}, {NWG}")
    a("s_cbranch_scc1 K_HJOB")
    e_exchange_write(a)
    wg_sync(a)
    a("s_branch K_XREAD")
    return a


def main():
    k = gen()
    text = k.text()
    ref = open(f"cdna_kernels/{NAME}.s.ref").read().split("; Override launch")[0]
    out = ref + f"; @launch grid=({NWG},1,1) block=(512,1,1) lds={KLDS}\n"
    out += '.amdgcn_target "amdgcn-amd-amdhsa--gfx950"\n.text\n'
    out += f".globl {NAME}_kernel\n.p2align 8\n.type {NAME}_kernel,@function\n{NAME}_kernel:\n{text}"
    out += f""".section .rodata,"a"
.p2align 6
.amdhsa_kernel {NAME}_kernel
  .amdhsa_next_free_vgpr 256
  .amdhsa_next_free_sgpr 102
  .amdhsa_accum_offset 256
  .amdhsa_group_segment_fixed_size 0
  .amdhsa_kernarg_size 80
  .amdhsa_user_sgpr_count 2
  .amdhsa_user_sgpr_kernarg_segment_ptr 1
  .amdhsa_system_sgpr_workgroup_id_x 1
.end_amdhsa_kernel
"""
    open(sys.argv[1], "w").write(out)
    print(f"lds {KLDS} nops {k.nops}; lines {out.count(chr(10))}")


if __name__ == "__main__":
    main()
```

```python
import os
import sys
sys.path.insert(0, os.path.dirname(os.path.abspath(__file__)))
from asmlib import Asm, vr, sr

NAME = "standalone__edge_featured_mpnn_egc__graph"
N, E, D = 25000, 400000, 128
NWG = 256
CH = 1564
RSTR = 12544
NB = 98
WOFF = [0, 25, 49, 73]
WSZ = [25, 24, 24, 25]
RMAX = 12
assert NWG * CH >= E and CH % 4 == 0 and CH * 8 <= RSTR and NWG * NB >= N
TAB_OFF, TAB_SZ = 0, N * 512
REC_OFF, REC_SZ = 0xC40000, NWG * RSTR
CELL_OFF, CELL_SZ = 0xF80000, NWG * 1024
FLG_OFF, FLG_SZ = 0xFC0000, 16384 + 128
REC2_OFF = 0x1400000
F_SORT, F_TAB, F_TAG = 0, 8192, 16384
assert REC_OFF + REC_SZ <= CELL_OFF and CELL_OFF + CELL_SZ <= FLG_OFF
NL2E = 0xBFB8AA3B
BIGOFF = 0x7FFFFF00
DIVB = 10700
assert all((d * DIVB) >> 20 == d // NB for d in range(N))
WOFFPK = WOFF[0] | WOFF[1] << 8 | WOFF[2] << 16 | WOFF[3] << 24
WINM = 337
assert all((d * WINM) >> 13 == max(i for i in range(4) if WOFF[i] <= d) for d in range(NB))
SBIN = 1342
assert ((N - 1) * SBIN) >> 20 == 31
POLL_LIMIT = 4000

OPT = dict(NS=3, LAG=1, NUP=8, ED=3, OST="sc1", E0=1, PRE=0, PAIR=1, STAMP=0, FAIR=1, FORCE1=0, FORCE2=0, L0=5, D0=11, HIT=0, CYC=0, RK=1, SORD=0, E1=1, FINE=0, CUT=0)
for kv in sys.argv[2:]:
    k, v = kv.split("=")
    OPT[k] = int(v) if v.lstrip("-").isdigit() else v
NS = OPT["NS"]
TCAP = 16 if NS == 3 else 15
INC = [1, 2, 4, 8, 19, 37, 86, 169] if NS == 3 else [1 << b for b in range(8)]
RW = NS * 4096
AH = NS - OPT["LAG"]
NUP = OPT["NUP"]
assert NUP % 2 == 0 and 2 <= NUP <= TCAP

L_LUT2 = 0
L_LUT1 = L_LUT2 + (sum(INC) + 1) * 16
L_BIN = L_LUT1 + 144
L_MORE, L_FB1, L_FB2, L_SG1, L_SG2, L_FAIR = [L_BIN + o for o in (512, 528, 532, 536, 540, 544)]
L_BST = L_BIN + 576
L_SRC = L_BST + 512
SRC_W = (TCAP + 2) * 64
L_SEL = L_SRC + 4 * SRC_W
SEL_W = TCAP * 128
L_AGM = L_SEL + 4 * SEL_W
AGM_W = TCAP * 256
L_END = L_AGM + 4 * AGM_W
if NS == 3:
    L_TMP = L_END
    L_RING = (L_TMP + 16384 + 4095) // 4096 * 4096
    L_W, L_X, L_C = L_RING, L_RING + 65536, L_RING + 98304
    KLDS = L_C + 4096
else:
    L_RING = 32768
    L_TMP, L_C, L_W, L_X = L_RING, L_RING + 16384, L_RING + 32768, L_RING + 98304
    KLDS = L_RING + 8 * RW
    assert L_END <= L_RING
L_HIST, L_START = L_SRC, L_SRC + 1024
L_TSCR = (L_SEL + 127) // 128 * 128
assert all(x % 16 == 0 for x in (L_LUT1, L_BIN, L_BST, L_SRC, L_SEL, L_AGM, L_TMP)) and KLDS <= 163840
assert L_TMP + 16384 <= 65536 and L_TSCR + 32768 <= L_TMP + 16384

vCELL = 0
vFA, vLC, vIA, vVO, vIX, vSA, vGA, vS0, vG0, vT = 1, 5, 7, 8, 12, 14, 15, 16, 18, 20
MSG, FR, SEL, AOH, ACC, EF, AGG, XA, CW, ID = 24, 32, 48, 56, 64, 128, 192, 224, 240, 248
XF = ACC + 32
tid, vN = vS0, vS0 + 1
vTR = vG0
vWO = vSA
vBIG = MSG + 7
sFLG, sTA = 4, 20
sX, sEA, sOUT, sTAB, sREC, sCELL, sTB = 24, 28, 32, 36, 40, 44, 48
(sW, sWIN, sFH, sRING, sNT, sNW, sR, sMORE, s512, sFT0, sFT1, sNL, sA, sB, sC, sNODE, sROUND, sSGN,
 sN0, sN1, sN2, sN3, sJOB, sWSZ, sWIN0, sWSZ0, sNODE0, sTAG, sHELP, sPAR) = range(52, 82)
pSRC, pDST, pU, pV, pG, pWS = 8, 10, 12, 14, 16, 18
NST = 10


def srd(a, d, lo, size, off=0):
    if off:
        a(f"s_add_u32 s{d}, s{lo}, {off}")
        a(f"s_addc_u32 s{d+1}, s{lo+1}, 0")
        a(f"s_and_b32 s{d+1}, s{d+1}, 0xffff")
    else:
        a(f"s_mov_b32 s{d}, s{lo}")
        a(f"s_and_b32 s{d+1}, s{lo+1}, 0xffff")
    a(f"s_mov_b32 s{d+2}, {size}")
    a(f"s_mov_b32 s{d+3}, 0x20000")


def scan16(a, v):
    for sh in (1, 2, 4, 8):
        a(f"v_add_u32_dpp v{v}, v{v}, v{v} row_shr:{sh} row_mask:0xf bank_mask:0xf bound_ctrl:1")


def scan64(a, v):
    scan16(a, v)
    a(f"v_add_u32_dpp v{v}, v{v}, v{v} row_bcast:15 row_mask:0xa bank_mask:0xf")
    a(f"v_add_u32_dpp v{v}, v{v}, v{v} row_bcast:31 row_mask:0xc bank_mask:0xf")


def mfma(d, x, y, c):
    cs = "0" if c is None else vr(c, 16)
    return f"v_mfma_f32_32x32x16_bf16 {vr(d, 16)}, {vr(x, 4)}, {vr(y, 4)}, {cs}"


def fstamp(a, grp, k):
    if OPT["STAMP"] and OPT["FINE"] == grp:
        a(f"s_memrealtime s[{82 + 2*k}:{83 + 2*k}]")
        a.lg = [t for t in a.lg if t != "smem"] + ["smem"]


def stamp(a, k):
    if OPT["STAMP"] and (k == 0 or not OPT["FINE"]):
        a(f"s_memrealtime s[{82 + 2*k}:{83 + 2*k}]")
        if OPT["CYC"] and k in (7, 8):
            a(f"s_memtime s[{82 + 2*(k - 6)}:{83 + 2*(k - 6)}]")
        a.lg = [t for t in a.lg if t != "smem"] + ["smem"]


def stamp_store(a):
    a.wait_all()
    srd(a, sTA, pWS, 1 << 20, 0x1000000)
    a(f"s_lshl_b32 s{sA}, s2, 3")
    a(f"s_add_u32 s{sA}, s{sA}, s{sW}")
    a(f"s_lshl_b32 s{sA}, s{sA}, 6")
    a(f"v_mov_b32 v1, s{sA}")
    for k in range(12):
        a(f"v_mov_b32 v{8+k}, s{82+2*min(k, NST - 1)}")
    for q in range(3):
        a(f"buffer_store_dwordx4 {vr(8+4*q,4)}, v1, {sr(sTA,4)}, 0 offen offset:{16*q}")


def lane_id(a, v):
    a(f"v_mbcnt_lo_u32_b32 v{v}, -1, 0")
    a(f"v_mbcnt_hi_u32_b32 v{v}, -1, v{v}")


def wg_sync(a):
    a.wait_all(vm=False)
    a("s_barrier")


def put_flag(a, base, sval, sid):
    lane_id(a, vT)
    a(f"s_lshl_b32 s{sA}, s{sid}, 2")
    a(f"s_add_u32 s{sA}, s{sA}, {base}")
    a(f"v_cmp_gt_u32 vcc, 8, v{vT}")
    a(f"v_lshl_add_u32 v{vT}, v{vT}, 10, s{sA}")
    a(f"v_mov_b32 v{vT+1}, s{sval}")
    a("s_mov_b64 exec, vcc")
    keep = list(a.vm)
    a(f"buffer_store_dword v{vT+1}, v{vT}, {sr(sFLG,4)}, 0 offen sc1")
    a.vm = keep
    a("s_mov_b64 exec, -1")


def poll(a, base, fbaddr, tag, force):
    a(f"s_cmp_lg_u32 s{sW}, 0")
    a(f"s_cbranch_scc1 {tag}_D")
    lane_id(a, vT)
    a(f"s_and_b32 s{sA}, s3, 7")
    a(f"s_lshl_b32 s{sA}, s{sA}, 10")
    a(f"s_add_u32 s{sA}, s{sA}, {base}")
    a(f"v_lshl_add_u32 v{vT}, v{vT}, 4, s{sA}")
    a(f"s_mov_b32 s{sB}, 0")
    keep = list(a.vm)
    a.label(f"{tag}_L")
    a(f"buffer_load_dwordx4 {vr(FR,4)}, v{vT}, {sr(sFLG,4)}, 0 offen sc1")
    a("s_waitcnt vmcnt(0)")
    for j in range(4):
        a(f"v_xor_b32 v{FR+j}, s{sTAG}, v{FR+j}")
    a(f"v_or_b32 v{FR}, v{FR}, v{FR+1}")
    a(f"v_or3_b32 v{FR}, v{FR}, v{FR+2}, v{FR+3}")
    a(f"v_cmp_ne_u32 vcc, 0, v{FR}")
    if not force:
        a(f"s_cbranch_vccz {tag}_D")
    a("s_sleep 2")
    a(f"s_add_u32 s{sB}, s{sB}, 1")
    a(f"s_cmp_lt_u32 s{sB}, {3 if force else POLL_LIMIT}")
    a(f"s_cbranch_scc1 {tag}_L")
    a(f"v_mov_b32 v{vT}, {fbaddr}")
    a(f"v_mov_b32 v{vT+1}, 1")
    a(f"ds_write_b32 v{vT}, v{vT+1}")
    a.vm = keep
    a.label(f"{tag}_D")
    wg_sync(a)
    a(f"v_mov_b32 v{vT+3}, {fbaddr}")
    a(f"ds_read_b32 v{vT+3}, v{vT+3}", "fb")


def init_lists(a, tag, bins):
    for j in range(4):
        a(f"v_mov_b32 v{MSG+j}, 0")
        a(f"v_mov_b32 v{MSG+4+j}, 0x80808080")
    a(f"v_lshlrev_b32 v{vT}, 4, v{tid}")
    tails = []
    regions = [(L_AGM, 4 * AGM_W, MSG), (L_SEL, 4 * SEL_W, MSG + 4), (L_SRC, 4 * SRC_W, MSG)]
    if bins:
        regions.append((L_BIN, 528, MSG))
    for off, n, val in regions:
        for p in range(n // 8192):
            a(f"ds_write_b128 v{vT}, {vr(val,4)} offset:{off + 8192*p}")
        tails.append(((n % 8192) // 16, off + n // 8192 * 8192, val))
    for cnt, off, val in sorted(tails, reverse=True):
        a(f"v_cmp_gt_u32 vcc, {cnt}, v{tid}")
        a("s_mov_b64 exec, vcc")
        a(f"s_cbranch_execz {tag}")
        a(f"ds_write_b128 v{vT}, {vr(val,4)} offset:{off}")
    a.label(tag)
    a("s_mov_b64 exec, -1")


def init_luts(a):
    t0, t1 = vT + 1, vT + 2
    a(f"v_cmp_gt_u32 vcc, 256, v{tid}")
    a("s_mov_b64 exec, vcc")
    a("s_cbranch_execz K_L1")
    a(f"v_and_b32 v{t0}, 15, v{tid}")
    for b in range(4, 8):
        a(f"v_bfe_u32 v{t1}, v{tid}, {b}, 1")
        a(f"s_mov_b32 s{sA}, {INC[b]}")
        a(f"v_mad_u32_u24 v{t0}, v{t1}, s{sA}, v{t0}")
    a(f"v_lshlrev_b32 v{t0}, 4, v{t0}")
    a(f"v_lshl_or_b32 v{t1}, v{tid}, 15, v{tid}")
    for m in range(4):
        a(f"v_and_b32 v{MSG+m}, {0x10001 << (2*m)}, v{t1}")
        a(f"v_mul_u32_u24 v{MSG+m}, {0x3F80 >> (2*m)}, v{MSG+m}")
    a(f"ds_write_b128 v{t0}, {vr(MSG,4)} offset:{L_LUT2}")
    a(f"v_lshrrev_b32 v{t0}, 2, v{tid}")
    a(f"v_and_b32 v{t1}, 3, v{tid}")
    a(f"v_lshrrev_b32 v{MSG+4}, 1, v{t0}")
    a(f"v_cmp_eq_u32 vcc, v{MSG+4}, v{t1}")
    a(f"v_and_b32 v{t0}, 1, v{t0}")
    a(f"v_lshlrev_b32 v{t0}, 4, v{t0}")
    a(f"v_mov_b32 v{t1}, 0x3f80")
    a(f"v_lshlrev_b32 v{t0}, v{t0}, v{t1}")
    a(f"v_cndmask_b32 v{t0}, 0, v{t0}, vcc")
    a(f"v_lshlrev_b32 v{t1}, 2, v{tid}")
    a(f"v_mov_b32 v{MSG+4}, 0")
    a(f"v_cmp_gt_u32 vcc, 144, v{tid}")
    a("s_mov_b64 exec, vcc")
    a("s_cbranch_execz K_L1")
    a(f"ds_write_b32 v{t1}, v{MSG+4} offset:{L_BIN}")
    a(f"v_cmp_gt_u32 vcc, 36, v{tid}")
    a("s_mov_b64 exec, vcc")
    a("s_cbranch_execz K_L1")
    a(f"ds_write_b32 v{t1}, v{t0} offset:{L_LUT1}")
    a.label("K_L1")
    a("s_mov_b64 exec, -1")


def lane_consts(a):
    ln, r, h, z = vT + 3, vT, vT + 1, vT + 2
    lane_id(a, ln)
    a(f"v_and_b32 v{r}, 31, v{ln}")
    a(f"v_lshrrev_b32 v{h}, 5, v{ln}")
    a(f"v_bfe_u32 v{z}, v{ln}, 1, 3")
    a(f"v_xor_b32 v{z}, v{z}, v{h}")
    a(f"v_lshlrev_b32 v{z}, 4, v{z}")
    a(f"v_lshl_add_u32 v{z}, v{r}, 7, v{z}")
    a(f"v_add_u32 v{vFA}, s{sRING}, v{z}")
    for i, c in ((1, 2), (2, 4), (3, 6)):
        a(f"v_xor_b32 v{vFA+i}, {c << 4}, v{vFA}")
    a(f"v_lshrrev_b32 v{z}, 4, v{ln}")
    a(f"v_and_b32 v{vLC}, 7, v{ln}")
    a(f"v_xor_b32 v{vLC}, v{vLC}, v{z}")
    a(f"v_lshlrev_b32 v{vLC}, 4, v{vLC}")
    a(f"v_xor_b32 v{vLC+1}, 64, v{vLC}")
    a(f"v_bfe_u32 v{z}, v{r}, 3, 1")
    a(f"v_and_b32 v{vIX}, 3, v{r}")
    a(f"v_lshl_add_u32 v{z}, v{z}, 2, v{vIX}")
    a(f"v_lshlrev_b32 v{z}, 4, v{z}")
    a(f"v_lshrrev_b32 v{vIX}, 4, v{r}")
    a(f"v_cmp_eq_u32 vcc, v{vIX}, v{h}")
    a(f"v_mov_b32 v{h}, 128")
    a(f"v_cndmask_b32 v{z}, v{h}, v{z}, vcc")
    a(f"v_and_b32 v{r}, 4, v{r}")
    a(f"v_cmp_eq_u32 vcc, 0, v{r}")
    a(f"v_cndmask_b32 v{vIX}, v{h}, v{z}, vcc")
    a(f"v_cndmask_b32 v{vIX+1}, v{z}, v{h}, vcc")


def tr_bases(a):
    ln, r, u = vT + 3, vT, vT + 1
    lane_id(a, ln)
    a(f"v_bfe_u32 v{r}, v{ln}, 2, 2")
    a(f"v_lshrrev_b32 v{u}, 5, v{ln}")
    a(f"v_lshl_add_u32 v{u}, v{u}, 3, v{r}")
    a(f"v_lshlrev_b32 v{vTR}, 8, v{u}")
    a(f"s_lshl_b32 s{sA}, s{sFH}, 1")
    a(f"v_xor_b32 v{r}, s{sA}, v{r}")
    a(f"v_lshl_add_u32 v{vTR}, v{r}, 6, v{vTR}")
    a(f"v_and_b32 v{u}, 1, v{ln}")
    a(f"v_lshl_add_u32 v{vTR}, v{u}, 5, v{vTR}")
    a(f"v_bfe_u32 v{u}, v{ln}, 4, 1")
    a(f"v_lshl_add_u32 v{vTR}, v{u}, 4, v{vTR}")
    a(f"v_bfe_u32 v{u}, v{ln}, 1, 1")
    a(f"v_lshl_add_u32 v{vTR}, v{u}, 3, v{vTR}")
    a(f"v_add_u32 v{vTR}, {L_W}, v{vTR}")
    a(f"v_xor_b32 v{vTR+1}, 64, v{vTR}")


def weight_offset(a):
    q, p = vT, vT + 1
    lane_id(a, p)
    a(f"v_lshrrev_b32 v{q}, 4, v{p}")
    a(f"v_and_b32 v{p}, 15, v{p}")
    a(f"v_lshlrev_b32 v{vWO}, 2, v{q}")
    a(f"v_xor_b32 v{vWO}, v{vWO}, v{p}")
    a(f"v_lshlrev_b32 v{vWO}, 4, v{vWO}")
    a(f"v_lshl_add_u32 v{vWO}, v{q}, 8, v{vWO}")
    a(f"s_lshl_b32 s{sA}, s{sW}, 12")
    a(f"v_add_u32 v{vWO}, s{sA}, v{vWO}")


def stage_matrix(a, ptr, size, row, half, tag):
    srd(a, sTA, ptr, size)
    a(f"s_lshl_b32 s{sA}, s{sW}, 12")
    a(f"s_mov_b32 s{sC}, {row * 256}")
    a(f"s_add_u32 m0, s{sA}, {L_W + 32768 * half}")
    for i in range(4):
        a(f"buffer_load_dwordx4 v{vWO}, {sr(sTA,4)}, s{sC} offen offset:{1024*i} lds", tag)


def stage_weights(a, grow, pother, tag):
    stage_matrix(a, pother, 32768, 0, 1, tag)
    stage_matrix(a, pG, 272 * 256, grow, 0, tag)


def last_wave_flag(a, cnt, base, sid, tag):
    a(f"v_mov_b32 v{vT}, {cnt}")
    a(f"v_mov_b32 v{vT+1}, 1")
    a("s_mov_b64 exec, 1")
    a(f"ds_add_rtn_u32 v{vT+2}, v{vT}, v{vT+1}", "sg")
    a("s_mov_b64 exec, -1")
    a.wait_lg("sg")
    a(f"v_readfirstlane_b32 s{sA}, v{vT+2}")
    a(f"s_cmp_lg_u32 s{sA}, 7")
    a(f"s_cbranch_scc1 {tag}")
    put_flag(a, base, sTAG, sid)
    a.label(tag)


def stage_x(a, snode, tag):
    q, p, b = vT, vT + 1, vT + 2
    a(f"v_mov_b32 v{vBIG}, {BIGOFF}")
    lane_id(a, p)
    a(f"v_lshrrev_b32 v{q}, 4, v{p}")
    a(f"v_and_b32 v{p}, 15, v{p}")
    a(f"s_lshl_b32 s{sA}, s{sFH}, 4")
    a(f"s_add_u32 s{sB}, s{sA}, s{snode}")
    a(f"v_add_lshl_u32 v{b}, v{q}, s{sB}, 8")
    a(f"s_sub_u32 s{sB}, s{sWSZ0}, s{sA}")
    a(f"s_lshl_b32 s{sA}, s{sW}, 12")
    a(f"s_add_u32 m0, s{sA}, {L_X}")
    for i in range(4):
        a(f"v_add_u32 v{vT+3}, {4*i}, v{q}")
        if i >= 2:
            a(f"v_cmp_le_u32 vcc, s{sB}, v{vT+3}")
        a(f"v_xor_b32 v{vT+3}, v{vT+3}, v{p}")
        a(f"v_lshl_add_u32 v{vT+3}, v{vT+3}, 4, v{b}")
        if i >= 2:
            a(f"v_cndmask_b32 v{vT+3}, v{vT+3}, v{vBIG}, vcc")
        a(f"buffer_load_dwordx4 v{vT+3}, {sr(sX,4)}, 0 offen offset:{1024*i} lds", tag)


def read_x(a, swin):
    l, u, b = vT, vT + 1, vT + 2
    lane_id(a, l)
    a(f"v_and_b32 v{u}, 15, v{l}")
    a(f"v_lshrrev_b32 v{b}, 5, v{l}")
    a(f"v_xor_b32 v{u}, v{u}, v{b}")
    a(f"v_lshlrev_b32 v{u}, 4, v{u}")
    a(f"v_and_b32 v{l}, 31, v{l}")
    a(f"v_lshl_add_u32 v{b}, v{l}, 8, v{u}")
    a(f"s_lshl_b32 s{sA}, s{swin}, 13")
    a(f"s_add_u32 s{sA}, s{sA}, {L_X}")
    a(f"v_add_u32 v{b}, s{sA}, v{b}")
    for kk in range(8):
        a(f"v_xor_b32 v{u}, {kk << 5}, v{b}")
        a(f"ds_read_b128 {vr(XF+4*kk,4)}, v{u}", "xf")


def gemm_pair(a, f, d0, d1, w_first, hooks=None):
    hooks = hooks or {}

    def rd(kk):
        for m in range(2):
            for q in range(2):
                a(f"ds_read_b64_tr_b16 {vr(SEL + 8*(kk & 1) + 4*m + 2*q, 2)}, v{vTR+f} "
                  f"offset:{32768*m + (16*kk + 4*q)*256}", f"w{kk}")
    rd(0)
    rd(1)
    for kk in range(8):
        a.wait_lg(f"w{kk}")
        for m, d in enumerate((d0, d1)):
            w = SEL + 8 * (kk & 1) + 4 * m
            x, y = (w, XF + 4*kk) if w_first[m] else (XF + 4*kk, w)
            a(mfma(d, x, y, None if kk == 0 else d))
        if kk + 2 < 8:
            rd(kk + 2)
        if kk in hooks:
            hooks[kk]()


def line_addrs(a, wr, rd, go, sbase, snode, shift, rows, ssub, swsz):
    l, n, h = vT, vT + 1, vT + 2
    lane_id(a, l)
    a(f"v_and_b32 v{n}, {rows - 1}, v{l}")
    a(f"v_lshrrev_b32 v{h}, 5, v{l}")
    a(f"v_lshlrev_b32 v{h}, 1, v{h}")
    a(f"v_and_b32 v{wr}, 7, v{l}")
    a(f"v_xor_b32 v{wr}, v{wr}, v{h}")
    a(f"v_lshlrev_b32 v{wr}, 4, v{wr}")
    a(f"v_lshl_add_u32 v{wr}, v{n}, 7, v{wr}")
    a(f"v_add_u32 v{wr}, s{sbase}, v{wr}")
    for i, c in ((1, 1), (2, 4), (3, 5)):
        a(f"v_xor_b32 v{wr+i}, {c << 4}, v{wr}")
    a(f"v_lshl_add_u32 v{rd}, v{l}, 4, s{sbase}")
    a(f"v_lshrrev_b32 v{n}, 3, v{l}")
    a(f"v_and_b32 v{h}, 7, v{l}")
    a(f"v_xor_b32 v{h}, v{h}, v{n}")
    a(f"v_add_lshl_u32 v{go}, v{n}, s{snode}, {shift}")
    a(f"v_lshl_add_u32 v{go}, v{h}, 4, v{go}")
    a(f"v_add_u32 v{go}, s{ssub}, v{go}")
    a(f"v_add_u32 v{go+1}, {8 << shift}, v{go}")
    a(f"v_add_u32 v{go+2}, {16 << shift}, v{go}")
    a(f"s_sub_u32 s{sA}, s{swsz}, 24")
    a(f"s_lshl_b32 s{sA}, s{sA}, 3")
    a(f"v_cmp_gt_u32 vcc, s{sA}, v{l}")
    a(f"v_add_u32 v{go+3}, {24 << shift}, v{go}")
    a(f"v_mov_b32 v{vBIG}, {BIGOFF}")
    a(f"v_cndmask_b32 v{go+3}, v{vBIG}, v{go+3}, vcc")


T_WR, T_RD, T_LO = MSG, MSG + 4, MSG + 5


def table_setup(a, snode, scratch):
    a(f"s_lshl_b32 s{sC}, s{sW}, 12")
    a(f"s_add_u32 s{sC}, s{sC}, {scratch}")
    line_addrs(a, T_WR, T_RD, vVO, sC, snode, 9, 32, sFT0, sWSZ0)
    a(f"v_mov_b32 v{T_LO}, 0xff7f0000")


def table_part(a, f, pk, before_store=None, hooks=None):
    DB, DV = ACC, ACC + 16
    gemm_pair(a, f, DB, DV, (True, True), hooks)
    a(f"s_mov_b32 s{sB}, 0x7f7f0000")
    if OPT["PRE"]:
        for m in range(8):
            a(f"v_cvt_pk_bf16_f32 v{pk+8+m}, v{DV+2*m}, v{DV+2*m+1}")
        for m in range(8):
            a(f"v_lshlrev_b32 v{DV+2*m}, 16, v{pk+8+m}")
            a(f"v_and_b32 v{DV+2*m+1}, 0xffff0000, v{pk+8+m}")
    for j in range(16):
        a(f"v_mul_f32 v{DB+j}, s{sNL}, v{DB+j}")
    for j in range(16):
        a(f"v_rcp_f32 v{DV+j}, v{DV+j}")
    for m in range(8):
        a(f"v_cvt_pk_bf16_f32 v{pk+m}, v{DB+2*m}, v{DB+2*m+1}")
    for j in range(16):
        a(f"v_med3_f32 v{DV+j}, v{DV+j}, v{T_LO}, s{sB}")
    for m in range(8):
        a(f"v_cvt_pk_bf16_f32 v{pk+8+m}, v{DV+2*m}, v{DV+2*m+1}")
    for i in range(4):
        a(f"ds_write_b128 v{T_WR+i}, {vr(pk+4*i,4)}")
    for i in range(4):
        a(f"ds_read_b128 {vr(ACC+4*i,4)}, v{T_RD} offset:{1024*i}", f"lr{i}")
    if before_store:
        before_store()
    for i in range(4):
        a.wait_lg(f"lr{i}")
        a(f"buffer_store_dwordx4 {vr(ACC+4*i,4)}, v{vVO+i}, {sr(sTAB,4)}, 0 offen offset:{128*f} sc1", "ts")


def edge_weights(a):
    for f in range(2):
        a(f"v_add_u32 v{vT+f}, {(L_C - L_W) & 0xffffffff}, v{vTR+f}")
        for q in range(2):
            a(f"ds_read_b64_tr_b16 {vr(CW + 4*f + 2*q, 2)}, v{vT+f} offset:{1024*q}")
    a.wait_all(vm=False)
    for m in range(8):
        a(f"v_lshlrev_b32 v{vT}, 16, v{CW+m}")
        a(f"v_and_b32 v{vT+1}, 0xffff0000, v{CW+m}")
        a(f"v_mul_f32 v{vT}, s{sNL}, v{vT}")
        a(f"v_mul_f32 v{vT+1}, s{sNL}, v{vT+1}")
        a(f"v_cvt_pk_bf16_f32 v{CW+m}, v{vT}, v{vT+1}")


def node_proj(a, hooks0=None, hooks1=None):
    for f in range(2):
        gemm_pair(a, f, ACC + 16 * f, AGG + 16 * f, (False, True), (hooks0, hooks1)[f])
    for f in range(2):
        d = ACC + 16 * f
        for j in range(16):
            a(f"v_mul_f32 v{d+j}, s{sNL}, v{d+j}")
        for m in range(8):
            a(f"v_cvt_pk_bf16_f32 v{XA+8*f+m}, v{d+2*m}, v{d+2*m+1}")


def sort_job(a, shadow, stage1, stage2):
    vD, vS, vB, vR, vK, vH, vO, u0, u1 = EF, EF + 4, EF + 8, EF + 12, EF + 16, EF + 24, EF + 40, EF + 41, EF + 42
    vP = EF + 44

    def first_only(fn, tag):
        a(f"s_cmp_lg_u32 s{sHELP}, 0")
        a(f"s_cbranch_scc1 {tag}")
        fn()
        a.label(tag)
    srd(a, sTA, pDST, E * 4)
    srd(a, sTB, pSRC, E * 4)
    a(f"s_mul_i32 s{sA}, s{sJOB}, {CH * 4}")
    a(f"v_lshl_add_u32 v{vO}, v{tid}, 4, s{sA}")
    a(f"v_mov_b32 v{u0}, {BIGOFF}")
    a(f"v_cmp_gt_u32 vcc, {CH // 4}, v{tid}")
    a(f"v_cndmask_b32 v{vO}, v{u0}, v{vO}, vcc")
    a(f"buffer_load_dwordx4 {vr(vD,4)}, v{vO}, {sr(sTA,4)}, 0 offen", "d")
    a(f"buffer_load_dwordx4 {vr(vS,4)}, v{vO}, {sr(sTB,4)}, 0 offen", "s")
    a(f"v_cmp_gt_u32 vcc, {E * 4}, v{vO}")
    a("s_mov_b64 s[0:1], vcc")
    a(f"v_lshlrev_b32 v{u0}, 2, v{tid}")
    a(f"v_mov_b32 v{u1}, 0")
    a(f"ds_write_b32 v{u0}, v{u1} offset:{L_HIST}")
    a("s_barrier")
    a(f"s_cmp_eq_u32 s{sHELP}, 0")
    a("s_cbranch_scc1 S_FIRST")
    a("s_waitcnt vmcnt(0)")
    a("s_branch S_GO")
    a.label("S_FIRST")
    shadow()
    a.label("S_GO")
    wg_sync(a)
    a(f"s_mov_b32 s{sA}, {DIVB}")
    a(f"s_mov_b32 s{sB}, {WOFFPK}")
    a.wait_vm("d")
    stamp(a, 1)
    fstamp(a, 1, 1)
    for k in range(4):
        a(f"v_mul_u32_u24 v{vB+k}, s{sA}, v{vD+k}")
        a(f"v_lshrrev_b32 v{vB+k}, 20, v{vB+k}")
        a(f"v_mul_u32_u24 v{u0}, {NB}, v{vB+k}")
        a(f"v_sub_u32 v{vD+k}, v{vD+k}, v{u0}")
        a(f"v_lshlrev_b32 v{vB+k}, 2, v{vB+k}")
    a(f"v_mov_b32 v{u1}, 1")
    a("s_mov_b64 exec, s[0:1]")
    a("s_cbranch_execz S_NOH")
    for k in range(4):
        a(f"ds_add_rtn_u32 v{vR+k}, v{vB+k}, v{u1} offset:{L_HIST}")
    a.label("S_NOH")
    a("s_mov_b64 exec, -1")
    a.wait_vm("s")
    first_only(stage1, "S_H1")
    for k in range(4):
        a(f"v_mul_u32_u24 v{u0}, {WINM}, v{vD+k}")
        a(f"v_lshrrev_b32 v{u0}, 13, v{u0}")
        a(f"v_lshlrev_b32 v{u1}, 3, v{u0}")
        a(f"v_bfe_u32 v{u1}, s{sB}, v{u1}, 8")
        a(f"v_sub_u32 v{u1}, v{vD+k}, v{u1}")
        a(f"v_lshl_or_b32 v{vK+2*k}, v{u1}, 15, v{vS+k}")
        a(f"v_mul_u32_u24 v{u1}, {SBIN}, v{vS+k}")
        a(f"v_lshrrev_b32 v{u1}, 20, v{u1}")
        a(f"v_lshl_add_u32 v{u1}, v{u0}, 5, v{u1}")
        a(f"v_lshl_or_b32 v{vK+2*k}, v{u1}, 25, v{vK+2*k}")
        a(f"v_lshlrev_b32 v{vK+2*k+1}, 3, v{vO}")
        a(f"v_add_u32 v{vK+2*k+1}, {32*k}, v{vK+2*k+1}")
    wg_sync(a)
    fstamp(a, 1, 2)
    lane_id(a, u0)
    a(f"v_lshlrev_b32 v{u0}, 4, v{u0}")
    a(f"ds_read_b128 {vr(vH,4)}, v{u0} offset:{L_HIST}")
    a.wait_all(vm=False)
    a(f"v_add_u32 v{vH+4}, v{vH}, v{vH+1}")
    a(f"v_add_u32 v{vH+5}, v{vH+4}, v{vH+2}")
    a(f"v_add_u32 v{vH+6}, v{vH+5}, v{vH+3}")
    a(f"v_mov_b32 v{vH+7}, v{vH+6}")
    scan64(a, vH + 7)
    a(f"v_sub_u32 v{vH+8}, v{vH+7}, v{vH+6}")
    a(f"v_add_u32 v{vH+9}, v{vH+8}, v{vH}")
    a(f"v_add_u32 v{vH+10}, v{vH+8}, v{vH+4}")
    a(f"v_add_u32 v{vH+11}, v{vH+8}, v{vH+5}")
    a(f"ds_write_b128 v{u0}, {vr(vH+8,4)} offset:{L_START}")
    for k in range(4):
        a(f"ds_read_b32 v{vP+k}, v{vB+k} offset:{L_START}")
    first_only(stage2, "S_H2")
    a(f"s_cmp_lg_u32 s{sW}, 7")
    a("s_cbranch_scc1 S_NOC")
    for k in range(4):
        a(f"v_lshl_or_b32 v{vH+12+k}, v{vH+k}, 16, v{vH+8+k}")
    a(f"s_lshl_b32 s{sA}, s{sJOB}, 10")
    a(f"v_add_u32 v{u0}, s{sA}, v{u0}")
    a(f"buffer_store_dwordx4 {vr(vH+12,4)}, v{u0}, {sr(sCELL,4)}, 0 offen sc1")
    a.label("S_NOC")
    a.wait_all(vm=False)
    for k in range(4):
        a(f"v_add_lshl_u32 v{vP+k}, v{vP+k}, v{vR+k}, 3")
    a(f"s_cmp_eq_u32 s{sHELP}, 0")
    a("s_cbranch_scc1 S_PUB")
    a(f"s_mul_i32 s{sA}, s{sJOB}, {RSTR}")
    a(f"s_lshl_b32 s{sB}, s2, 2")
    for k in range(4):
        a(f"v_cmp_eq_u32 vcc, s{sB}, v{vB+k}")
        a(f"v_add_u32 v{vP+k}, s{sA}, v{vP+k}")
        a("s_and_b64 exec, vcc, s[0:1]")
        a(f"s_cbranch_execz S_P{k}")
        a(f"buffer_store_dwordx2 {vr(vK+2*k,2)}, v{vP+k}, {sr(sREC,4)}, 0 offen sc1")
        a.label(f"S_P{k}")
        a("s_mov_b64 exec, -1")
    a("s_waitcnt vmcnt(0)")
    a("s_barrier")
    a("s_branch K_HELP1N")
    a.label("S_PUB")
    a("s_mov_b64 exec, s[0:1]")
    a("s_cbranch_execz S_NOS")
    for k in range(4):
        a(f"ds_write_b64 v{vP+k}, {vr(vK+2*k,2)} offset:{L_TMP}")
    a.label("S_NOS")
    a("s_mov_b64 exec, -1")
    wg_sync(a)
    fstamp(a, 1, 3)
    a(f"v_lshlrev_b32 v{u0}, 4, v{tid}")
    a(f"ds_read_b128 {vr(vD,4)}, v{u0} offset:{L_TMP}", "r0")
    a(f"ds_read_b128 {vr(vS,4)}, v{u0} offset:{L_TMP + 8192}", "r1")
    a(f"s_mul_i32 s{sA}, s{sJOB}, {RSTR}")
    a(f"v_add_u32 v{u0}, s{sA}, v{u0}")
    a(f"v_add_u32 v{u1}, 8192, v{u0}")
    a(f"v_mov_b32 v{vB}, {BIGOFF}")
    a(f"v_cmp_gt_u32 vcc, {(RSTR - 8192) // 16}, v{tid}")
    a(f"v_cndmask_b32 v{u1}, v{vB}, v{u1}, vcc")
    a.wait_lg("r0")
    a(f"buffer_store_dwordx4 {vr(vD,4)}, v{u0}, {sr(sREC,4)}, 0 offen sc1")
    a.wait_lg("r1")
    a(f"buffer_store_dwordx4 {vr(vS,4)}, v{u1}, {sr(sREC,4)}, 0 offen sc1")
    fstamp(a, 1, 4)
    a("s_waitcnt vmcnt(2)")
    a("s_barrier")
    fstamp(a, 1, 5)


def load_records(a, tag, slow=False):
    a(f"v_lshrrev_b32 v{vT+2}, 16, v{vCELL}")
    a(f"v_min_u32 v{vN}, s{sR}, v{vT+2}")
    if slow:
        a(f"s_lshr_b32 s{sA}, s{sPAR}, 1")
        a(f"v_xor_b32 v{vT}, s{sPAR}, v{tid}")
        a(f"v_and_b32 v{vT}, s{sA}, v{vT}")
        a(f"v_cmp_eq_u32 vcc, 0, v{vT}")
        a(f"v_cndmask_b32 v{vN}, 0, v{vN}, vcc")
    a(f"v_cmp_lt_u32 vcc, v{vN}, v{vT+2}")
    a(f"s_cmp_lg_u64 vcc, 0")
    a(f"s_cselect_b32 s{sMORE}, 1, 0")
    a(f"v_and_b32 v{vT}, 0xffff, v{vCELL}")
    a(f"v_lshrrev_b32 v{vT+1}, 1, v{tid}")
    a(f"v_mul_u32_u24 v{vT+1}, {RSTR}, v{vT+1}")
    a(f"v_lshl_add_u32 v{vT}, v{vT}, 3, v{vT+1}")
    for i in range(RMAX // 2):
        a(f"v_cmp_lt_u32 vcc, {2*i}, v{vN}")
        a("s_mov_b64 exec, vcc")
        a(f"s_cbranch_execz {tag}")
        a(f"buffer_load_dwordx4 {vr(EF+4*i,4)}, v{vT}, {sr(sREC,4)}, 0 offen offset:{16*i}")
    a.label(tag)
    a("s_mov_b64 exec, -1")


def e_load(a, i):
    a(f"buffer_load_dwordx4 {vr(EF+4*i,4)}, v{FR+i}, {sr(sEA,4)}, 0 offen", f"eu{i}")


def e_load_late(a, t):
    a(f"buffer_load_dwordx4 {vr(EF+4*t,4)}, v{EF+4*t}, {sr(sEA,4)}, 0 offen", f"e{t}")


def e_exchange_write(a):
    lane_id(a, vT)
    a(f"s_xor_b32 s{sA}, s{sW}, 1")
    a(f"s_mul_i32 s{sA}, s{sA}, {RW}")
    a(f"s_add_u32 s{sA}, s{sA}, {L_RING}")
    a(f"v_lshl_add_u32 v{vT}, v{vT}, 4, s{sA}")
    for i in range(NUP // 2):
        a(f"ds_write_b128 v{vT}, {vr(EF+4*i,4)} offset:{1024*i}")


def e_exchange_read(a):
    lane_id(a, vT)
    a(f"v_lshl_add_u32 v{vT}, v{vT}, 4, s{sRING}")
    for i in range(NUP // 2):
        a(f"ds_read_b128 {vr(EF+2*NUP+4*i,4)}, v{vT} offset:{1024*i}")
    a.wait_all(vm=False)
    a(f"s_cmp_eq_u32 s{sFH}, 0")
    a("s_cbranch_scc1 K_NOSWAP")
    for j in range(2 * NUP):
        a(f"v_swap_b32 v{EF+j}, v{EF+2*NUP+j}")
    a.label("K_NOSWAP")


def e_reg(t):
    return EF + 2 * NUP * (t & 1) + 4 * (t >> 1) if t < NUP else EF + 4 * t


def window_regs(a, swin, snode, swsz):
    a(f"s_lshl_b32 s{sA}, s{swin}, 3")
    a(f"s_lshr_b32 s{sC}, {WOFFPK}, s{sA}")
    a(f"s_and_b32 s{sC}, s{sC}, 0xff")
    a(f"s_lshr_b32 s{swsz}, {WSZ[0] | WSZ[1] << 8 | WSZ[2] << 16 | WSZ[3] << 24}, s{sA}")
    a(f"s_and_b32 s{swsz}, s{swsz}, 0xff")
    a(f"s_mul_i32 s{snode}, s2, {NB}")
    a(f"s_add_u32 s{snode}, s{snode}, s{sC}")


def pick_window(a):
    k = [sTA, sTA + 1, sTA + 2, sTA + 3]
    for w in range(4):
        a(f"s_lshl_b32 s{k[w]}, s{sN0+w}, 2")
        a(f"s_or_b32 s{k[w]}, s{k[w]}, {w}")
    for x, y in ((0, 1), (2, 3), (0, 2), (1, 3), (1, 2)):
        a(f"s_max_u32 s{sA}, s{k[x]}, s{k[y]}")
        a(f"s_min_u32 s{k[y]}, s{k[x]}, s{k[y]}")
        a(f"s_mov_b32 s{k[x]}, s{sA}")
    a(f"s_cmp_eq_u32 s{sWIN0}, 1")
    a(f"s_cselect_b32 s{sA}, s{k[1]}, s{k[0]}")
    a(f"s_cmp_eq_u32 s{sWIN0}, 2")
    a(f"s_cselect_b32 s{sA}, s{k[3]}, s{sA}")
    a(f"s_cmp_eq_u32 s{sWIN0}, 3")
    a(f"s_cselect_b32 s{sA}, s{k[2]}, s{sA}")
    a(f"s_and_b32 s{sWIN}, s{sA}, 3")


def list_addrs(a):
    ln, u = vT, vT + 1
    lane_id(a, ln)
    a(f"s_mul_i32 s{sA}, s{sWIN}, {SEL_W}")
    a(f"s_add_u32 s{sA}, s{sA}, {L_SEL}")
    a(f"v_and_b32 v{u}, 31, v{ln}")
    a(f"v_lshl_add_u32 v{vSA}, v{u}, 2, s{sA}")
    a(f"v_lshrrev_b32 v{u}, 5, v{ln}")
    a(f"v_lshl_add_u32 v{vSA}, v{u}, 1, v{vSA}")
    a(f"s_mul_i32 s{sA}, s{sWIN}, {AGM_W}")
    a(f"s_add_u32 s{sA}, s{sA}, {L_AGM}")
    a(f"v_lshl_add_u32 v{vGA}, v{ln}, 2, s{sA}")
    a(f"s_mul_i32 s{sA}, s{sWIN}, {SRC_W}")
    a(f"s_add_u32 s{sA}, s{sA}, {L_SRC}")
    a(f"v_lshrrev_b32 v{u}, 3, v{ln}")
    a(f"v_lshl_add_u32 v{vIA}, v{u}, 3, s{sA}")


def build(a):
    RK = EF + 2 * RMAX
    one = vT + 2
    a(f"v_mov_b32 v{one}, 8")
    a(f"s_cmp_eq_u32 s{sMORE}, 0")
    a(f"s_cbranch_scc1 B_NM")
    a(f"v_mov_b32 v{vT}, {L_MORE}")
    a(f"ds_write_b32 v{vT}, v{one}")
    a.label("B_NM")
    for k in range(RMAX):
        a(f"v_cmp_lt_u32 vcc, {k}, v{vN}")
        a(f"v_lshrrev_b32 v{vT + (k & 1)}, 23, v{EF+2*k}")
        a("s_mov_b64 exec, vcc")
        a(f"s_cbranch_execz B_BD")
        a(f"ds_add_rtn_u32 v{RK+k}, v{vT + (k & 1)}, v{one} offset:{L_BIN}")
    a.label("B_BD")
    a("s_mov_b64 exec, -1")
    wg_sync(a)
    fstamp(a, 2, 6)
    ln = vT + 3
    lane_id(a, ln)
    a(f"v_lshlrev_b32 v{vT}, 3, v{ln}")
    a(f"ds_read_b64 {vr(MSG,2)}, v{vT} offset:{L_BIN}")
    a(f"v_mov_b32 v{MSG+2}, {L_MORE}")
    a(f"ds_read_b32 v{MSG+2}, v{MSG+2}")
    a(f"v_lshrrev_b32 v{ln}, 4, v{ln}")
    a(f"v_lshlrev_b32 v{ln}, 12, v{ln}")
    a(f"v_add_u32 v{ln}, {L_TMP}, v{ln}")
    a.wait_all(vm=False)
    a(f"v_add_u32 v{vT+1}, v{MSG}, v{MSG+1}")
    a(f"v_mov_b32 v{vT+2}, v{vT+1}")
    scan16(a, vT + 2)
    for w in range(4):
        a(f"v_readlane_b32 s{sN0+w}, v{vT+2}, {16*w + 15}")
    a(f"v_readfirstlane_b32 s{sMORE}, v{MSG+2}")
    a(f"v_sub_u32 v{vT+2}, v{vT+2}, v{vT+1}")
    a(f"v_add_u32 v{MSG+4}, v{vT+2}, v{ln}")
    a(f"v_add_u32 v{MSG+5}, v{MSG+4}, v{MSG}")
    a(f"ds_write_b64 v{vT}, {vr(MSG+4,2)} offset:{L_BST}")
    a(f"s_max_u32 s{sA}, s{sN0}, s{sN1}")
    a(f"s_max_u32 s{sB}, s{sN2}, s{sN3}")
    a(f"s_max_u32 s{sA}, s{sA}, s{sB}")
    a(f"s_cmp_gt_u32 s{sA}, {8 * 32 * TCAP}")
    a(f"s_cbranch_scc1 K_OVF")
    for g in range(RMAX // 4):
        a(f"v_cmp_lt_u32 vcc, {4*g}, v{vN}")
        for k in range(4):
            a(f"v_lshrrev_b32 v{MSG+k}, 23, v{EF + 2*(4*g + k)}")
        a("s_mov_b64 exec, vcc")
        a(f"s_cbranch_execz B_CD")
        for k in range(4):
            a(f"ds_read_b32 v{MSG+k}, v{MSG+k} offset:{L_BST}")
        a.wait_all(vm=False)
        for k in range(4):
            r = 4 * g + k
            if k:
                a(f"v_cmp_lt_u32 vcc, {r}, v{vN}")
            a(f"v_add_u32 v{MSG+k}, v{MSG+k}, v{RK+r}")
            if k:
                a("s_mov_b64 exec, vcc")
            a(f"ds_write_b64 v{MSG+k}, {vr(EF+2*r,2)}")
    a.label("B_CD")
    a("s_mov_b64 exec, -1")
    fstamp(a, 2, 8)
    a(f"v_add_u32 v{vCELL}, v{vCELL}, v{vN}")
    a(f"v_lshlrev_b32 v{vT}, 16, v{vN}")
    a(f"v_sub_u32 v{vCELL}, v{vCELL}, v{vT}")
    for w in range(4):
        a(f"s_lshr_b32 s{sN0+w}, s{sN0+w}, 3")
    if OPT["PAIR"]:
        a(f"s_cmp_lg_u32 s{sROUND}, 0")
        a("s_cbranch_scc1 B_KEEP")
        pick_window(a)
        a.label("B_KEEP")
    a(f"s_cmp_eq_u32 s{sWIN}, 1")
    a(f"s_cselect_b32 s{sNW}, s{sN1}, s{sN0}")
    a(f"s_cmp_eq_u32 s{sWIN}, 2")
    a(f"s_cselect_b32 s{sNW}, s{sN2}, s{sNW}")
    a(f"s_cmp_eq_u32 s{sWIN}, 3")
    a(f"s_cselect_b32 s{sNW}, s{sN3}, s{sNW}")
    a(f"s_add_u32 s{sNT}, s{sNW}, 31")
    a(f"s_lshr_b32 s{sNT}, s{sNT}, 5")
    wg_sync(a)
    a.vm = []
    stamp(a, 5)
    fstamp(a, 2, 9)
    ln = vT
    lane_id(a, ln)
    a(f"v_and_b32 v{vT+1}, 31, v{ln}")
    a(f"s_lshl_b32 s{sA}, s{sWIN}, 12")
    a(f"s_add_u32 s{sA}, s{sA}, {L_TMP + 4}")
    a(f"v_lshl_add_u32 v{vT+2}, v{vT+1}, 3, s{sA}")
    a(f"s_lshl_b32 s{sA}, s{sFH}, 8")
    a(f"v_add_u32 v{vT+3}, s{sA}, v{vT+2}")
    for i in range(NUP // 2):
        a(f"ds_read_b32 v{FR+i}, v{vT+3} offset:{512*i}", f"ei{i}")
    for t in range(NUP, TCAP):
        a(f"ds_read_b32 v{EF+4*t}, v{vT+2} offset:{256*t}", f"el{t}")
    a(f"v_lshrrev_b32 v{ln}, 5, v{ln}")
    a(f"v_lshlrev_b32 v{ln}, 4, v{ln}")
    a(f"v_sub_u32 v{vT+1}, s{sNW}, v{vT+1}")
    a(f"s_lshl_b32 s{sA}, s{sFH}, 5")
    a(f"v_subrev_u32 v{vT+3}, s{sA}, v{vT+1}")
    a(f"v_mov_b32 v{vT+2}, {BIGOFF}")
    for i in range(NUP // 2):
        a.wait_lg(f"ei{i}")
        a(f"v_cmp_lt_i32 vcc, {64*i}, v{vT+3}")
        a(f"v_add_u32 v{FR+i}, v{FR+i}, v{ln}")
        a(f"v_cndmask_b32 v{FR+i}, v{vT+2}, v{FR+i}, vcc")
        if i < OPT["E0"]:
            e_load(a, i)
    for t in range(NUP, TCAP):
        a.wait_lg(f"el{t}")
        a(f"v_cmp_lt_i32 vcc, {32*t}, v{vT+1}")
        a(f"v_add_u32 v{EF+4*t}, v{EF+4*t}, v{ln}")
        a(f"v_cndmask_b32 v{EF+4*t}, v{vT+2}, v{EF+4*t}, vcc")


def list_fields(a, tid, tag):
    c0, c1, c2, kv = vT + 1, vT + 2, vT + 3, vIX
    a(f"v_lshlrev_b32 v{c0}, 3, v{tid}")
    for j in range(4):
        a(f"ds_read_b32 v{MSG+j}, v{c0} offset:{L_TMP + 4096*j}")
    a(f"v_and_b32 v{c0}, 7, v{tid}")
    a(f"v_lshlrev_b32 v{c0}, 3, v{c0}")
    a(f"v_bfe_u32 v{c1}, v{tid}, 3, 2")
    a(f"v_lshl_add_u32 v{c0}, v{c1}, 1, v{c0}")
    a(f"v_lshrrev_b32 v{c1}, 5, v{tid}")
    a(f"v_lshl_add_u32 v{c0}, v{c1}, 6, v{c0}")
    a(f"v_lshlrev_b32 v{c1}, 8, v{c1}")
    a(f"v_bfe_u32 v{c2}, v{tid}, 2, 1")
    a(f"v_lshl_add_u32 v{c1}, v{c2}, 7, v{c1}")
    a(f"v_bfe_u32 v{c2}, v{tid}, 3, 1")
    a(f"v_and_b32 v{kv}, 3, v{tid}")
    a(f"v_lshl_add_u32 v{kv}, v{c2}, 2, v{kv}")
    a(f"v_or_b32 v{kv}, 0x0c0c0c00, v{kv}")
    a(f"v_mov_b32 v{kv+1}, {INC[0] | INC[1] << 8 | INC[2] << 16 | INC[3] << 24}")
    a(f"s_mov_b32 s{sA}, {INC[4] | INC[5] << 8 | INC[6] << 16 | INC[7] << 24}")
    a(f"v_perm_b32 v{kv}, s{sA}, v{kv+1}, v{kv}")
    a(f"v_and_b32 v{c2}, 16, v{tid}")
    a(f"v_add_u32 v{c2}, 4, v{c2}")
    a(f"v_lshlrev_b32 v{kv}, v{c2}, v{kv}")
    a(f"v_lshlrev_b32 v{c2}, 2, v{tid}")
    a.wait_all(vm=False)
    for w in range(4):
        a(f"v_cmp_gt_u32 vcc, s{sN0+w}, v{tid}")
        a("s_mov_b64 exec, vcc")
        a(f"s_cbranch_execz {tag}{w}")
        r, d, u = MSG + w, MSG + 4, MSG + 5
        a(f"v_and_b32 v{u}, 0x7fff, v{r}")
        a(f"ds_write_b16 v{c0}, v{u} offset:{L_SRC + w*SRC_W}")
        a(f"v_bfe_u32 v{d}, v{r}, 15, 5")
        a(f"v_lshl_add_u32 v{u}, v{d}, 2, v{c1}")
        a(f"ds_add_u32 v{u}, v{kv} offset:{L_AGM + w*AGM_W}")
        a(f"v_bfe_u32 v{u}, v{d}, 2, 1")
        a(f"v_lshl_add_u32 v{u}, v{u}, 1, v{c2}")
        a(f"v_lshrrev_b32 v{r}, 4, v{d}")
        a(f"v_add_u32 v{u}, v{u}, v{r}")
        a(f"v_and_b32 v{r}, 8, v{d}")
        a(f"v_lshlrev_b32 v{r}, 3, v{r}")
        a(f"v_and_b32 v{d}, 3, v{d}")
        a(f"v_lshl_or_b32 v{r}, v{d}, 4, v{r}")
        a(f"ds_write_b8 v{u}, v{r} offset:{L_SEL + w*SEL_W}")
        a.label(f"{tag}{w}")
        a("s_mov_b64 exec, -1")
    a.wait_all(vm=False)


def valu_stream(base):
    g, h = base, base + 16
    steps = []
    for j in range(20):
        st = []
        if j < 16:
            st.append(f"v_exp_f32 v{g+j}, v{g+j}")
        if 0 <= j - 1 < 16:
            st.append(f"v_fma_f32 v{g+j-1}, v{g+j-1}, v{h+j-1}, v{h+j-1}")
        if 0 <= j - 2 < 16 and not (OPT["CUT"] and j % 2):
            st.append(f"v_rcp_f32 v{g+j-2}, v{g+j-2}")
        if j - 3 >= 1 and (j - 3) % 2 == 1 and j - 3 < 16:
            m = (j - 4) // 2
            st.append(f"v_cvt_pk_bf16_f32 v{MSG+m}, v{g+2*m}, v{g+2*m+1}")
        steps.append(st)
    return steps


def dma_ops(v):
    st = v % NS
    return [(f"s_add_u32 m0, s{sRING}, {st*4096 + i*1024}",
             f"buffer_load_dwordx4 v{vVO+i}, {sr(sTAB,4)}, s{sFT1 if v & 1 else sFT0} offen lds", f"d{v}")
            for i in range(4)]


def issue_dma(a, v):
    ops = dma_ops(v)
    a(ops[0][0])
    for i, (m0w, ld, tg) in enumerate(ops):
        a("s_nop 0")
        a(ld, tg)
        if i + 1 < 4:
            a(ops[i + 1][0])


def voffs(a):
    for i in range(4):
        sel = " op_sel:[1,0,0,0]" if i & 1 else ""
        a(f"v_mad_u32_u16 v{vVO+i}, v{vIX + (i >> 1)}, s{s512}, v{vLC + (i & 1)}{sel}")


def frag_reads(v):
    return [(f"ds_read_b128 {vr(FR+4*i,4)}, v{vFA+i} offset:{(v % NS)*4096}", f"f{v}") for i in range(4)]


def main_mfmas(v):
    t, f = v >> 1, v & 1
    g = ACC + 32 * (v & 1)
    h = g + 16
    return [mfma(g, FR, ID, None), mfma(h, FR + 8, ID, None), mfma(g, FR + 4, ID + 4, g), mfma(h, FR + 12, ID + 4, h),
            mfma(g, e_reg(t), CW + 4*f, g), mfma(g, SEL, XA + 8*f, g), mfma(g, SEL + 4, XA + 8*f + 4, g)]


def agg_mfmas(v):
    d = AGG + 16 * (v & 1)
    return [mfma(d, MSG, AOH, d), mfma(d, MSG + 4, AOH + 4, d)]


def rd_idx(a, t):
    a(f"ds_read_b64 {vr(vIX,2)}, v{vIA} offset:{64*t}", f"ix{t}")


def rd_sel_addr(a, t):
    a(f"ds_read_u8 v{vS0}, v{vSA} offset:{128*t}", f"sa{t}")
    a(f"ds_read_u8 v{vS0+1}, v{vSA} offset:{128*t + 1}", f"sa{t}")


def rd_sel(a, t):
    a.wait_lg(f"sa{t}")
    a(f"ds_read_b128 {vr(SEL,4)}, v{vS0} offset:{L_LUT1}", f"s{t}")
    a(f"ds_read_b128 {vr(SEL+4,4)}, v{vS0+1} offset:{L_LUT1}", f"s{t}")


def rd_agg_addr(a, t):
    a(f"ds_read_u16 v{vG0}, v{vGA} offset:{256*t}", f"ga{t}")
    a(f"ds_read_u16 v{vG0+1}, v{vGA} offset:{256*t + 2}", f"ga{t}")


def rd_agg(a, t):
    a.wait_lg(f"ga{t}")
    a(f"ds_read_b128 {vr(AOH,4)}, v{vG0} offset:{L_LUT2}", f"g{t}")
    a(f"ds_read_b128 {vr(AOH+4,4)}, v{vG0+1} offset:{L_LUT2}", f"g{t}")


def slot(a, u):
    t, f = u >> 1, u & 1
    pre = {j: [] for j in range(20)}
    post = {j: [] for j in range(20)}
    a.wait_all(vm=False)
    if f == 0 and OPT["FAIR"] and t > 0:
        a(f"v_readfirstlane_b32 s{sA}, v{vT+2}")
        post[0].append(lambda: (a(f"s_mul_i32 s{sA}, s{sA}, s{sSGN}"), a("s_setprio 0"), a(f"s_cmp_ge_i32 s{sA}, 0"),
                                a(f"s_cbranch_scc1 F{u}"), a("s_setprio 1"), a.label(f"F{u}")))
    g = agg_mfmas(u - 1) if u > 0 else [None, None]
    m = main_mfmas(u + 1)
    order = [m[0], m[1], g[0], m[2], m[3], g[1], m[4], m[5], m[6]]
    for i, x in enumerate(order):
        if x:
            pre[i].append(lambda x=x: a(x))
    if f == 0 and NUP <= t + OPT["ED"] < TCAP:
        post[9].append(lambda: e_load_late(a, t + OPT["ED"]))
    if f == 1:
        pre[6].insert(0, lambda: a.wait_vm(f"e{t + 1}"))
    L0, D0 = OPT["L0"], OPT["D0"]
    pre[L0].append(lambda: a.wait_vm(f"d{u + 2}"))
    for i, (rd, tg) in enumerate(frag_reads(u + 2)):
        pre[L0 + i].append(lambda rd=rd, tg=tg: a(rd, tg))
    pre[D0].append(lambda: a.wait_lg(f"f{u + 2}"))
    nv = u + 2 + AH
    if nv % 2 == 0:
        pre[0].append(lambda: rd_idx(a, nv // 2))
        pre[D0].append(lambda: voffs(a))
    for i, (m0w, ld, tg) in enumerate(dma_ops(nv)):
        pre[D0 + i].append(lambda m0w=m0w: a(m0w))
        post[D0 + i].append(lambda ld=ld, tg=tg: a(ld, tg))
    if f == 0:
        pre[1].append(lambda: rd_sel_addr(a, t + 1))
        post[D0].append(lambda: rd_agg(a, t))
        post[D0 + 1].append(lambda: rd_sel(a, t + 1))
    else:
        pre[2].append(lambda: rd_agg_addr(a, t + 1))
        if OPT["FAIR"]:
            post[D0 + 1].append(lambda: a(f"ds_add_rtn_u32 v{vT+2}, v{vT}, v{vT+1}"))
    for j, st in enumerate(valu_stream(ACC + 32 * f)):
        for fn in pre[j]:
            fn()
        for s in st:
            a(s)
        for fn in post[j]:
            fn()


def gen():
    a = Asm()
    a(f"s_cmp_ge_u32 s2, {NWG}")
    a("s_cbranch_scc1 K_END")
    stamp(a, 0)
    a(f"s_load_dwordx2 s[{pWS}:{pWS+1}], s[0:1], 72")
    a(f"s_load_dwordx4 s[{pSRC}:{pSRC+3}], s[0:1], 16")
    a("s_load_dwordx4 s[4:7], s[0:1], 0")
    a(f"s_load_dwordx4 s[{pU}:{pU+3}], s[0:1], 32")
    a(f"s_load_dwordx2 s[{pG}:{pG+1}], s[0:1], 48")
    a(f"s_load_dwordx2 s[{sTA}:{sTA+1}], s[0:1], 56")
    a("s_mov_b32 s3, s2")
    a(f"s_and_b32 s{sA}, s2, 7")
    a(f"s_lshl_b32 s{sA}, s{sA}, 5")
    a("s_lshr_b32 s2, s2, 3")
    a(f"s_add_u32 s2, s2, s{sA}")
    a(f"v_mov_b32 v{tid}, v0")
    a(f"v_lshrrev_b32 v{vT}, 6, v0")
    a(f"s_mov_b32 s{sJOB}, s3")
    a(f"v_readfirstlane_b32 s{sW}, v{vT}")
    a(f"s_mov_b32 s{sHELP}, 0")
    a(f"s_mov_b32 s{sPAR}, 0")
    a(f"s_mov_b32 s{sROUND}, 0")
    a(f"s_mov_b32 s{sR}, {RMAX}")
    a(f"s_mov_b32 s{s512}, {0 if OPT['HIT'] else 512}")
    a(f"s_mov_b32 s{sNL}, {NL2E}")
    a(f"s_lshr_b32 s{sWIN0}, s{sW}, 1")
    a(f"s_mov_b32 s{sWIN}, s{sWIN0}")
    a(f"s_and_b32 s{sFH}, s{sW}, 1")
    a(f"s_mul_i32 s{sRING}, s{sW}, {RW}")
    a(f"s_add_u32 s{sRING}, s{sRING}, {L_RING}")
    window_regs(a, sWIN0, sNODE0, sWSZ0)
    a(f"s_lshl_b32 s{sFT0}, s{sFH}, 8")
    a(f"s_add_u32 s{sFT1}, s{sFT0}, 128")
    a(f"s_cmp_ge_u32 s{sW}, 4")
    a(f"s_cselect_b32 s{sSGN}, -1, 1")
    a.wait_all(vm=False)
    srd(a, sOUT, sTA, N * 256)
    srd(a, sX, 4, N * 256)
    srd(a, sEA, 6, E * 32)
    srd(a, sCELL, pWS, CELL_SZ, CELL_OFF)
    srd(a, sREC, pWS, REC_SZ, REC_OFF)
    a.label("K_SORT")

    def stage_rows():
        a(f"s_mov_b32 s{sNT}, s{sB}")
        stage_x(a, sNODE0, "st")
        a(f"s_mov_b32 s{sB}, s{sNT}")

    def stage_v():
        stage_matrix(a, pV, 32768, 0, 1, "st")

    def shadow():
        weight_offset(a)
        (stage_v if OPT["SORD"] else stage_rows)()
        a(f"s_add_u32 s{sFLG}, s{pWS}, {FLG_OFF + F_TAG}")
        a(f"s_addc_u32 s{sFLG+1}, s{pWS+1}, 0")
        a(f"s_load_dword s{sTAG}, s[{sFLG}:{sFLG+1}], 0")
        srd(a, sTAB, pWS, TAB_SZ, TAB_OFF)
        init_luts(a)
        lane_consts(a)
        tr_bases(a)
        a.wait_all(vm=False)
        a(f"s_add_u32 s{sTAG}, s{sTAG}, 1")
        srd(a, sFLG, pWS, FLG_SZ, FLG_OFF)

    def stage2():
        stage_matrix(a, pG, 272 * 256, 128, 0, "st")
        a(f"s_cmp_ge_u32 s{sW}, 4")
        a("s_cbranch_scc1 K_NOC")
        a(f"s_mul_i32 s{sA}, s{sW}, 3072")
        a(f"s_sub_u32 s{sC}, 65536, s{sA}")
        a(f"s_lshl_b32 s{sA}, s{sW}, 10")
        a(f"s_add_u32 m0, s{sA}, {L_C}")
        a(f"buffer_load_dwordx4 v{vWO}, {sr(sTA,4)}, s{sC} offen lds")
        a.label("K_NOC")
    sort_job(a, shadow, stage_rows if OPT["SORD"] else stage_v, stage2)
    stamp(a, 2)
    a(f"ds_read_b128 {vr(ID,4)}, v{vIX} offset:{L_LUT1}")
    a(f"ds_read_b128 {vr(ID+4,4)}, v{vIX+1} offset:{L_LUT1}")
    read_x(a, sWIN0)
    edge_weights(a)
    table_setup(a, sNODE0, L_TSCR)
    fstamp(a, 1, 6)
    a.wait_all(lg=False)
    last_wave_flag(a, L_SG1, F_SORT, 3, "K_NOS1")
    fstamp(a, 1, 7)

    def cells():
        fstamp(a, 1, 8)
        poll(a, F_SORT, L_FB1, "P1", OPT["FORCE1"])
        a.wait_lg("fb")
        a(f"v_readfirstlane_b32 s{sA}, v{vT+3}")
        a(f"s_cmp_lg_u32 s{sA}, 0")
        a("s_cbranch_scc1 K_HELP1")
        a.label("K_SORTED")
        stamp(a, 3)
        fstamp(a, 1, 9)
        fstamp(a, 2, 1)
        a(f"s_lshl_b32 s{sA}, s2, 2")
        a(f"v_lshrrev_b32 v{vT}, 1, v{tid}")
        a(f"v_lshl_add_u32 v{vT}, v{vT}, 10, s{sA}")
        a(f"buffer_load_dword v{vCELL}, v{vT}, {sr(sCELL,4)}, 0 offen", "cell")

    table_part(a, 0, XA, cells)

    def records():
        fstamp(a, 2, 2)
        a.wait_vm("cell")
        fstamp(a, 2, 3)
        a(f"v_lshrrev_b32 v{vT}, 16, v{vCELL}")
        a(f"v_add_u32 v{vT+1}, 1, v{vT}")
        a(f"v_lshrrev_b32 v{vT+1}, 1, v{vT+1}")
        a(f"v_sub_u32 v{vT}, v{vT}, v{vT+1}")
        a(f"v_and_b32 v{vCELL}, 0xffff, v{vCELL}")
        a(f"v_and_b32 v{vT+2}, 1, v{tid}")
        a(f"v_cmp_eq_u32 vcc, 1, v{vT+2}")
        a(f"v_mad_u32_u24 v{vCELL}, v{vT+2}, v{vT+1}, v{vCELL}")
        a(f"v_cndmask_b32 v{vT}, v{vT+1}, v{vT}, vcc")
        a(f"v_lshl_or_b32 v{vCELL}, v{vT}, 16, v{vCELL}")
        load_records(a, "K_RL0")
        a.vm = []
    table_part(a, 1, XA, None, {OPT['RK']: records})
    fstamp(a, 2, 4)
    a(f"s_waitcnt vmcnt({len(a.vm)})")
    stamp(a, 4)
    fstamp(a, 2, 5)
    a.label("K_BUILD")
    build(a)
    NE = NUP // 2
    window_regs(a, sWIN, sNODE, sWSZ)
    a(f"s_cmp_lg_u32 s{sROUND}, 0")
    a("s_cbranch_scc1 K_PLAIN")
    vm_branch = list(a.vm)
    init_lists(a, "K_I0", False)
    a(f"s_waitcnt vmcnt({OPT['E0']})")
    last_wave_flag(a, L_SG2, F_TAB, 2, "K_NOS2")
    stage_weights(a, 0, pU, "st2")
    list_addrs(a)
    wg_sync(a)
    list_fields(a, tid, "K_D")
    read_x(a, sWIN)
    ecount = [OPT["E0"]]

    def ehook(n):
        def fn():
            for _ in range(n):
                if ecount[0] < NE:
                    e_load(a, ecount[0])
                    ecount[0] += 1
        return fn
    ehook(OPT["E1"])()
    a.wait_vm("st2")
    a("s_barrier")
    rest = NE - ecount[0]
    hk = lambda n: {0: ehook((n + 1) // 2), 4: ehook(n // 2)}
    node_proj(a, hk((rest + 1) // 2), hk(rest // 2))
    assert ecount[0] == NE
    stamp(a, 6)
    a.wait_all()
    a("s_barrier")
    e_exchange_write(a)
    poll(a, F_TAB, L_FB2, "P2", OPT["FORCE2"])
    a.wait_lg("fb")
    a(f"v_readfirstlane_b32 s{sA}, v{vT+3}")
    a(f"s_cmp_lg_u32 s{sA}, 0")
    a("s_cbranch_scc1 K_HELP2")
    a.label("K_XREAD")
    e_exchange_read(a)
    a.label("K_FILL")
    a.vm = []
    stamp(a, 7)
    a(f"s_cmp_eq_u32 s{sNT}, 0")
    a("s_cbranch_scc1 K_RDONE")
    rd_idx(a, 0)
    rd_sel_addr(a, 0)
    rd_agg_addr(a, 0)
    if OPT["FAIR"]:
        a(f"s_and_b32 s{sA}, s{sW}, 3")
        a(f"s_lshl_b32 s{sA}, s{sA}, 2")
        a(f"s_add_u32 s{sA}, s{sA}, {L_FAIR}")
        a(f"v_mov_b32 v{vT}, s{sA}")
        lane_id(a, vT + 2)
        a(f"v_cmp_eq_u32 vcc, 0, v{vT+2}")
        a(f"v_mov_b32 v{vT+1}, s{sSGN}")
        a(f"v_lshlrev_b32 v{vT+2}, 2, v{vT+2}")
        a(f"v_cndmask_b32 v{vT+1}, 0, v{vT+1}, vcc")
        a(f"v_cndmask_b32 v{vT}, v{vT+2}, v{vT}, vcc")

    def fill_dma(v):
        if v % 2 == 0:
            a.wait_lg(f"ix{v // 2}")
            voffs(a)
            if v + 2 <= AH + 1:
                rd_idx(a, v // 2 + 1)
        issue_dma(a, v)
    for v in range(AH):
        fill_dma(v)
        if v == 1:
            rd_sel(a, 0)
    for t in range(NUP, TCAP):
        if t - OPT["ED"] < 0:
            e_load_late(a, t)
    a.wait_vm("d0")
    for rd, tg in frag_reads(0):
        a(rd, tg)
    a.wait_lg("f0")
    fill_dma(AH)
    mm = main_mfmas(0)
    for m in mm[:4]:
        a(m)
    a.wait_vm("d1")
    for rd, tg in frag_reads(1):
        a(rd, tg)
    a.wait_lg("s0")
    for m in mm[4:]:
        a(m)
    a.wait_lg("f1")
    fill_dma(AH + 1)
    a(f"s_cmp_eq_u32 s{sNT}, 1")
    a("s_cbranch_scc1 K_ST0")
    for u in range(2 * TCAP - 2):
        slot(a, u)
        if u % 2 == 1 and u < 2 * TCAP - 3:
            a(f"s_cmp_eq_u32 s{sNT}, {(u + 1) // 2 + 1}")
            a(f"s_cbranch_scc1 K_ST{(u + 1) // 2}")
    for t in range(TCAP - 1, -1, -1):
        a.label(f"K_ST{t}")
        for j in range(4):
            a(f"v_mov_b32 v{vVO+j}, v{e_reg(t)+j}")
        if t:
            a("s_branch K_LAST")
    a.wait_all(vm=False)
    a("s_branch K_LAST0")
    a.label("K_LAST")
    a.wait_all(vm=False)
    for m in agg_mfmas(1):
        a(m)
    a.label("K_LAST0")
    a(f"ds_read_b128 {vr(AOH,4)}, v{vG0} offset:{L_LUT2}")
    a(f"ds_read_b128 {vr(AOH+4,4)}, v{vG0+1} offset:{L_LUT2}")
    a(f"s_sub_u32 s{sA}, s{sNT}, 1")
    a(f"s_lshl_b32 s{sA}, s{sA}, 5")
    a(f"s_sub_u32 s{sB}, s{sNW}, s{sA}")
    mm = main_mfmas(1)
    mm[4] = mfma(ACC + 32, vVO, CW + 4, ACC + 32)

    def part(base, tag, extra):
        g, h = base, base + 16
        extra = list(extra)
        for m in range(2, 8):
            a(f"v_mov_b32 v{MSG+m}, 0")
        for q in range(4):
            if q:
                a(f"s_cmp_le_u32 s{sB}, {8*q}")
                a(f"s_cbranch_scc1 {tag}")
            for j in range(4 * q, 4 * q + 4):
                a(f"v_exp_f32 v{g+j}, v{g+j}")
                if extra:
                    a(extra.pop(0))
            for j in range(4 * q, 4 * q + 4):
                a(f"v_fma_f32 v{g+j}, v{g+j}, v{h+j}, v{h+j}")
                if extra:
                    a(extra.pop(0))
            for j in range(4 * q, 4 * q + 4):
                a(f"v_rcp_f32 v{g+j}, v{g+j}")
            for m in (2 * q, 2 * q + 1):
                a(f"v_cvt_pk_bf16_f32 v{MSG+m}, v{g+2*m}, v{g+2*m+1}")
        a.label(tag)
        a("s_nop 1")
    part(ACC, "K_LA", mm)
    a.wait_all(vm=False)
    for m in agg_mfmas(0):
        a(m)
    a("s_nop 3")
    part(ACC + 32, "K_LB", [])
    for m in agg_mfmas(1):
        a(m)
    a.label("K_RDONE")
    stamp(a, 8)
    a(f"s_cmp_lg_u32 s{sMORE}, 0")
    a("s_cbranch_scc1 K_ROUND")
    wr, rd, go = MSG, MSG + 4, vVO
    a(f"s_lshl_b32 s{sC}, s{sFH}, 7")
    line_addrs(a, wr, rd, go, sRING, sNODE, 8, 32, sC, sWSZ)
    for f in range(2):
        g, w = AGG + 16 * f, ACC + 16 * f
        for j in range(16):
            a(f"v_mul_f32 v{w+j}, s{sNL}, v{g+j}")
        for j in range(16):
            a(f"v_exp_f32 v{w+j}, v{w+j}")
        for j in range(16):
            a(f"v_add_f32 v{w+j}, 1.0, v{w+j}")
        for j in range(16):
            a(f"v_rcp_f32 v{w+j}, v{w+j}")
        for j in range(16):
            a(f"v_mul_f32 v{w+j}, v{w+j}, v{g+j}")
        for m in range(8):
            a(f"v_cvt_pk_bf16_f32 v{ACC+32+8*f+m}, v{w+2*m}, v{w+2*m+1}")
    a.wait_all()
    for i in range(4):
        a(f"ds_write_b128 v{wr+i}, {vr(ACC+32+4*i,4)}")
    for i in range(4):
        a(f"ds_read_b128 {vr(ACC+4*i,4)}, v{rd} offset:{1024*i}", f"or{i}")
    for i in range(4):
        a.wait_lg(f"or{i}")
        a(f"buffer_store_dwordx4 {vr(ACC+4*i,4)}, v{go+i}, {sr(sOUT,4)}, 0 offen {OPT['OST'].replace('_', ' ')}")
    a(f"s_cmp_lg_u32 s{sW}, 0")
    a("s_cbranch_scc1 K_FIN")
    a(f"s_cmp_eq_u32 s{sHELP}, 0")
    a("s_cbranch_scc1 K_NOWD")
    a(f"s_sub_u32 s{sB}, s{sTAG}, 1")
    put_flag(a, F_SORT, sB, 3)
    put_flag(a, F_TAB, sB, 2)
    a.label("K_NOWD")
    a("s_cmp_lg_u32 s3, 0")
    a("s_cbranch_scc1 K_FIN")
    a(f"v_mov_b32 v{vT}, {F_TAG}")
    a(f"v_mov_b32 v{vT+1}, s{sTAG}")
    a("s_mov_b64 exec, 1")
    a(f"buffer_store_dword v{vT+1}, v{vT}, {sr(sFLG,4)}, 0 offen sc1")
    a("s_mov_b64 exec, -1")
    a.label("K_FIN")
    if OPT["STAMP"]:
        stamp(a, 9)
        stamp_store(a)
    a.label("K_END")
    a("s_endpgm")

    a.label("K_PLAIN")
    a.vm = list(vm_branch)
    for i in range(OPT["E0"], NE):
        e_load(a, i)
    list_fields(a, tid, "K_P")
    a.wait_all()
    a("s_barrier")
    e_exchange_write(a)
    wg_sync(a)
    a("s_branch K_XREAD")

    a.label("K_OVF")
    a(f"s_cmp_eq_u32 s{sR}, 1")
    a(f"s_cselect_b32 s{sA}, 2, 0")
    a(f"s_or_b32 s{sPAR}, s{sPAR}, s{sA}")
    a(f"s_lshr_b32 s{sR}, s{sR}, 1")
    a(f"s_max_u32 s{sR}, s{sR}, 1")
    a("s_branch K_AGAIN")
    a.label("K_ROUND")
    a(f"s_mov_b32 s{sROUND}, 1")
    a(f"s_xor_b32 s{sPAR}, s{sPAR}, 1")
    a.label("K_AGAIN")
    a("s_setprio 0")
    a("s_nop 7")
    a.wait_all()
    a("s_barrier")
    lane_id(a, tid)
    a(f"s_lshl_b32 s{sA}, s{sW}, 6")
    a(f"v_add_u32 v{tid}, s{sA}, v{tid}")
    load_records(a, "K_RL1", True)
    init_lists(a, "K_I1", True)
    a.wait_all()
    a("s_barrier")
    a("s_branch K_BUILD")

    a.label("K_HELP1")
    a(f"s_mov_b32 s{sHELP}, 1")
    a(f"s_mov_b32 s{sJOB}, 0")
    a.wait_all()
    srd(a, sREC, pWS, REC_SZ, REC2_OFF)
    a("s_branch K_SORT")
    a.label("K_HELP1N")
    a(f"s_add_u32 s{sJOB}, s{sJOB}, 1")
    a(f"s_cmp_lt_u32 s{sJOB}, {NWG}")
    a("s_cbranch_scc1 K_SORT")
    a("s_branch K_SORTED")

    a.label("K_HELP2")
    a(f"s_mov_b32 s{sHELP}, 1")
    a.wait_all()
    a(f"v_mov_b32 v{vG0 - 1}, v{vSA}")
    weight_offset(a)
    stage_weights(a, 128, pV, "h")
    a(f"v_mov_b32 v{vSA}, v{vG0 - 1}")
    a(f"s_mov_b32 s{sJOB}, 0")
    a.label("K_HJOB")
    a(f"s_lshl_b32 s{sA}, s{sWIN0}, 3")
    a(f"s_lshr_b32 s0, {WOFFPK}, s{sA}")
    a(f"s_and_b32 s0, s0, 0xff")
    a(f"s_mul_i32 s{sA}, s{sJOB}, {NB}")
    a(f"s_add_u32 s0, s0, s{sA}")
    stage_x(a, 0, "h")
    a.wait_all()
    a("s_barrier")
    read_x(a, sWIN0)
    wg_sync(a)
    table_setup(a, 0, L_X)
    table_part(a, 0, FR)
    table_part(a, 1, FR)
    a.wait_all()
    a("s_barrier")
    a(f"s_add_u32 s{sJOB}, s{sJOB}, 1")
    a(f"s_cmp_lt_u32 s{sJOB}, {NWG}")
    a("s_cbranch_scc1 K_HJOB")
    e_exchange_write(a)
    wg_sync(a)
    a("s_branch K_XREAD")
    return a


def main():
    k = gen()
    text = k.text()
    ref = open(f"cdna_kernels/{NAME}.s.ref").read().split("; Override launch")[0]
    out = ref + f"; @launch grid=({NWG},1,1) block=(512,1,1) lds={KLDS}\n"
    out += '.amdgcn_target "amdgcn-amd-amdhsa--gfx950"\n.text\n'
    out += f".globl {NAME}_kernel\n.p2align 8\n.type {NAME}_kernel,@function\n{NAME}_kernel:\n{text}"
    out += f""".section .rodata,"a"
.p2align 6
.amdhsa_kernel {NAME}_kernel
  .amdhsa_next_free_vgpr 256
  .amdhsa_next_free_sgpr 102
  .amdhsa_accum_offset 256
  .amdhsa_group_segment_fixed_size 0
  .amdhsa_kernarg_size 80
  .amdhsa_user_sgpr_count 2
  .amdhsa_user_sgpr_kernarg_segment_ptr 1
  .amdhsa_system_sgpr_workgroup_id_x 1
.end_amdhsa_kernel
"""
    open(sys.argv[1], "w").write(out)
    print(f"lds {KLDS} nops {k.nops}; lines {out.count(chr(10))}")


if __name__ == "__main__":
    main()
```

```python
import os
import sys
sys.path.insert(0, os.path.dirname(os.path.abspath(__file__)))
from asmlib import Asm, vr, sr

NAME = "standalone__edge_featured_mpnn_egc__graph"
N, E, D = 25000, 400000, 128
NWG = 256
CH = 1564
RSTR = 12544
NB = 98
WOFF = [0, 25, 49, 73]
WSZ = [25, 24, 24, 25]
RMAX = 12
assert NWG * CH >= E and CH % 4 == 0 and CH * 8 <= RSTR and NWG * NB >= N
TAB_OFF, TAB_SZ = 0, N * 512
REC_OFF, REC_SZ = 0xC40000, NWG * RSTR
CELL_OFF, CELL_SZ = 0xF80000, NWG * 1024
FLG_OFF, FLG_SZ = 0xFC0000, 16384 + 128
REC2_OFF = 0x1400000
F_SORT, F_TAB, F_TAG = 0, 8192, 16384
assert REC_OFF + REC_SZ <= CELL_OFF and CELL_OFF + CELL_SZ <= FLG_OFF
NL2E = 0xBFB8AA3B
BIGOFF = 0x7FFFFF00
DIVB = 10700
assert all((d * DIVB) >> 20 == d // NB for d in range(N))
WOFFPK = WOFF[0] | WOFF[1] << 8 | WOFF[2] << 16 | WOFF[3] << 24
WINM = 337
assert all((d * WINM) >> 13 == max(i for i in range(4) if WOFF[i] <= d) for d in range(NB))
SBIN = 1342
assert ((N - 1) * SBIN) >> 20 == 31
POLL_LIMIT = 4000

OPT = dict(NS=3, LAG=1, NUP=8, ED=3, OST="sc1", E0=2, PRE=0, PAIR=1, STAMP=0, FAIR=1, FORCE1=0, FORCE2=0, L0=5, D0=11, HIT=0, CYC=0, RK=1, SORD=0, E1=1, FINE=0, CUT=0, PF="a", PFL=20, HOLD=1, SIG=1, ORD=0, AUP=0)
for kv in sys.argv[2:]:
    k, v = kv.split("=")
    OPT[k] = int(v) if v.lstrip("-").isdigit() else v
NS = OPT["NS"]
TCAP = 16 if NS == 3 else 15
INC = [1, 2, 4, 8, 19, 37, 86, 169] if NS == 3 else [1 << b for b in range(8)]
RW = NS * 4096
AH = NS - OPT["LAG"]
NUP = OPT["NUP"]
assert NUP % 2 == 0 and 2 <= NUP <= TCAP

L_LUT2 = 0
L_LUT1 = L_LUT2 + (sum(INC) + 1) * 16
L_BIN = L_LUT1 + 144
L_MORE, L_FB1, L_FB2, L_SG1, L_SG2, L_FAIR = [L_BIN + o for o in (512, 528, 532, 536, 540, 544)]
L_BST = L_BIN + 576
L_SRC = L_BST + 512
SRC_W = (TCAP + 2) * 64
L_SEL = L_SRC + 4 * SRC_W
SEL_W = TCAP * 128
L_AGM = L_SEL + 4 * SEL_W
AGM_W = TCAP * 256
L_END = L_AGM + 4 * AGM_W
if NS == 3:
    L_TMP = L_END
    L_RING = (L_TMP + 16384 + 4095) // 4096 * 4096
    L_W, L_X, L_C = L_RING, L_RING + 65536, L_RING + 98304
    KLDS = L_C + 4096
else:
    L_RING = 32768
    L_TMP, L_C, L_W, L_X = L_RING, L_RING + 16384, L_RING + 32768, L_RING + 98304
    KLDS = L_RING + 8 * RW
    assert L_END <= L_RING
L_HIST, L_START = L_SRC, L_SRC + 1024
L_TSCR = (L_SEL + 127) // 128 * 128
assert all(x % 16 == 0 for x in (L_LUT1, L_BIN, L_BST, L_SRC, L_SEL, L_AGM, L_TMP)) and KLDS <= 163840
assert L_TMP + 16384 <= 65536 and L_TSCR + 32768 <= L_TMP + 16384

vCELL = 0
vFA, vLC, vIA, vVO, vIX, vSA, vGA, vS0, vG0, vT = 1, 5, 7, 8, 12, 14, 15, 16, 18, 20
MSG, FR, SEL, AOH, ACC, EF, AGG, XA, CW, ID = 24, 32, 48, 56, 64, 128, 192, 224, 240, 248
XF = ACC + 32
tid, vN = vS0, vS0 + 1
vTR = vG0
vWO = vSA
vBIG = MSG + 7
vSI = SEL + 5
sFLG, sTA = 4, 20
sX, sEA, sOUT, sTAB, sREC, sCELL, sTB = 24, 28, 32, 36, 40, 44, 48
(sW, sWIN, sFH, sRING, sNT, sNW, sR, sMORE, s512, sFT0, sFT1, sNL, sA, sB, sC, sNODE, sROUND, sSGN,
 sN0, sN1, sN2, sN3, sJOB, sWSZ, sWIN0, sWSZ0, sNODE0, sTAG, sHELP, sPAR) = range(52, 82)
pSRC, pDST, pU, pV, pG, pWS = 8, 10, 12, 14, 16, 18
NST = 10


def srd(a, d, lo, size, off=0):
    if off:
        a(f"s_add_u32 s{d}, s{lo}, {off}")
        a(f"s_addc_u32 s{d+1}, s{lo+1}, 0")
        a(f"s_and_b32 s{d+1}, s{d+1}, 0xffff")
    else:
        a(f"s_mov_b32 s{d}, s{lo}")
        a(f"s_and_b32 s{d+1}, s{lo+1}, 0xffff")
    a(f"s_mov_b32 s{d+2}, {size}")
    a(f"s_mov_b32 s{d+3}, 0x20000")


def scan16(a, v):
    for sh in (1, 2, 4, 8):
        a(f"v_add_u32_dpp v{v}, v{v}, v{v} row_shr:{sh} row_mask:0xf bank_mask:0xf bound_ctrl:1")


def scan64(a, v):
    scan16(a, v)
    a(f"v_add_u32_dpp v{v}, v{v}, v{v} row_bcast:15 row_mask:0xa bank_mask:0xf")
    a(f"v_add_u32_dpp v{v}, v{v}, v{v} row_bcast:31 row_mask:0xc bank_mask:0xf")


def mfma(d, x, y, c):
    cs = "0" if c is None else vr(c, 16)
    return f"v_mfma_f32_32x32x16_bf16 {vr(d, 16)}, {vr(x, 4)}, {vr(y, 4)}, {cs}"


def fstamp(a, grp, k):
    if OPT["STAMP"] and OPT["FINE"] == grp:
        a(f"s_memrealtime s[{82 + 2*k}:{83 + 2*k}]")
        a.lg = [t for t in a.lg if t != "smem"] + ["smem"]


def stamp(a, k):
    if OPT["STAMP"] and (k == 0 or not OPT["FINE"]):
        a(f"s_memrealtime s[{82 + 2*k}:{83 + 2*k}]")
        if OPT["CYC"] and k in (7, 8):
            a(f"s_memtime s[{82 + 2*(k - 6)}:{83 + 2*(k - 6)}]")
        a.lg = [t for t in a.lg if t != "smem"] + ["smem"]


def stamp_store(a):
    a.wait_all()
    srd(a, sTA, pWS, 1 << 20, 0x1000000)
    a(f"s_lshl_b32 s{sA}, s2, 3")
    a(f"s_add_u32 s{sA}, s{sA}, s{sW}")
    a(f"s_lshl_b32 s{sA}, s{sA}, 6")
    a(f"v_mov_b32 v1, s{sA}")
    for k in range(12):
        a(f"v_mov_b32 v{8+k}, s{82+2*min(k, NST - 1)}")
    for q in range(3):
        a(f"buffer_store_dwordx4 {vr(8+4*q,4)}, v1, {sr(sTA,4)}, 0 offen offset:{16*q}")


def lane_id(a, v):
    a(f"v_mbcnt_lo_u32_b32 v{v}, -1, 0")
    a(f"v_mbcnt_hi_u32_b32 v{v}, -1, v{v}")


def wg_sync(a):
    a.wait_all(vm=False)
    a("s_barrier")


def put_flag(a, base, sval, sid):
    lane_id(a, vT)
    a(f"s_lshl_b32 s{sA}, s{sid}, 2")
    a(f"s_add_u32 s{sA}, s{sA}, {base}")
    a(f"v_cmp_gt_u32 vcc, 8, v{vT}")
    a(f"v_lshl_add_u32 v{vT}, v{vT}, 10, s{sA}")
    a(f"v_mov_b32 v{vT+1}, s{sval}")
    a("s_mov_b64 exec, vcc")
    keep = list(a.vm)
    a(f"buffer_store_dword v{vT+1}, v{vT}, {sr(sFLG,4)}, 0 offen sc1")
    a.vm = keep
    a("s_mov_b64 exec, -1")


def poll(a, base, fbaddr, tag, force):
    a(f"s_cmp_lg_u32 s{sW}, 0")
    a(f"s_cbranch_scc1 {tag}_D")
    lane_id(a, vT)
    a(f"s_and_b32 s{sA}, s3, 7")
    a(f"s_lshl_b32 s{sA}, s{sA}, 10")
    a(f"s_add_u32 s{sA}, s{sA}, {base}")
    a(f"v_lshl_add_u32 v{vT}, v{vT}, 4, s{sA}")
    a(f"s_mov_b32 s{sB}, 0")
    keep = list(a.vm)
    a.label(f"{tag}_L")
    a(f"buffer_load_dwordx4 {vr(FR,4)}, v{vT}, {sr(sFLG,4)}, 0 offen sc1")
    a("s_waitcnt vmcnt(0)")
    for j in range(4):
        a(f"v_xor_b32 v{FR+j}, s{sTAG}, v{FR+j}")
    a(f"v_or_b32 v{FR}, v{FR}, v{FR+1}")
    a(f"v_or3_b32 v{FR}, v{FR}, v{FR+2}, v{FR+3}")
    a(f"v_cmp_ne_u32 vcc, 0, v{FR}")
    if not force:
        a(f"s_cbranch_vccz {tag}_D")
    a("s_sleep 2")
    a(f"s_add_u32 s{sB}, s{sB}, 1")
    a(f"s_cmp_lt_u32 s{sB}, {3 if force else POLL_LIMIT}")
    a(f"s_cbranch_scc1 {tag}_L")
    a(f"v_mov_b32 v{vT}, {fbaddr}")
    a(f"v_mov_b32 v{vT+1}, 1")
    a(f"ds_write_b32 v{vT}, v{vT+1}")
    a.vm = keep
    a.label(f"{tag}_D")
    wg_sync(a)
    a(f"v_mov_b32 v{vT+3}, {fbaddr}")
    a(f"ds_read_b32 v{vT+3}, v{vT+3}", "fb")


def init_lists(a, tag, bins):
    for j in range(4):
        a(f"v_mov_b32 v{MSG+j}, 0")
        a(f"v_mov_b32 v{MSG+4+j}, 0x80808080")
    a(f"v_lshlrev_b32 v{vT}, 4, v{tid}")
    tails = []
    regions = [(L_AGM, 4 * AGM_W, MSG), (L_SEL, 4 * SEL_W, MSG + 4), (L_SRC, 4 * SRC_W, MSG)]
    if bins:
        regions.append((L_BIN, 528, MSG))
    for off, n, val in regions:
        for p in range(n // 8192):
            a(f"ds_write_b128 v{vT}, {vr(val,4)} offset:{off + 8192*p}")
        tails.append(((n % 8192) // 16, off + n // 8192 * 8192, val))
    for cnt, off, val in sorted(tails, reverse=True):
        a(f"v_cmp_gt_u32 vcc, {cnt}, v{tid}")
        a("s_mov_b64 exec, vcc")
        a(f"s_cbranch_execz {tag}")
        a(f"ds_write_b128 v{vT}, {vr(val,4)} offset:{off}")
    a.label(tag)
    a("s_mov_b64 exec, -1")


def init_luts(a):
    t0, t1 = vT + 1, vT + 2
    a(f"v_cmp_gt_u32 vcc, 256, v{tid}")
    a("s_mov_b64 exec, vcc")
    a("s_cbranch_execz K_L1")
    a(f"v_and_b32 v{t0}, 15, v{tid}")
    for b in range(4, 8):
        a(f"v_bfe_u32 v{t1}, v{tid}, {b}, 1")
        a(f"s_mov_b32 s{sA}, {INC[b]}")
        a(f"v_mad_u32_u24 v{t0}, v{t1}, s{sA}, v{t0}")
    a(f"v_lshlrev_b32 v{t0}, 4, v{t0}")
    a(f"v_lshl_or_b32 v{t1}, v{tid}, 15, v{tid}")
    for m in range(4):
        a(f"v_and_b32 v{MSG+m}, {0x10001 << (2*m)}, v{t1}")
        a(f"v_mul_u32_u24 v{MSG+m}, {0x3F80 >> (2*m)}, v{MSG+m}")
    a(f"ds_write_b128 v{t0}, {vr(MSG,4)} offset:{L_LUT2}")
    a(f"v_lshrrev_b32 v{t0}, 2, v{tid}")
    a(f"v_and_b32 v{t1}, 3, v{tid}")
    a(f"v_lshrrev_b32 v{MSG+4}, 1, v{t0}")
    a(f"v_cmp_eq_u32 vcc, v{MSG+4}, v{t1}")
    a(f"v_and_b32 v{t0}, 1, v{t0}")
    a(f"v_lshlrev_b32 v{t0}, 4, v{t0}")
    a(f"v_mov_b32 v{t1}, 0x3f80")
    a(f"v_lshlrev_b32 v{t0}, v{t0}, v{t1}")
    a(f"v_cndmask_b32 v{t0}, 0, v{t0}, vcc")
    a(f"v_lshlrev_b32 v{t1}, 2, v{tid}")
    a(f"v_mov_b32 v{MSG+4}, 0")
    a(f"v_cmp_gt_u32 vcc, 144, v{tid}")
    a("s_mov_b64 exec, vcc")
    a("s_cbranch_execz K_L1")
    a(f"ds_write_b32 v{t1}, v{MSG+4} offset:{L_BIN}")
    a(f"v_cmp_gt_u32 vcc, 36, v{tid}")
    a("s_mov_b64 exec, vcc")
    a("s_cbranch_execz K_L1")
    a(f"ds_write_b32 v{t1}, v{t0} offset:{L_LUT1}")
    a.label("K_L1")
    a("s_mov_b64 exec, -1")


def lane_consts(a):
    ln, r, h, z = vT + 3, vT, vT + 1, vT + 2
    lane_id(a, ln)
    a(f"v_and_b32 v{r}, 31, v{ln}")
    a(f"v_lshrrev_b32 v{h}, 5, v{ln}")
    a(f"v_bfe_u32 v{z}, v{ln}, 1, 3")
    a(f"v_xor_b32 v{z}, v{z}, v{h}")
    a(f"v_lshlrev_b32 v{z}, 4, v{z}")
    a(f"v_lshl_add_u32 v{z}, v{r}, 7, v{z}")
    a(f"v_add_u32 v{vFA}, s{sRING}, v{z}")
    for i, c in ((1, 2), (2, 4), (3, 6)):
        a(f"v_xor_b32 v{vFA+i}, {c << 4}, v{vFA}")
    a(f"v_lshrrev_b32 v{z}, 4, v{ln}")
    a(f"v_and_b32 v{vLC}, 7, v{ln}")
    a(f"v_xor_b32 v{vLC}, v{vLC}, v{z}")
    a(f"v_lshlrev_b32 v{vLC}, 4, v{vLC}")
    a(f"v_xor_b32 v{vLC+1}, 64, v{vLC}")
    a(f"v_bfe_u32 v{z}, v{r}, 3, 1")
    a(f"v_and_b32 v{vIX}, 3, v{r}")
    a(f"v_lshl_add_u32 v{z}, v{z}, 2, v{vIX}")
    a(f"v_lshlrev_b32 v{z}, 4, v{z}")
    a(f"v_lshrrev_b32 v{vIX}, 4, v{r}")
    a(f"v_cmp_eq_u32 vcc, v{vIX}, v{h}")
    a(f"v_mov_b32 v{h}, 128")
    a(f"v_cndmask_b32 v{z}, v{h}, v{z}, vcc")
    a(f"v_and_b32 v{r}, 4, v{r}")
    a(f"v_cmp_eq_u32 vcc, 0, v{r}")
    a(f"v_cndmask_b32 v{vIX}, v{h}, v{z}, vcc")
    a(f"v_cndmask_b32 v{vIX+1}, v{z}, v{h}, vcc")


def tr_bases(a):
    ln, r, u = vT + 3, vT, vT + 1
    lane_id(a, ln)
    a(f"v_bfe_u32 v{r}, v{ln}, 2, 2")
    a(f"v_lshrrev_b32 v{u}, 5, v{ln}")
    a(f"v_lshl_add_u32 v{u}, v{u}, 3, v{r}")
    a(f"v_lshlrev_b32 v{vTR}, 8, v{u}")
    a(f"s_lshl_b32 s{sA}, s{sFH}, 1")
    a(f"v_xor_b32 v{r}, s{sA}, v{r}")
    a(f"v_lshl_add_u32 v{vTR}, v{r}, 6, v{vTR}")
    a(f"v_and_b32 v{u}, 1, v{ln}")
    a(f"v_lshl_add_u32 v{vTR}, v{u}, 5, v{vTR}")
    a(f"v_bfe_u32 v{u}, v{ln}, 4, 1")
    a(f"v_lshl_add_u32 v{vTR}, v{u}, 4, v{vTR}")
    a(f"v_bfe_u32 v{u}, v{ln}, 1, 1")
    a(f"v_lshl_add_u32 v{vTR}, v{u}, 3, v{vTR}")
    a(f"v_add_u32 v{vTR}, {L_W}, v{vTR}")
    a(f"v_xor_b32 v{vTR+1}, 64, v{vTR}")


def weight_offset(a):
    q, p = vT, vT + 1
    lane_id(a, p)
    a(f"v_lshrrev_b32 v{q}, 4, v{p}")
    a(f"v_and_b32 v{p}, 15, v{p}")
    a(f"v_lshlrev_b32 v{vWO}, 2, v{q}")
    a(f"v_xor_b32 v{vWO}, v{vWO}, v{p}")
    a(f"v_lshlrev_b32 v{vWO}, 4, v{vWO}")
    a(f"v_lshl_add_u32 v{vWO}, v{q}, 8, v{vWO}")
    a(f"s_lshl_b32 s{sA}, s{sW}, 12")
    a(f"v_add_u32 v{vWO}, s{sA}, v{vWO}")


def stage_matrix(a, ptr, size, row, half, tag):
    srd(a, sTA, ptr, size)
    a(f"s_lshl_b32 s{sA}, s{sW}, 12")
    a(f"s_mov_b32 s{sC}, {row * 256}")
    a(f"s_add_u32 m0, s{sA}, {L_W + 32768 * half}")
    for i in range(4):
        a(f"buffer_load_dwordx4 v{vWO}, {sr(sTA,4)}, s{sC} offen offset:{1024*i} lds", tag)


def stage_weights(a, grow, pother, tag):
    stage_matrix(a, pother, 32768, 0, 1, tag)
    stage_matrix(a, pG, 272 * 256, grow, 0, tag)


def last_wave_flag(a, cnt, base, sid, tag):
    a(f"v_mov_b32 v{vT}, {cnt}")
    a(f"v_mov_b32 v{vT+1}, 1")
    a("s_mov_b64 exec, 1")
    a(f"ds_add_rtn_u32 v{vT+2}, v{vT}, v{vT+1}", "sg")
    a("s_mov_b64 exec, -1")
    a.wait_lg("sg")
    a(f"v_readfirstlane_b32 s{sA}, v{vT+2}")
    a(f"s_cmp_lg_u32 s{sA}, 7")
    a(f"s_cbranch_scc1 {tag}")
    put_flag(a, base, sTAG, sid)
    a.label(tag)


def stage_x(a, snode, tag):
    q, p, b = vT, vT + 1, vT + 2
    a(f"v_mov_b32 v{vBIG}, {BIGOFF}")
    lane_id(a, p)
    a(f"v_lshrrev_b32 v{q}, 4, v{p}")
    a(f"v_and_b32 v{p}, 15, v{p}")
    a(f"s_lshl_b32 s{sA}, s{sFH}, 4")
    a(f"s_add_u32 s{sB}, s{sA}, s{snode}")
    a(f"v_add_lshl_u32 v{b}, v{q}, s{sB}, 8")
    a(f"s_sub_u32 s{sB}, s{sWSZ0}, s{sA}")
    a(f"s_lshl_b32 s{sA}, s{sW}, 12")
    a(f"s_add_u32 m0, s{sA}, {L_X}")
    for i in range(4):
        a(f"v_add_u32 v{vT+3}, {4*i}, v{q}")
        if i >= 2:
            a(f"v_cmp_le_u32 vcc, s{sB}, v{vT+3}")
        a(f"v_xor_b32 v{vT+3}, v{vT+3}, v{p}")
        a(f"v_lshl_add_u32 v{vT+3}, v{vT+3}, 4, v{b}")
        if i >= 2:
            a(f"v_cndmask_b32 v{vT+3}, v{vT+3}, v{vBIG}, vcc")
        a(f"buffer_load_dwordx4 v{vT+3}, {sr(sX,4)}, 0 offen offset:{1024*i} lds", tag)


def read_x(a, swin):
    l, u, b = vT, vT + 1, vT + 2
    lane_id(a, l)
    a(f"v_and_b32 v{u}, 15, v{l}")
    a(f"v_lshrrev_b32 v{b}, 5, v{l}")
    a(f"v_xor_b32 v{u}, v{u}, v{b}")
    a(f"v_lshlrev_b32 v{u}, 4, v{u}")
    a(f"v_and_b32 v{l}, 31, v{l}")
    a(f"v_lshl_add_u32 v{b}, v{l}, 8, v{u}")
    a(f"s_lshl_b32 s{sA}, s{swin}, 13")
    a(f"s_add_u32 s{sA}, s{sA}, {L_X}")
    a(f"v_add_u32 v{b}, s{sA}, v{b}")
    for kk in range(8):
        a(f"v_xor_b32 v{u}, {kk << 5}, v{b}")
        a(f"ds_read_b128 {vr(XF+4*kk,4)}, v{u}", "xf")


def gemm_pair(a, f, d0, d1, w_first, hooks=None):
    hooks = hooks or {}

    def rd(kk):
        for m in range(2):
            for q in range(2):
                a(f"ds_read_b64_tr_b16 {vr(SEL + 8*(kk & 1) + 4*m + 2*q, 2)}, v{vTR+f} "
                  f"offset:{32768*m + (16*kk + 4*q)*256}", f"w{kk}")
    rd(0)
    rd(1)
    for kk in range(8):
        a.wait_lg(f"w{kk}")
        for m, d in enumerate((d0, d1)):
            w = SEL + 8 * (kk & 1) + 4 * m
            x, y = (w, XF + 4*kk) if w_first[m] else (XF + 4*kk, w)
            a(mfma(d, x, y, None if kk == 0 else d))
        if kk + 2 < 8:
            rd(kk + 2)
        if kk in hooks:
            hooks[kk]()


def line_addrs(a, wr, rd, go, sbase, snode, shift, rows, ssub, swsz):
    l, n, h = vT, vT + 1, vT + 2
    lane_id(a, l)
    a(f"v_and_b32 v{n}, {rows - 1}, v{l}")
    a(f"v_lshrrev_b32 v{h}, 5, v{l}")
    a(f"v_lshlrev_b32 v{h}, 1, v{h}")
    a(f"v_and_b32 v{wr}, 7, v{l}")
    a(f"v_xor_b32 v{wr}, v{wr}, v{h}")
    a(f"v_lshlrev_b32 v{wr}, 4, v{wr}")
    a(f"v_lshl_add_u32 v{wr}, v{n}, 7, v{wr}")
    a(f"v_add_u32 v{wr}, s{sbase}, v{wr}")
    for i, c in ((1, 1), (2, 4), (3, 5)):
        a(f"v_xor_b32 v{wr+i}, {c << 4}, v{wr}")
    a(f"v_lshl_add_u32 v{rd}, v{l}, 4, s{sbase}")
    a(f"v_lshrrev_b32 v{n}, 3, v{l}")
    a(f"v_and_b32 v{h}, 7, v{l}")
    a(f"v_xor_b32 v{h}, v{h}, v{n}")
    a(f"v_add_lshl_u32 v{go}, v{n}, s{snode}, {shift}")
    a(f"v_lshl_add_u32 v{go}, v{h}, 4, v{go}")
    a(f"v_add_u32 v{go}, s{ssub}, v{go}")
    a(f"v_add_u32 v{go+1}, {8 << shift}, v{go}")
    a(f"v_add_u32 v{go+2}, {16 << shift}, v{go}")
    a(f"s_sub_u32 s{sA}, s{swsz}, 24")
    a(f"s_lshl_b32 s{sA}, s{sA}, 3")
    a(f"v_cmp_gt_u32 vcc, s{sA}, v{l}")
    a(f"v_add_u32 v{go+3}, {24 << shift}, v{go}")
    a(f"v_mov_b32 v{vBIG}, {BIGOFF}")
    a(f"v_cndmask_b32 v{go+3}, v{vBIG}, v{go+3}, vcc")


T_WR, T_RD, T_LO = MSG, MSG + 4, MSG + 5


def table_setup(a, snode, scratch):
    a(f"s_lshl_b32 s{sC}, s{sW}, 12")
    a(f"s_add_u32 s{sC}, s{sC}, {scratch}")
    line_addrs(a, T_WR, T_RD, vVO, sC, snode, 9, 32, sFT0, sWSZ0)
    a(f"v_mov_b32 v{T_LO}, 0xff7f0000")


def table_part(a, f, pk, before_store=None, hooks=None, hold=None):
    DB, DV = ACC, ACC + 16
    gemm_pair(a, f, DB, DV, (True, True), hooks)
    a(f"s_mov_b32 s{sB}, 0x7f7f0000")
    if OPT["PRE"]:
        for m in range(8):
            a(f"v_cvt_pk_bf16_f32 v{pk+8+m}, v{DV+2*m}, v{DV+2*m+1}")
        for m in range(8):
            a(f"v_lshlrev_b32 v{DV+2*m}, 16, v{pk+8+m}")
            a(f"v_and_b32 v{DV+2*m+1}, 0xffff0000, v{pk+8+m}")
    for j in range(16):
        a(f"v_mul_f32 v{DB+j}, s{sNL}, v{DB+j}")
    for j in range(16):
        a(f"v_rcp_f32 v{DV+j}, v{DV+j}")
    for m in range(8):
        a(f"v_cvt_pk_bf16_f32 v{pk+m}, v{DB+2*m}, v{DB+2*m+1}")
    for j in range(16):
        a(f"v_med3_f32 v{DV+j}, v{DV+j}, v{T_LO}, s{sB}")
    for m in range(8):
        a(f"v_cvt_pk_bf16_f32 v{pk+8+m}, v{DV+2*m}, v{DV+2*m+1}")
    for i in range(4):
        a(f"ds_write_b128 v{T_WR+i}, {vr(pk+4*i,4)}")
    buf = hold or ACC
    for i in range(4):
        a(f"ds_read_b128 {vr(buf+4*i,4)}, v{T_RD} offset:{1024*i}", f"lr{i}")
    if before_store:
        before_store()

    def put():
        for i in range(4):
            a.wait_lg(f"lr{i}")
            a(f"buffer_store_dwordx4 {vr(buf+4*i,4)}, v{vVO+i}, {sr(sTAB,4)}, 0 offen offset:{128*f} sc1", "ts")
    if hold:
        return put
    put()


def edge_weights(a):
    for f in range(2):
        a(f"v_add_u32 v{vT+f}, {(L_C - L_W) & 0xffffffff}, v{vTR+f}")
        for q in range(2):
            a(f"ds_read_b64_tr_b16 {vr(CW + 4*f + 2*q, 2)}, v{vT+f} offset:{1024*q}")
    a.wait_all(vm=False)
    for m in range(8):
        a(f"v_lshlrev_b32 v{vT}, 16, v{CW+m}")
        a(f"v_and_b32 v{vT+1}, 0xffff0000, v{CW+m}")
        a(f"v_mul_f32 v{vT}, s{sNL}, v{vT}")
        a(f"v_mul_f32 v{vT+1}, s{sNL}, v{vT+1}")
        a(f"v_cvt_pk_bf16_f32 v{CW+m}, v{vT}, v{vT+1}")


def node_proj(a, hooks0=None, hooks1=None):
    for f in range(2):
        gemm_pair(a, f, ACC + 16 * f, AGG + 16 * f, (False, True), (hooks0, hooks1)[f])
    for f in range(2):
        d = ACC + 16 * f
        for j in range(16):
            a(f"v_mul_f32 v{d+j}, s{sNL}, v{d+j}")
        for m in range(8):
            a(f"v_cvt_pk_bf16_f32 v{XA+8*f+m}, v{d+2*m}, v{d+2*m+1}")


def sort_job(a, shadow, stage1, stage2):
    vD, vS, vB, vR, vK, vH, vO, u0, u1 = EF, EF + 4, EF + 8, EF + 12, EF + 16, EF + 24, EF + 40, EF + 41, EF + 42
    vP = EF + 44

    def first_only(fn, tag):
        a(f"s_cmp_lg_u32 s{sHELP}, 0")
        a(f"s_cbranch_scc1 {tag}")
        fn()
        a.label(tag)
    srd(a, sTA, pDST, E * 4)
    srd(a, sTB, pSRC, E * 4)
    a(f"s_mul_i32 s{sA}, s{sJOB}, {CH * 4}")
    a(f"v_lshl_add_u32 v{vO}, v{tid}, 4, s{sA}")
    a(f"v_mov_b32 v{u0}, {BIGOFF}")
    a(f"v_cmp_gt_u32 vcc, {CH // 4}, v{tid}")
    a(f"v_cndmask_b32 v{vO}, v{u0}, v{vO}, vcc")
    a(f"buffer_load_dwordx4 {vr(vD,4)}, v{vO}, {sr(sTA,4)}, 0 offen", "d")
    a(f"buffer_load_dwordx4 {vr(vS,4)}, v{vO}, {sr(sTB,4)}, 0 offen", "s")
    a(f"v_cmp_gt_u32 vcc, {E * 4}, v{vO}")
    a("s_mov_b64 s[0:1], vcc")
    a(f"v_lshlrev_b32 v{u0}, 2, v{tid}")
    a(f"v_mov_b32 v{u1}, 0")
    a(f"ds_write_b32 v{u0}, v{u1} offset:{L_HIST}")
    a("s_barrier")
    a(f"s_cmp_eq_u32 s{sHELP}, 0")
    a("s_cbranch_scc1 S_FIRST")
    a("s_waitcnt vmcnt(0)")
    a("s_branch S_GO")
    a.label("S_FIRST")
    shadow()
    a.label("S_GO")
    wg_sync(a)
    a(f"s_mov_b32 s{sA}, {DIVB}")
    a(f"s_mov_b32 s{sB}, {WOFFPK}")
    a.wait_vm("d")
    stamp(a, 1)
    fstamp(a, 1, 1)
    for k in range(4):
        a(f"v_mul_u32_u24 v{vB+k}, s{sA}, v{vD+k}")
        a(f"v_lshrrev_b32 v{vB+k}, 20, v{vB+k}")
        a(f"v_mul_u32_u24 v{u0}, {NB}, v{vB+k}")
        a(f"v_sub_u32 v{vD+k}, v{vD+k}, v{u0}")
        a(f"v_lshlrev_b32 v{vB+k}, 2, v{vB+k}")
    a(f"v_mov_b32 v{u1}, 1")
    a("s_mov_b64 exec, s[0:1]")
    a("s_cbranch_execz S_NOH")
    for k in range(4):
        a(f"ds_add_rtn_u32 v{vR+k}, v{vB+k}, v{u1} offset:{L_HIST}")
    a.label("S_NOH")
    a("s_mov_b64 exec, -1")
    a.wait_vm("s")
    first_only(stage1, "S_H1")
    for k in range(4):
        a(f"v_mul_u32_u24 v{u0}, {WINM}, v{vD+k}")
        a(f"v_lshrrev_b32 v{u0}, 13, v{u0}")
        a(f"v_lshlrev_b32 v{u1}, 3, v{u0}")
        a(f"v_bfe_u32 v{u1}, s{sB}, v{u1}, 8")
        a(f"v_sub_u32 v{u1}, v{vD+k}, v{u1}")
        a(f"v_lshl_or_b32 v{vK+2*k}, v{u1}, 15, v{vS+k}")
        a(f"v_mul_u32_u24 v{u1}, {SBIN}, v{vS+k}")
        a(f"v_lshrrev_b32 v{u1}, 20, v{u1}")
        a(f"v_lshl_add_u32 v{u1}, v{u0}, 5, v{u1}")
        a(f"v_lshl_or_b32 v{vK+2*k}, v{u1}, 25, v{vK+2*k}")
        a(f"v_lshlrev_b32 v{vK+2*k+1}, 3, v{vO}")
        a(f"v_add_u32 v{vK+2*k+1}, {32*k}, v{vK+2*k+1}")
    wg_sync(a)
    fstamp(a, 1, 2)
    lane_id(a, u0)
    a(f"v_lshlrev_b32 v{u0}, 4, v{u0}")
    a(f"ds_read_b128 {vr(vH,4)}, v{u0} offset:{L_HIST}")
    a.wait_all(vm=False)
    a(f"v_add_u32 v{vH+4}, v{vH}, v{vH+1}")
    a(f"v_add_u32 v{vH+5}, v{vH+4}, v{vH+2}")
    a(f"v_add_u32 v{vH+6}, v{vH+5}, v{vH+3}")
    a(f"v_mov_b32 v{vH+7}, v{vH+6}")
    scan64(a, vH + 7)
    a(f"v_sub_u32 v{vH+8}, v{vH+7}, v{vH+6}")
    a(f"v_add_u32 v{vH+9}, v{vH+8}, v{vH}")
    a(f"v_add_u32 v{vH+10}, v{vH+8}, v{vH+4}")
    a(f"v_add_u32 v{vH+11}, v{vH+8}, v{vH+5}")
    a(f"ds_write_b128 v{u0}, {vr(vH+8,4)} offset:{L_START}")
    for k in range(4):
        a(f"ds_read_b32 v{vP+k}, v{vB+k} offset:{L_START}")
    first_only(stage2, "S_H2")
    a(f"s_cmp_lg_u32 s{sW}, 7")
    a("s_cbranch_scc1 S_NOC")
    for k in range(4):
        a(f"v_lshl_or_b32 v{vH+12+k}, v{vH+k}, 16, v{vH+8+k}")
    a(f"s_lshl_b32 s{sA}, s{sJOB}, 10")
    a(f"v_add_u32 v{u0}, s{sA}, v{u0}")
    a(f"buffer_store_dwordx4 {vr(vH+12,4)}, v{u0}, {sr(sCELL,4)}, 0 offen sc1")
    a.label("S_NOC")
    a.wait_all(vm=False)
    for k in range(4):
        a(f"v_add_lshl_u32 v{vP+k}, v{vP+k}, v{vR+k}, 3")
    a(f"s_cmp_eq_u32 s{sHELP}, 0")
    a("s_cbranch_scc1 S_PUB")
    a(f"s_mul_i32 s{sA}, s{sJOB}, {RSTR}")
    a(f"s_lshl_b32 s{sB}, s2, 2")
    for k in range(4):
        a(f"v_cmp_eq_u32 vcc, s{sB}, v{vB+k}")
        a(f"v_add_u32 v{vP+k}, s{sA}, v{vP+k}")
        a("s_and_b64 exec, vcc, s[0:1]")
        a(f"s_cbranch_execz S_P{k}")
        a(f"buffer_store_dwordx2 {vr(vK+2*k,2)}, v{vP+k}, {sr(sREC,4)}, 0 offen sc1")
        a.label(f"S_P{k}")
        a("s_mov_b64 exec, -1")
    a("s_waitcnt vmcnt(0)")
    a("s_barrier")
    a("s_branch K_HELP1N")
    a.label("S_PUB")
    a("s_mov_b64 exec, s[0:1]")
    a("s_cbranch_execz S_NOS")
    for k in range(4):
        a(f"ds_write_b64 v{vP+k}, {vr(vK+2*k,2)} offset:{L_TMP}")
    a.label("S_NOS")
    a("s_mov_b64 exec, -1")
    wg_sync(a)
    fstamp(a, 1, 3)
    a(f"v_lshlrev_b32 v{u0}, 4, v{tid}")
    a(f"ds_read_b128 {vr(vD,4)}, v{u0} offset:{L_TMP}", "r0")
    a(f"ds_read_b128 {vr(vS,4)}, v{u0} offset:{L_TMP + 8192}", "r1")
    a(f"s_mul_i32 s{sA}, s{sJOB}, {RSTR}")
    a(f"v_add_u32 v{u0}, s{sA}, v{u0}")
    a(f"v_add_u32 v{u1}, 8192, v{u0}")
    a(f"v_mov_b32 v{vB}, {BIGOFF}")
    a(f"v_cmp_gt_u32 vcc, {(RSTR - 8192) // 16}, v{tid}")
    a(f"v_cndmask_b32 v{u1}, v{vB}, v{u1}, vcc")
    a.wait_lg("r0")
    a(f"buffer_store_dwordx4 {vr(vD,4)}, v{u0}, {sr(sREC,4)}, 0 offen sc1")
    a.wait_lg("r1")
    a(f"buffer_store_dwordx4 {vr(vS,4)}, v{u1}, {sr(sREC,4)}, 0 offen sc1")
    fstamp(a, 1, 4)
    a("s_waitcnt vmcnt(2)")
    a("s_barrier")
    fstamp(a, 1, 5)


def load_records(a, tag, slow=False):
    a(f"v_lshrrev_b32 v{vT+2}, 16, v{vCELL}")
    a(f"v_min_u32 v{vN}, s{sR}, v{vT+2}")
    if slow:
        a(f"s_lshr_b32 s{sA}, s{sPAR}, 1")
        a(f"v_xor_b32 v{vT}, s{sPAR}, v{tid}")
        a(f"v_and_b32 v{vT}, s{sA}, v{vT}")
        a(f"v_cmp_eq_u32 vcc, 0, v{vT}")
        a(f"v_cndmask_b32 v{vN}, 0, v{vN}, vcc")
    a(f"v_cmp_lt_u32 vcc, v{vN}, v{vT+2}")
    a(f"s_cmp_lg_u64 vcc, 0")
    a(f"s_cselect_b32 s{sMORE}, 1, 0")
    a(f"v_and_b32 v{vT}, 0xffff, v{vCELL}")
    a(f"v_lshrrev_b32 v{vT+1}, 1, v{tid}")
    a(f"v_mul_u32_u24 v{vT+1}, {RSTR}, v{vT+1}")
    a(f"v_lshl_add_u32 v{vT}, v{vT}, 3, v{vT+1}")
    for i in range(RMAX // 2):
        a(f"v_cmp_lt_u32 vcc, {2*i}, v{vN}")
        a("s_mov_b64 exec, vcc")
        a(f"s_cbranch_execz {tag}")
        a(f"buffer_load_dwordx4 {vr(EF+4*i,4)}, v{vT}, {sr(sREC,4)}, 0 offen offset:{16*i}")
    a.label(tag)
    a("s_mov_b64 exec, -1")


def e_load(a, i):
    a(f"buffer_load_dwordx4 {vr(EF+4*i,4)}, v{FR+i}, {sr(sEA,4)}, 0 offen", f"eu{i}")


def e_load_late(a, t):
    a(f"buffer_load_dwordx4 {vr(EF+4*t,4)}, v{EF+4*t}, {sr(sEA,4)}, 0 offen", f"e{t}")


def e_exchange_write(a):
    lane_id(a, vT)
    a(f"s_xor_b32 s{sA}, s{sW}, 1")
    a(f"s_mul_i32 s{sA}, s{sA}, {RW}")
    a(f"s_add_u32 s{sA}, s{sA}, {L_RING}")
    a(f"v_lshl_add_u32 v{vT}, v{vT}, 4, s{sA}")
    for i in range(NUP // 2):
        a(f"ds_write_b128 v{vT}, {vr(EF+4*i,4)} offset:{1024*i}")


def e_exchange_read(a):
    lane_id(a, vT)
    a(f"v_lshl_add_u32 v{vT}, v{vT}, 4, s{sRING}")
    for i in range(NUP // 2):
        a(f"ds_read_b128 {vr(EF+2*NUP+4*i,4)}, v{vT} offset:{1024*i}")
    a.wait_all(vm=False)
    a(f"s_cmp_eq_u32 s{sFH}, 0")
    a("s_cbranch_scc1 K_NOSWAP")
    for j in range(2 * NUP):
        a(f"v_swap_b32 v{EF+j}, v{EF+2*NUP+j}")
    a.label("K_NOSWAP")


def e_reg(t):
    return EF + 2 * NUP * (t & 1) + 4 * (t >> 1) if t < NUP else EF + 4 * t


def window_regs(a, swin, snode, swsz):
    a(f"s_lshl_b32 s{sA}, s{swin}, 3")
    a(f"s_lshr_b32 s{sC}, {WOFFPK}, s{sA}")
    a(f"s_and_b32 s{sC}, s{sC}, 0xff")
    a(f"s_lshr_b32 s{swsz}, {WSZ[0] | WSZ[1] << 8 | WSZ[2] << 16 | WSZ[3] << 24}, s{sA}")
    a(f"s_and_b32 s{swsz}, s{swsz}, 0xff")
    a(f"s_mul_i32 s{snode}, s2, {NB}")
    a(f"s_add_u32 s{snode}, s{snode}, s{sC}")


def pick_window(a):
    k = [sTA, sTA + 1, sTA + 2, sTA + 3]
    for w in range(4):
        a(f"s_lshl_b32 s{k[w]}, s{sN0+w}, 2")
        a(f"s_or_b32 s{k[w]}, s{k[w]}, {w}")
    for x, y in ((0, 1), (2, 3), (0, 2), (1, 3), (1, 2)):
        a(f"s_max_u32 s{sA}, s{k[x]}, s{k[y]}")
        a(f"s_min_u32 s{k[y]}, s{k[x]}, s{k[y]}")
        a(f"s_mov_b32 s{k[x]}, s{sA}")
    a(f"s_cmp_eq_u32 s{sWIN0}, 1")
    a(f"s_cselect_b32 s{sA}, s{k[1]}, s{k[0]}")
    a(f"s_cmp_eq_u32 s{sWIN0}, 2")
    a(f"s_cselect_b32 s{sA}, s{k[3]}, s{sA}")
    a(f"s_cmp_eq_u32 s{sWIN0}, 3")
    a(f"s_cselect_b32 s{sA}, s{k[2]}, s{sA}")
    a(f"s_and_b32 s{sWIN}, s{sA}, 3")


def list_addrs(a):
    ln, u = vT, vT + 1
    lane_id(a, ln)
    a(f"s_mul_i32 s{sA}, s{sWIN}, {SEL_W}")
    a(f"s_add_u32 s{sA}, s{sA}, {L_SEL}")
    a(f"v_and_b32 v{u}, 31, v{ln}")
    a(f"v_lshl_add_u32 v{vSA}, v{u}, 2, s{sA}")
    a(f"v_lshrrev_b32 v{u}, 5, v{ln}")
    a(f"v_add_u32 v{vSA}, v{u}, v{vSA}")
    a(f"s_mul_i32 s{sA}, s{sWIN}, {AGM_W}")
    a(f"s_add_u32 s{sA}, s{sA}, {L_AGM}")
    a(f"v_lshl_add_u32 v{vGA}, v{ln}, 2, s{sA}")
    a(f"s_mul_i32 s{sA}, s{sWIN}, {SRC_W}")
    a(f"s_add_u32 s{sA}, s{sA}, {L_SRC}")
    a(f"v_lshrrev_b32 v{u}, 3, v{ln}")
    a(f"v_lshl_add_u32 v{vIA}, v{u}, 3, s{sA}")


def e_prefetch(a, k, half, tag):
    a(f"v_bfe_u32 v{vT}, v{EF+2*k}, 25, 5")
    a(f"v_cmp_gt_u32 vcc, {OPT['PFL']}, v{vT}")
    a(f"v_cmp_lt_u32 s[0:1], {k}, v{vN}")
    a("s_and_b64 vcc, vcc, s[0:1]")
    if half:
        a("s_and_b32 vcc_lo, vcc_lo, 0x55555555")
        a("s_and_b32 vcc_hi, vcc_hi, 0x55555555")
    a("s_mov_b64 exec, vcc")
    a(f"s_cbranch_execz {tag}")
    a(f"buffer_load_dword v{FR+15}, v{EF+2*k+1}, {sr(sEA,4)}, 0 offen")
    a.label(tag)
    a("s_mov_b64 exec, -1")


def build(a):
    RK = EF + 2 * RMAX
    one = vT + 2
    pf = OPT["PF"]
    if "a" in pf or "A" in pf:
        e_prefetch(a, 1 if "c" in pf.lower() else 0, "a" in pf, "B_PF0")
    a(f"v_mov_b32 v{one}, 8")
    a(f"s_cmp_eq_u32 s{sMORE}, 0")
    a(f"s_cbranch_scc1 B_NM")
    a(f"v_mov_b32 v{vT}, {L_MORE}")
    a(f"ds_write_b32 v{vT}, v{one}")
    a.label("B_NM")
    for k in range(RMAX):
        a(f"v_cmp_lt_u32 vcc, {k}, v{vN}")
        a(f"v_lshrrev_b32 v{vT + (k & 1)}, 23, v{EF+2*k}")
        a("s_mov_b64 exec, vcc")
        a(f"s_cbranch_execz B_BD")
        a(f"ds_add_rtn_u32 v{RK+k}, v{vT + (k & 1)}, v{one} offset:{L_BIN}")
    a.label("B_BD")
    a("s_mov_b64 exec, -1")
    wg_sync(a)
    fstamp(a, 2, 6)
    if "b" in pf or "B" in pf:
        e_prefetch(a, 2 if "c" in pf.lower() else 1, "b" in pf, "B_PF1")
    ln = vT + 3
    lane_id(a, ln)
    a(f"v_lshlrev_b32 v{vT}, 3, v{ln}")
    a(f"ds_read_b64 {vr(MSG,2)}, v{vT} offset:{L_BIN}")
    a(f"v_mov_b32 v{MSG+2}, {L_MORE}")
    a(f"ds_read_b32 v{MSG+2}, v{MSG+2}")
    a(f"v_lshrrev_b32 v{ln}, 4, v{ln}")
    a(f"v_lshlrev_b32 v{ln}, 12, v{ln}")
    a(f"v_add_u32 v{ln}, {L_TMP}, v{ln}")
    a.wait_all(vm=False)
    a(f"v_add_u32 v{vT+1}, v{MSG}, v{MSG+1}")
    a(f"v_mov_b32 v{vT+2}, v{vT+1}")
    scan16(a, vT + 2)
    for w in range(4):
        a(f"v_readlane_b32 s{sN0+w}, v{vT+2}, {16*w + 15}")
    a(f"v_readfirstlane_b32 s{sMORE}, v{MSG+2}")
    a(f"v_sub_u32 v{vT+2}, v{vT+2}, v{vT+1}")
    a(f"v_add_u32 v{MSG+4}, v{vT+2}, v{ln}")
    a(f"v_add_u32 v{MSG+5}, v{MSG+4}, v{MSG}")
    a(f"ds_write_b64 v{vT}, {vr(MSG+4,2)} offset:{L_BST}")
    a(f"s_max_u32 s{sA}, s{sN0}, s{sN1}")
    a(f"s_max_u32 s{sB}, s{sN2}, s{sN3}")
    a(f"s_max_u32 s{sA}, s{sA}, s{sB}")
    a(f"s_cmp_gt_u32 s{sA}, {8 * 32 * TCAP}")
    a(f"s_cbranch_scc1 K_OVF")
    for g in range(RMAX // 4):
        a(f"v_cmp_lt_u32 vcc, {4*g}, v{vN}")
        for k in range(4):
            a(f"v_lshrrev_b32 v{MSG+k}, 23, v{EF + 2*(4*g + k)}")
        a("s_mov_b64 exec, vcc")
        a(f"s_cbranch_execz B_CD")
        for k in range(4):
            a(f"ds_read_b32 v{MSG+k}, v{MSG+k} offset:{L_BST}")
        a.wait_all(vm=False)
        for k in range(4):
            r = 4 * g + k
            if k:
                a(f"v_cmp_lt_u32 vcc, {r}, v{vN}")
            a(f"v_add_u32 v{MSG+k}, v{MSG+k}, v{RK+r}")
            if k:
                a("s_mov_b64 exec, vcc")
            a(f"ds_write_b64 v{MSG+k}, {vr(EF+2*r,2)}")
    a.label("B_CD")
    a("s_mov_b64 exec, -1")
    fstamp(a, 2, 8)
    a(f"v_add_u32 v{vCELL}, v{vCELL}, v{vN}")
    a(f"v_lshlrev_b32 v{vT}, 16, v{vN}")
    a(f"v_sub_u32 v{vCELL}, v{vCELL}, v{vT}")
    for w in range(4):
        a(f"s_lshr_b32 s{sN0+w}, s{sN0+w}, 3")
    if OPT["PAIR"]:
        a(f"s_cmp_lg_u32 s{sROUND}, 0")
        a("s_cbranch_scc1 B_KEEP")
        pick_window(a)
        a.label("B_KEEP")
    a(f"s_cmp_eq_u32 s{sWIN}, 1")
    a(f"s_cselect_b32 s{sNW}, s{sN1}, s{sN0}")
    a(f"s_cmp_eq_u32 s{sWIN}, 2")
    a(f"s_cselect_b32 s{sNW}, s{sN2}, s{sNW}")
    a(f"s_cmp_eq_u32 s{sWIN}, 3")
    a(f"s_cselect_b32 s{sNW}, s{sN3}, s{sNW}")
    a(f"s_add_u32 s{sNT}, s{sNW}, 31")
    a(f"s_lshr_b32 s{sNT}, s{sNT}, 5")
    wg_sync(a)
    a.vm = []
    stamp(a, 5)
    fstamp(a, 2, 9)
    ln = vT
    lane_id(a, ln)
    a(f"v_and_b32 v{vT+1}, 31, v{ln}")
    a(f"s_lshl_b32 s{sA}, s{sWIN}, 12")
    a(f"s_add_u32 s{sA}, s{sA}, {L_TMP + 4}")
    a(f"v_lshl_add_u32 v{vT+2}, v{vT+1}, 3, s{sA}")
    a(f"s_lshl_b32 s{sA}, s{sFH}, 8")
    a(f"v_add_u32 v{vT+3}, s{sA}, v{vT+2}")
    for i in range(NUP // 2):
        a(f"ds_read_b32 v{FR+i}, v{vT+3} offset:{512*i}", f"ei{i}")
    for t in range(NUP, TCAP):
        a(f"ds_read_b32 v{EF+4*t}, v{vT+2} offset:{256*t}", f"el{t}")
    a(f"v_lshrrev_b32 v{ln}, 5, v{ln}")
    a(f"v_lshlrev_b32 v{ln}, 4, v{ln}")
    a(f"v_sub_u32 v{vT+1}, s{sNW}, v{vT+1}")
    a(f"s_lshl_b32 s{sA}, s{sFH}, 5")
    a(f"v_subrev_u32 v{vT+3}, s{sA}, v{vT+1}")
    a(f"v_mov_b32 v{vT+2}, {BIGOFF}")
    for i in range(NUP // 2):
        a.wait_lg(f"ei{i}")
        a(f"v_cmp_lt_i32 vcc, {64*i}, v{vT+3}")
        a(f"v_add_u32 v{FR+i}, v{FR+i}, v{ln}")
        a(f"v_cndmask_b32 v{FR+i}, v{vT+2}, v{FR+i}, vcc")
        if i < OPT["E0"]:
            e_load(a, i)
    for t in range(NUP, TCAP):
        a.wait_lg(f"el{t}")
        a(f"v_cmp_lt_i32 vcc, {32*t}, v{vT+1}")
        a(f"v_add_u32 v{EF+4*t}, v{EF+4*t}, v{ln}")
        a(f"v_cndmask_b32 v{EF+4*t}, v{vT+2}, v{EF+4*t}, vcc")


def list_fields(a, tid, tag):
    c0, c1, c2, kv = vT + 1, vT + 2, vT + 3, vIX
    a(f"v_lshlrev_b32 v{c0}, 3, v{tid}")
    for j in range(4):
        a(f"ds_read_b32 v{MSG+j}, v{c0} offset:{L_TMP + 4096*j}")
    a(f"v_and_b32 v{c0}, 7, v{tid}")
    a(f"v_lshlrev_b32 v{c0}, 3, v{c0}")
    a(f"v_bfe_u32 v{c1}, v{tid}, 3, 2")
    a(f"v_lshl_add_u32 v{c0}, v{c1}, 1, v{c0}")
    a(f"v_lshrrev_b32 v{c1}, 5, v{tid}")
    a(f"v_lshl_add_u32 v{c0}, v{c1}, 6, v{c0}")
    a(f"v_lshlrev_b32 v{c1}, 8, v{c1}")
    a(f"v_bfe_u32 v{c2}, v{tid}, 2, 1")
    a(f"v_lshl_add_u32 v{c1}, v{c2}, 7, v{c1}")
    a(f"v_bfe_u32 v{c2}, v{tid}, 3, 1")
    a(f"v_and_b32 v{kv}, 3, v{tid}")
    a(f"v_lshl_add_u32 v{kv}, v{c2}, 2, v{kv}")
    a(f"v_or_b32 v{kv}, 0x0c0c0c00, v{kv}")
    a(f"v_mov_b32 v{kv+1}, {INC[0] | INC[1] << 8 | INC[2] << 16 | INC[3] << 24}")
    a(f"s_mov_b32 s{sA}, {INC[4] | INC[5] << 8 | INC[6] << 16 | INC[7] << 24}")
    a(f"v_perm_b32 v{kv}, s{sA}, v{kv+1}, v{kv}")
    a(f"v_and_b32 v{c2}, 16, v{tid}")
    a(f"v_add_u32 v{c2}, 4, v{c2}")
    a(f"v_lshlrev_b32 v{kv}, v{c2}, v{kv}")
    a(f"v_lshlrev_b32 v{c2}, 2, v{tid}")
    a.wait_all(vm=False)
    for w in range(4):
        a(f"v_cmp_gt_u32 vcc, s{sN0+w}, v{tid}")
        a("s_mov_b64 exec, vcc")
        a(f"s_cbranch_execz {tag}{w}")
        r, d, u = MSG + w, MSG + 4, MSG + 5
        a(f"v_and_b32 v{u}, 0x7fff, v{r}")
        a(f"ds_write_b16 v{c0}, v{u} offset:{L_SRC + w*SRC_W}")
        a(f"v_bfe_u32 v{d}, v{r}, 15, 5")
        a(f"v_lshl_add_u32 v{u}, v{d}, 2, v{c1}")
        a(f"ds_add_u32 v{u}, v{kv} offset:{L_AGM + w*AGM_W}")
        a(f"v_and_b32 v{u}, 3, v{d}")
        a(f"v_mul_u32_u24 v{u}, 0x5555, v{u}")
        a(f"ds_write_b16 v{c2}, v{u} offset:{L_SEL + w*SEL_W + 2}")
        a(f"v_lshrrev_b32 v{u}, 4, v{d}")
        a(f"v_add_u32 v{u}, v{u}, v{c2}")
        a(f"v_and_b32 v{r}, 8, v{d}")
        a(f"v_lshlrev_b32 v{r}, 2, v{r}")
        a(f"v_and_b32 v{d}, 4, v{d}")
        a(f"v_lshl_or_b32 v{r}, v{d}, 4, v{r}")
        a(f"ds_write_b8 v{u}, v{r} offset:{L_SEL + w*SEL_W}")
        a.label(f"{tag}{w}")
        a("s_mov_b64 exec, -1")
    a.wait_all(vm=False)


def valu_stream(base):
    g, h = base, base + 16
    steps = []
    for j in range(20):
        st = []
        if j < 16:
            st.append(f"v_exp_f32 v{g+j}, v{g+j}")
        if 0 <= j - 1 < 16:
            st.append(f"v_fma_f32 v{g+j-1}, v{g+j-1}, v{h+j-1}, v{h+j-1}")
        if 0 <= j - 2 < 16 and not (OPT["CUT"] and j % 2):
            st.append(f"v_rcp_f32 v{g+j-2}, v{g+j-2}")
        if j - 3 >= 1 and (j - 3) % 2 == 1 and j - 3 < 16:
            m = (j - 4) // 2
            st.append(f"v_cvt_pk_bf16_f32 v{MSG+m}, v{g+2*m}, v{g+2*m+1}")
        steps.append(st)
    return steps


def dma_ops(v):
    st = v % NS
    return [(f"s_add_u32 m0, s{sRING}, {st*4096 + i*1024}",
             f"buffer_load_dwordx4 v{vVO+i}, {sr(sTAB,4)}, s{sFT1 if v & 1 else sFT0} offen lds", f"d{v}")
            for i in range(4)]


def issue_dma(a, v):
    ops = dma_ops(v)
    a(ops[0][0])
    for i, (m0w, ld, tg) in enumerate(ops):
        a("s_nop 0")
        a(ld, tg)
        if i + 1 < 4:
            a(ops[i + 1][0])


def voffs(a):
    for i in range(4):
        sel = " op_sel:[1,0,0,0]" if i & 1 else ""
        a(f"v_mad_u32_u16 v{vVO+i}, v{vIX + (i >> 1)}, s{s512}, v{vLC + (i & 1)}{sel}")


def frag_reads(v):
    return [(f"ds_read_b128 {vr(FR+4*i,4)}, v{vFA+i} offset:{(v % NS)*4096}", f"f{v}") for i in range(4)]


def main_mfmas(v):
    t, f = v >> 1, v & 1
    g = ACC + 32 * (v & 1)
    h = g + 16
    return [mfma(g, FR, ID, None), mfma(h, FR + 8, ID, None), mfma(g, FR + 4, ID + 4, g), mfma(h, FR + 12, ID + 4, h),
            mfma(g, e_reg(t), CW + 4*f, g),
            f"v_smfmac_f32_32x32x32_bf16 {vr(g, 16)}, {vr(SEL, 4)}, {vr(XA + 8*f, 8)}, v{SEL + 4}"]


def agg_mfmas(v):
    d = AGG + 16 * (v & 1)
    return [mfma(d, MSG, AOH, d), mfma(d, MSG + 4, AOH + 4, d)]


def rd_idx(a, t):
    a(f"ds_read_b64 {vr(vIX,2)}, v{vIA} offset:{64*t}", f"ix{t}")


def rd_sel_addr(a, t):
    a(f"ds_read_u8 v{vS0}, v{vSA} offset:{128*t}", f"sa{t}")


def rd_sel(a, t):
    a.wait_lg(f"sa{t}")
    a(f"ds_read_b128 {vr(SEL,4)}, v{vS0} offset:{L_LUT1}", f"s{t}")
    a(f"ds_read_u16 v{SEL+4}, v{vSI} offset:{128*t}", f"s{t}")


def rd_agg_addr(a, t):
    a(f"ds_read_u16 v{vG0}, v{vGA} offset:{256*t}", f"ga{t}")
    a(f"ds_read_u16 v{vG0+1}, v{vGA} offset:{256*t + 2}", f"ga{t}")


def rd_agg(a, t):
    a.wait_lg(f"ga{t}")
    a(f"ds_read_b128 {vr(AOH,4)}, v{vG0} offset:{L_LUT2}", f"g{t}")
    a(f"ds_read_b128 {vr(AOH+4,4)}, v{vG0+1} offset:{L_LUT2}", f"g{t}")


def slot(a, u):
    t, f = u >> 1, u & 1
    pre = {j: [] for j in range(20)}
    post = {j: [] for j in range(20)}
    a.wait_all(vm=False)
    if f == 0 and OPT["FAIR"] and t > 0:
        a(f"v_readfirstlane_b32 s{sA}, v{vT+2}")
        post[0].append(lambda: (a(f"s_mul_i32 s{sA}, s{sA}, s{sSGN}"), a("s_setprio 0"), a(f"s_cmp_ge_i32 s{sA}, 0"),
                                a(f"s_cbranch_scc1 F{u}"), a("s_setprio 1"), a.label(f"F{u}")))
    g = agg_mfmas(u - 1) if u > 0 else [None, None]
    m = main_mfmas(u + 1)
    order = [m[0], m[1], g[0], m[2], m[3], g[1], m[4], m[5], None]
    for i, x in enumerate(order):
        if x:
            pre[i].append(lambda x=x: a(x))
    if f == 0 and NUP <= t + OPT["ED"] < TCAP:
        post[9].append(lambda: e_load_late(a, t + OPT["ED"]))
    if f == 1:
        pre[6].insert(0, lambda: a.wait_vm(f"e{t + 1}"))
    L0, D0 = OPT["L0"], OPT["D0"]
    pre[L0].append(lambda: a.wait_vm(f"d{u + 2}"))
    for i, (rd, tg) in enumerate(frag_reads(u + 2)):
        pre[L0 + i].append(lambda rd=rd, tg=tg: a(rd, tg))
    pre[D0].append(lambda: a.wait_lg(f"f{u + 2}"))
    nv = u + 2 + AH
    if nv % 2 == 0:
        pre[0].append(lambda: rd_idx(a, nv // 2))
        pre[D0].append(lambda: voffs(a))
    for i, (m0w, ld, tg) in enumerate(dma_ops(nv)):
        pre[D0 + i].append(lambda m0w=m0w: a(m0w))
        post[D0 + i].append(lambda ld=ld, tg=tg: a(ld, tg))
    if f == 0:
        pre[1].append(lambda: rd_sel_addr(a, t + 1))
        post[D0].append(lambda: rd_agg(a, t))
        post[D0 + 1].append(lambda: rd_sel(a, t + 1))
    else:
        pre[2].append(lambda: rd_agg_addr(a, t + 1))
        if OPT["FAIR"]:
            post[D0 + 1].append(lambda: a(f"ds_add_rtn_u32 v{vT+2}, v{vT}, v{vT+1}"))
    for j, st in enumerate(valu_stream(ACC + 32 * f)):
        for fn in pre[j]:
            fn()
        for s in st:
            a(s)
        for fn in post[j]:
            fn()


def gen():
    a = Asm()
    a(f"s_cmp_ge_u32 s2, {NWG}")
    a("s_cbranch_scc1 K_END")
    stamp(a, 0)
    a(f"s_load_dwordx2 s[{pWS}:{pWS+1}], s[0:1], 72")
    a(f"s_load_dwordx4 s[{pSRC}:{pSRC+3}], s[0:1], 16")
    a("s_load_dwordx4 s[4:7], s[0:1], 0")
    a(f"s_load_dwordx4 s[{pU}:{pU+3}], s[0:1], 32")
    a(f"s_load_dwordx2 s[{pG}:{pG+1}], s[0:1], 48")
    a(f"s_load_dwordx2 s[{sTA}:{sTA+1}], s[0:1], 56")
    a("s_mov_b32 s3, s2")
    a(f"s_and_b32 s{sA}, s2, 7")
    a(f"s_lshl_b32 s{sA}, s{sA}, 5")
    a("s_lshr_b32 s2, s2, 3")
    a(f"s_add_u32 s2, s2, s{sA}")
    a(f"v_mov_b32 v{tid}, v0")
    a(f"v_lshrrev_b32 v{vT}, 6, v0")
    a(f"s_mov_b32 s{sJOB}, s3")
    a(f"v_readfirstlane_b32 s{sW}, v{vT}")
    a(f"s_mov_b32 s{sHELP}, 0")
    a(f"s_mov_b32 s{sPAR}, 0")
    a(f"s_mov_b32 s{sROUND}, 0")
    a(f"s_mov_b32 s{sR}, {RMAX}")
    a(f"s_mov_b32 s{s512}, {0 if OPT['HIT'] else 512}")
    a(f"s_mov_b32 s{sNL}, {NL2E}")
    a(f"s_lshr_b32 s{sWIN0}, s{sW}, 1")
    a(f"s_mov_b32 s{sWIN}, s{sWIN0}")
    a(f"s_and_b32 s{sFH}, s{sW}, 1")
    a(f"s_mul_i32 s{sRING}, s{sW}, {RW}")
    a(f"s_add_u32 s{sRING}, s{sRING}, {L_RING}")
    window_regs(a, sWIN0, sNODE0, sWSZ0)
    a(f"s_lshl_b32 s{sFT0}, s{sFH}, 8")
    a(f"s_add_u32 s{sFT1}, s{sFT0}, 128")
    a(f"s_cmp_ge_u32 s{sW}, 4")
    a(f"s_cselect_b32 s{sSGN}, -1, 1")
    a.wait_all(vm=False)
    srd(a, sOUT, sTA, N * 256)
    srd(a, sX, 4, N * 256)
    srd(a, sEA, 6, E * 32)
    srd(a, sCELL, pWS, CELL_SZ, CELL_OFF)
    srd(a, sREC, pWS, REC_SZ, REC_OFF)
    a.label("K_SORT")

    def stage_rows():
        a(f"s_mov_b32 s{sNT}, s{sB}")
        stage_x(a, sNODE0, "st")
        a(f"s_mov_b32 s{sB}, s{sNT}")

    def stage_v():
        stage_matrix(a, pV, 32768, 0, 1, "st")

    def shadow():
        weight_offset(a)
        (stage_v if OPT["SORD"] else stage_rows)()
        a(f"s_add_u32 s{sFLG}, s{pWS}, {FLG_OFF + F_TAG}")
        a(f"s_addc_u32 s{sFLG+1}, s{pWS+1}, 0")
        a(f"s_load_dword s{sTAG}, s[{sFLG}:{sFLG+1}], 0")
        srd(a, sTAB, pWS, TAB_SZ, TAB_OFF)
        init_luts(a)
        lane_consts(a)
        tr_bases(a)
        a.wait_all(vm=False)
        a(f"s_add_u32 s{sTAG}, s{sTAG}, 1")
        srd(a, sFLG, pWS, FLG_SZ, FLG_OFF)

    def stage2():
        stage_matrix(a, pG, 272 * 256, 128, 0, "st")
        a(f"s_cmp_ge_u32 s{sW}, 4")
        a("s_cbranch_scc1 K_NOC")
        a(f"s_mul_i32 s{sA}, s{sW}, 3072")
        a(f"s_sub_u32 s{sC}, 65536, s{sA}")
        a(f"s_lshl_b32 s{sA}, s{sW}, 10")
        a(f"s_add_u32 m0, s{sA}, {L_C}")
        a(f"buffer_load_dwordx4 v{vWO}, {sr(sTA,4)}, s{sC} offen lds")
        a.label("K_NOC")
    sort_job(a, shadow, stage_rows if OPT["SORD"] else stage_v, stage2)
    stamp(a, 2)
    a(f"ds_read_b128 {vr(ID,4)}, v{vIX} offset:{L_LUT1}")
    a(f"ds_read_b128 {vr(ID+4,4)}, v{vIX+1} offset:{L_LUT1}")
    read_x(a, sWIN0)
    if OPT["SIG"]:
        a.wait_all(lg=False)
        last_wave_flag(a, L_SG1, F_SORT, 3, "K_NOS1")
    edge_weights(a)
    table_setup(a, sNODE0, L_TSCR)
    if not OPT["SIG"]:
        a.wait_all(lg=False)
        last_wave_flag(a, L_SG1, F_SORT, 3, "K_NOS1")

    def cells():
        fstamp(a, 1, 8)
        poll(a, F_SORT, L_FB1, "P1", OPT["FORCE1"])
        a.wait_lg("fb")
        a(f"v_readfirstlane_b32 s{sA}, v{vT+3}")
        a(f"s_cmp_lg_u32 s{sA}, 0")
        a("s_cbranch_scc1 K_HELP1")
        a.label("K_SORTED")
        stamp(a, 3)
        fstamp(a, 1, 9)
        fstamp(a, 2, 1)
        a(f"s_lshl_b32 s{sA}, s2, 2")
        a(f"v_lshrrev_b32 v{vT}, 1, v{tid}")
        a(f"v_lshl_add_u32 v{vT}, v{vT}, 10, s{sA}")
        a(f"buffer_load_dword v{vCELL}, v{vT}, {sr(sCELL,4)}, 0 offen", "cell")

    if OPT["ORD"]:
        table_part(a, 0, XA)
        put0 = table_part(a, 1, XA, None, None, AGG)
        cells()
        init_lists(a, "K_I0", False)
    else:
        put0 = table_part(a, 0, XA, cells, None, AGG if OPT['HOLD'] else None)

    def records():
        fstamp(a, 2, 2)
        a.wait_vm("cell")
        fstamp(a, 2, 3)
        a(f"v_lshrrev_b32 v{vT}, 16, v{vCELL}")
        a(f"v_add_u32 v{vT+1}, 1, v{vT}")
        a(f"v_lshrrev_b32 v{vT+1}, 1, v{vT+1}")
        a(f"v_sub_u32 v{vT}, v{vT}, v{vT+1}")
        a(f"v_and_b32 v{vCELL}, 0xffff, v{vCELL}")
        a(f"v_and_b32 v{vT+2}, 1, v{tid}")
        a(f"v_cmp_eq_u32 vcc, 1, v{vT+2}")
        a(f"v_mad_u32_u24 v{vCELL}, v{vT+2}, v{vT+1}, v{vCELL}")
        a(f"v_cndmask_b32 v{vT}, v{vT+1}, v{vT}, vcc")
        a(f"v_lshl_or_b32 v{vCELL}, v{vT}, 16, v{vCELL}")
        load_records(a, "K_RL0")
        a.vm = []
        if put0:
            put0()

    def early_prefetch():
        if "c" in OPT["PF"] or "C" in OPT["PF"]:
            a(f"s_waitcnt vmcnt({len(a.vm)})")
            keep = list(a.vm)
            e_prefetch(a, 0, "c" in OPT["PF"], "K_PF")
            a.vm = keep
    if OPT["ORD"]:
        records()
        if OPT["AUP"]:
            stage_weights(a, 0, pU, "st2")
    else:
        table_part(a, 1, XA, early_prefetch, {OPT['RK']: records})
    fstamp(a, 2, 4)
    a(f"s_waitcnt vmcnt({len(a.vm)})")
    stamp(a, 4)
    fstamp(a, 2, 5)
    a.label("K_BUILD")
    build(a)
    NE = NUP // 2
    window_regs(a, sWIN, sNODE, sWSZ)
    a(f"s_cmp_lg_u32 s{sROUND}, 0")
    a("s_cbranch_scc1 K_PLAIN")
    vm_branch = list(a.vm)
    if not OPT["ORD"]:
        init_lists(a, "K_I0", False)
    a(f"s_waitcnt vmcnt({OPT['E0']})")
    last_wave_flag(a, L_SG2, F_TAB, 2, "K_NOS2")
    if not (OPT["ORD"] and OPT["AUP"]):
        stage_weights(a, 0, pU, "st2")
    list_addrs(a)
    if not OPT["ORD"]:
        wg_sync(a)
    list_fields(a, tid, "K_D")
    read_x(a, sWIN)
    ecount = [OPT["E0"]]

    def ehook(n):
        def fn():
            for _ in range(n):
                if ecount[0] < NE:
                    e_load(a, ecount[0])
                    ecount[0] += 1
        return fn
    ehook(OPT["E1"])()
    a.wait_vm("st2")
    a("s_barrier")
    rest = NE - ecount[0]
    hk = lambda n: {0: ehook((n + 1) // 2), 4: ehook(n // 2)}
    node_proj(a, hk((rest + 1) // 2), hk(rest // 2))
    assert ecount[0] == NE
    stamp(a, 6)
    a.wait_all()
    a("s_barrier")
    e_exchange_write(a)
    poll(a, F_TAB, L_FB2, "P2", OPT["FORCE2"])
    a.wait_lg("fb")
    a(f"v_readfirstlane_b32 s{sA}, v{vT+3}")
    a(f"s_cmp_lg_u32 s{sA}, 0")
    a("s_cbranch_scc1 K_HELP2")
    a.label("K_XREAD")
    e_exchange_read(a)
    a.label("K_FILL")
    a.vm = []
    stamp(a, 7)
    a(f"s_cmp_eq_u32 s{sNT}, 0")
    a("s_cbranch_scc1 K_RDONE")
    a(f"v_and_b32 v{vSI}, -4, v{vSA}")
    a(f"v_add_u32 v{vSI}, 2, v{vSI}")
    rd_idx(a, 0)
    rd_sel_addr(a, 0)
    rd_agg_addr(a, 0)
    if OPT["FAIR"]:
        a(f"s_and_b32 s{sA}, s{sW}, 3")
        a(f"s_lshl_b32 s{sA}, s{sA}, 2")
        a(f"s_add_u32 s{sA}, s{sA}, {L_FAIR}")
        a(f"v_mov_b32 v{vT}, s{sA}")
        lane_id(a, vT + 2)
        a(f"v_cmp_eq_u32 vcc, 0, v{vT+2}")
        a(f"v_mov_b32 v{vT+1}, s{sSGN}")
        a(f"v_lshlrev_b32 v{vT+2}, 2, v{vT+2}")
        a(f"v_cndmask_b32 v{vT+1}, 0, v{vT+1}, vcc")
        a(f"v_cndmask_b32 v{vT}, v{vT+2}, v{vT}, vcc")

    def fill_dma(v):
        if v % 2 == 0:
            a.wait_lg(f"ix{v // 2}")
            voffs(a)
            if v + 2 <= AH + 1:
                rd_idx(a, v // 2 + 1)
        issue_dma(a, v)
    for v in range(AH):
        fill_dma(v)
        if v == 1:
            rd_sel(a, 0)
    for t in range(NUP, TCAP):
        if t - OPT["ED"] < 0:
            e_load_late(a, t)
    a.wait_vm("d0")
    for rd, tg in frag_reads(0):
        a(rd, tg)
    a.wait_lg("f0")
    fill_dma(AH)
    mm = main_mfmas(0)
    for m in mm[:4]:
        a(m)
    a.wait_vm("d1")
    for rd, tg in frag_reads(1):
        a(rd, tg)
    a.wait_lg("s0")
    for m in mm[4:]:
        a(m)
    a.wait_lg("f1")
    fill_dma(AH + 1)
    a(f"s_cmp_eq_u32 s{sNT}, 1")
    a("s_cbranch_scc1 K_ST0")
    for u in range(2 * TCAP - 2):
        slot(a, u)
        if u % 2 == 1 and u < 2 * TCAP - 3:
            a(f"s_cmp_eq_u32 s{sNT}, {(u + 1) // 2 + 1}")
            a(f"s_cbranch_scc1 K_ST{(u + 1) // 2}")
    for t in range(TCAP - 1, -1, -1):
        a.label(f"K_ST{t}")
        for j in range(4):
            a(f"v_mov_b32 v{vVO+j}, v{e_reg(t)+j}")
        if t:
            a("s_branch K_LAST")
    a.wait_all(vm=False)
    a("s_branch K_LAST0")
    a.label("K_LAST")
    a.wait_all(vm=False)
    for m in agg_mfmas(1):
        a(m)
    a.label("K_LAST0")
    a(f"ds_read_b128 {vr(AOH,4)}, v{vG0} offset:{L_LUT2}")
    a(f"ds_read_b128 {vr(AOH+4,4)}, v{vG0+1} offset:{L_LUT2}")
    a(f"s_sub_u32 s{sA}, s{sNT}, 1")
    a(f"s_lshl_b32 s{sA}, s{sA}, 5")
    a(f"s_sub_u32 s{sB}, s{sNW}, s{sA}")
    mm = main_mfmas(1)
    mm[4] = mfma(ACC + 32, vVO, CW + 4, ACC + 32)

    def part(base, tag, extra):
        g, h = base, base + 16
        extra = list(extra)
        for m in range(2, 8):
            a(f"v_mov_b32 v{MSG+m}, 0")
        for q in range(4):
            if q:
                a(f"s_cmp_le_u32 s{sB}, {8*q}")
                a(f"s_cbranch_scc1 {tag}")
            for j in range(4 * q, 4 * q + 4):
                a(f"v_exp_f32 v{g+j}, v{g+j}")
                if extra:
                    a(extra.pop(0))
            for j in range(4 * q, 4 * q + 4):
                a(f"v_fma_f32 v{g+j}, v{g+j}, v{h+j}, v{h+j}")
                if extra:
                    a(extra.pop(0))
            for j in range(4 * q, 4 * q + 4):
                a(f"v_rcp_f32 v{g+j}, v{g+j}")
            for m in (2 * q, 2 * q + 1):
                a(f"v_cvt_pk_bf16_f32 v{MSG+m}, v{g+2*m}, v{g+2*m+1}")
        a.label(tag)
        a("s_nop 1")
    part(ACC, "K_LA", mm)
    a.wait_all(vm=False)
    for m in agg_mfmas(0):
        a(m)
    a("s_nop 3")
    part(ACC + 32, "K_LB", [])
    for m in agg_mfmas(1):
        a(m)
    a.label("K_RDONE")
    stamp(a, 8)
    a(f"s_cmp_lg_u32 s{sMORE}, 0")
    a("s_cbranch_scc1 K_ROUND")
    wr, rd, go = MSG, MSG + 4, vVO
    a(f"s_lshl_b32 s{sC}, s{sFH}, 7")
    line_addrs(a, wr, rd, go, sRING, sNODE, 8, 32, sC, sWSZ)
    for f in range(2):
        g, w = AGG + 16 * f, ACC + 16 * f
        for j in range(16):
            a(f"v_mul_f32 v{w+j}, s{sNL}, v{g+j}")
        for j in range(16):
            a(f"v_exp_f32 v{w+j}, v{w+j}")
        for j in range(16):
            a(f"v_add_f32 v{w+j}, 1.0, v{w+j}")
        for j in range(16):
            a(f"v_rcp_f32 v{w+j}, v{w+j}")
        for j in range(16):
            a(f"v_mul_f32 v{w+j}, v{w+j}, v{g+j}")
        for m in range(8):
            a(f"v_cvt_pk_bf16_f32 v{ACC+32+8*f+m}, v{w+2*m}, v{w+2*m+1}")
    a.wait_all()
    for i in range(4):
        a(f"ds_write_b128 v{wr+i}, {vr(ACC+32+4*i,4)}")
    for i in range(4):
        a(f"ds_read_b128 {vr(ACC+4*i,4)}, v{rd} offset:{1024*i}", f"or{i}")
    for i in range(4):
        a.wait_lg(f"or{i}")
        a(f"buffer_store_dwordx4 {vr(ACC+4*i,4)}, v{go+i}, {sr(sOUT,4)}, 0 offen {OPT['OST'].replace('_', ' ')}")
    a(f"s_cmp_lg_u32 s{sW}, 0")
    a("s_cbranch_scc1 K_FIN")
    a(f"s_cmp_eq_u32 s{sHELP}, 0")
    a("s_cbranch_scc1 K_NOWD")
    a(f"s_sub_u32 s{sB}, s{sTAG}, 1")
    put_flag(a, F_SORT, sB, 3)
    put_flag(a, F_TAB, sB, 2)
    a.label("K_NOWD")
    a("s_cmp_lg_u32 s3, 0")
    a("s_cbranch_scc1 K_FIN")
    a(f"v_mov_b32 v{vT}, {F_TAG}")
    a(f"v_mov_b32 v{vT+1}, s{sTAG}")
    a("s_mov_b64 exec, 1")
    a(f"buffer_store_dword v{vT+1}, v{vT}, {sr(sFLG,4)}, 0 offen sc1")
    a("s_mov_b64 exec, -1")
    a.label("K_FIN")
    if OPT["STAMP"]:
        stamp(a, 9)
        stamp_store(a)
    a.label("K_END")
    a("s_endpgm")

    a.label("K_PLAIN")
    a.vm = list(vm_branch)
    for i in range(OPT["E0"], NE):
        e_load(a, i)
    list_fields(a, tid, "K_P")
    a.wait_all()
    a("s_barrier")
    e_exchange_write(a)
    wg_sync(a)
    a("s_branch K_XREAD")

    a.label("K_OVF")
    a(f"s_cmp_eq_u32 s{sR}, 1")
    a(f"s_cselect_b32 s{sA}, 2, 0")
    a(f"s_or_b32 s{sPAR}, s{sPAR}, s{sA}")
    a(f"s_lshr_b32 s{sR}, s{sR}, 1")
    a(f"s_max_u32 s{sR}, s{sR}, 1")
    a("s_branch K_AGAIN")
    a.label("K_ROUND")
    a(f"s_mov_b32 s{sROUND}, 1")
    a(f"s_xor_b32 s{sPAR}, s{sPAR}, 1")
    a.label("K_AGAIN")
    a("s_setprio 0")
    a("s_nop 7")
    a.wait_all()
    a("s_barrier")
    lane_id(a, tid)
    a(f"s_lshl_b32 s{sA}, s{sW}, 6")
    a(f"v_add_u32 v{tid}, s{sA}, v{tid}")
    load_records(a, "K_RL1", True)
    init_lists(a, "K_I1", True)
    a.wait_all()
    a("s_barrier")
    a("s_branch K_BUILD")

    a.label("K_HELP1")
    a(f"s_mov_b32 s{sHELP}, 1")
    a(f"s_mov_b32 s{sJOB}, 0")
    a.wait_all()
    srd(a, sREC, pWS, REC_SZ, REC2_OFF)
    a("s_branch K_SORT")
    a.label("K_HELP1N")
    a(f"s_add_u32 s{sJOB}, s{sJOB}, 1")
    a(f"s_cmp_lt_u32 s{sJOB}, {NWG}")
    a("s_cbranch_scc1 K_SORT")
    a("s_branch K_SORTED")

    a.label("K_HELP2")
    a(f"s_mov_b32 s{sHELP}, 1")
    a.wait_all()
    a(f"v_mov_b32 v{vG0 - 1}, v{vSA}")
    weight_offset(a)
    stage_weights(a, 128, pV, "h")
    a(f"v_mov_b32 v{vSA}, v{vG0 - 1}")
    a(f"s_mov_b32 s{sJOB}, 0")
    a.label("K_HJOB")
    a(f"s_lshl_b32 s{sA}, s{sWIN0}, 3")
    a(f"s_lshr_b32 s0, {WOFFPK}, s{sA}")
    a(f"s_and_b32 s0, s0, 0xff")
    a(f"s_mul_i32 s{sA}, s{sJOB}, {NB}")
    a(f"s_add_u32 s0, s0, s{sA}")
    stage_x(a, 0, "h")
    a.wait_all()
    a("s_barrier")
    read_x(a, sWIN0)
    wg_sync(a)
    table_setup(a, 0, L_X)
    table_part(a, 0, FR)
    table_part(a, 1, FR)
    a.wait_all()
    a("s_barrier")
    a(f"s_add_u32 s{sJOB}, s{sJOB}, 1")
    a(f"s_cmp_lt_u32 s{sJOB}, {NWG}")
    a("s_cbranch_scc1 K_HJOB")
    e_exchange_write(a)
    wg_sync(a)
    a("s_branch K_XREAD")
    return a


def main():
    k = gen()
    text = k.text()
    ref = open(f"cdna_kernels/{NAME}.s.ref").read().split("; Override launch")[0]
    out = ref + f"; @launch grid=({NWG},1,1) block=(512,1,1) lds={KLDS}\n"
    out += '.amdgcn_target "amdgcn-amd-amdhsa--gfx950"\n.text\n'
    out += f".globl {NAME}_kernel\n.p2align 8\n.type {NAME}_kernel,@function\n{NAME}_kernel:\n{text}"
    out += f""".section .rodata,"a"
.p2align 6
.amdhsa_kernel {NAME}_kernel
  .amdhsa_next_free_vgpr 256
  .amdhsa_next_free_sgpr 102
  .amdhsa_accum_offset 256
  .amdhsa_group_segment_fixed_size 0
  .amdhsa_kernarg_size 80
  .amdhsa_user_sgpr_count 2
  .amdhsa_user_sgpr_kernarg_segment_ptr 1
  .amdhsa_system_sgpr_workgroup_id_x 1
.end_amdhsa_kernel
"""
    open(sys.argv[1], "w").write(out)
    print(f"lds {KLDS} nops {k.nops}; lines {out.count(chr(10))}")


if __name__ == "__main__":
    main()
```

```python
import os
import sys
sys.path.insert(0, os.path.dirname(os.path.abspath(__file__)))
from asmlib import Asm, vr, sr

NAME = "standalone__edge_featured_mpnn_egc__graph"
N, E, D = 25000, 400000, 128
NWG = 256
CH = 1564
RSTR = 12544
NB = 98
WOFF = [0, 25, 49, 73]
WSZ = [25, 24, 24, 25]
RMAX = 12
assert NWG * CH >= E and CH % 4 == 0 and CH * 8 <= RSTR and NWG * NB >= N
TAB_OFF, TAB_SZ = 0, N * 512
REC_OFF, REC_SZ = 0xC40000, NWG * RSTR
CELL_OFF, CELL_SZ = 0xF80000, NWG * 1024
FLG_OFF, FLG_SZ = 0xFC0000, 16384 + 128
REC2_OFF = 0x1400000
F_SORT, F_TAB, F_TAG = 0, 8192, 16384
assert REC_OFF + REC_SZ <= CELL_OFF and CELL_OFF + CELL_SZ <= FLG_OFF
NL2E = 0xBFB8AA3B
BIGOFF = 0x7FFFFF00
DIVB = 10700
assert all((d * DIVB) >> 20 == d // NB for d in range(N))
WOFFPK = WOFF[0] | WOFF[1] << 8 | WOFF[2] << 16 | WOFF[3] << 24
WINM = 337
assert all((d * WINM) >> 13 == max(i for i in range(4) if WOFF[i] <= d) for d in range(NB))
SBIN = 1342
assert ((N - 1) * SBIN) >> 20 == 31
POLL_LIMIT = 4000

OPT = dict(NS=3, LAG=1, NUP=10, ED=3, OST="sc1", E0=2, PRE=0, PAIR=1, STAMP=0, FAIR=1, FORCE1=0, FORCE2=0, L0=5, D0=11, HIT=0, CYC=0, RK=1, SORD=0, E1=2, FINE=0, CUT=0, PF="a", PFL=25, SIG=1, AUP=2, PROP=1, LFL=1, SB=2, DF=0, WPF=1, EB=2, AUB=1, H1=0)
for kv in sys.argv[2:]:
    k, v = kv.split("=")
    OPT[k] = int(v) if v.lstrip("-").isdigit() else v
NS = OPT["NS"]
TCAP = 16 if NS == 3 else 15
INC = [1, 2, 4, 8, 19, 37, 86, 169] if NS == 3 else [1 << b for b in range(8)]
RW = NS * 4096
AH = NS - OPT["LAG"]
NUP = OPT["NUP"]
assert NUP % 2 == 0 and 2 <= NUP <= TCAP

L_LUT2 = 0
L_LUT1 = L_LUT2 + (sum(INC) + 1) * 16
L_BIN = L_LUT1 + 144
L_MORE, L_FB1, L_FB2, L_SG1, L_SG2, L_FAIR = [L_BIN + o for o in (512, 528, 532, 536, 540, 544)]
L_BST = L_BIN + 576
L_SRC = L_BST + 512
SRC_W = (TCAP + 2) * 64
L_SEL = L_SRC + 4 * SRC_W
SEL_W = TCAP * 128
L_AGM = L_SEL + 4 * SEL_W
AGM_W = TCAP * 256
L_END = L_AGM + 4 * AGM_W
if NS == 3:
    L_TMP = L_END
    L_RING = (L_TMP + 16384 + 4095) // 4096 * 4096
    L_W, L_X, L_C = L_RING, L_RING + 65536, L_RING + 98304
    KLDS = L_C + 4096
else:
    L_RING = 32768
    L_TMP, L_C, L_W, L_X = L_RING, L_RING + 16384, L_RING + 32768, L_RING + 98304
    KLDS = L_RING + 8 * RW
    assert L_END <= L_RING
L_HIST, L_START = L_SRC, L_SRC + 1024
L_TSCR = (L_SEL + 127) // 128 * 128
assert all(x % 16 == 0 for x in (L_LUT1, L_BIN, L_BST, L_SRC, L_SEL, L_AGM, L_TMP)) and KLDS <= 163840
assert L_TMP + 16384 <= 65536 and L_TSCR + 32768 <= L_TMP + 16384

vCELL = 0
vFA, vLC, vIA, vVO, vIX, vSA, vGA, vS0, vG0, vT = 1, 5, 7, 8, 12, 14, 15, 16, 18, 20
MSG, FR, SEL, AOH, ACC, EF, AGG, XA, CW, ID = 24, 32, 48, 56, 64, 128, 192, 224, 240, 248
XF = ACC + 32
tid, vN = vS0, vS0 + 1
vTR = vG0
vWO = vSA
vBIG = MSG + 7
vSI = SEL + 5
sFLG, sTA = 4, 20
sX, sEA, sOUT, sTAB, sREC, sCELL, sTB = 24, 28, 32, 36, 40, 44, 48
(sW, sWIN, sFH, sRING, sNT, sNW, sR, sMORE, s512, sFT0, sFT1, sNL, sA, sB, sC, sNODE, sROUND, sSGN,
 sN0, sN1, sN2, sN3, sJOB, sWSZ, sWIN0, sWSZ0, sNODE0, sTAG, sHELP, sPAR) = range(52, 82)
sPUT = sJOB
sSTEP = sNODE0
pSRC, pDST, pU, pV, pG, pWS = 8, 10, 12, 14, 16, 18
NST = 10


def srd(a, d, lo, size, off=0):
    if off:
        a(f"s_add_u32 s{d}, s{lo}, {off}")
        a(f"s_addc_u32 s{d+1}, s{lo+1}, 0")
        a(f"s_and_b32 s{d+1}, s{d+1}, 0xffff")
    else:
        a(f"s_mov_b32 s{d}, s{lo}")
        a(f"s_and_b32 s{d+1}, s{lo+1}, 0xffff")
    a(f"s_mov_b32 s{d+2}, {size}")
    a(f"s_mov_b32 s{d+3}, 0x20000")


def scan16(a, v):
    for sh in (1, 2, 4, 8):
        a(f"v_add_u32_dpp v{v}, v{v}, v{v} row_shr:{sh} row_mask:0xf bank_mask:0xf bound_ctrl:1")


def scan64(a, v):
    scan16(a, v)
    a(f"v_add_u32_dpp v{v}, v{v}, v{v} row_bcast:15 row_mask:0xa bank_mask:0xf")
    a(f"v_add_u32_dpp v{v}, v{v}, v{v} row_bcast:31 row_mask:0xc bank_mask:0xf")


def mfma(d, x, y, c):
    cs = "0" if c is None else vr(c, 16)
    return f"v_mfma_f32_32x32x16_bf16 {vr(d, 16)}, {vr(x, 4)}, {vr(y, 4)}, {cs}"


def fstamp(a, grp, k):
    if OPT["STAMP"] and OPT["FINE"] == grp:
        a(f"s_memrealtime s[{82 + 2*k}:{83 + 2*k}]")
        a.lg = [t for t in a.lg if t != "smem"] + ["smem"]


def stamp(a, k):
    if OPT["STAMP"] and (k == 0 or not OPT["FINE"]):
        a(f"s_memrealtime s[{82 + 2*k}:{83 + 2*k}]")
        if OPT["CYC"] and k in (7, 8):
            a(f"s_memtime s[{82 + 2*(k - 6)}:{83 + 2*(k - 6)}]")
        a.lg = [t for t in a.lg if t != "smem"] + ["smem"]


def stamp_store(a):
    a.wait_all()
    srd(a, sTA, pWS, 1 << 20, 0x1000000)
    a(f"s_lshl_b32 s{sA}, s2, 3")
    a(f"s_add_u32 s{sA}, s{sA}, s{sW}")
    a(f"s_lshl_b32 s{sA}, s{sA}, 6")
    a(f"v_mov_b32 v1, s{sA}")
    for k in range(12):
        a(f"v_mov_b32 v{8+k}, s{82+2*min(k, NST - 1)}")
    for q in range(3):
        a(f"buffer_store_dwordx4 {vr(8+4*q,4)}, v1, {sr(sTA,4)}, 0 offen offset:{16*q}")


def lane_id(a, v):
    a(f"v_mbcnt_lo_u32_b32 v{v}, -1, 0")
    a(f"v_mbcnt_hi_u32_b32 v{v}, -1, v{v}")


def wg_sync(a):
    a.wait_all(vm=False)
    a("s_barrier")


def put_flag(a, base, sval, sid):
    lane_id(a, vT)
    a(f"s_lshl_b32 s{sA}, s{sid}, 2")
    a(f"s_add_u32 s{sA}, s{sA}, {base}")
    a(f"v_cmp_gt_u32 vcc, 8, v{vT}")
    a(f"v_lshl_add_u32 v{vT}, v{vT}, 10, s{sA}")
    a(f"v_mov_b32 v{vT+1}, s{sval}")
    a("s_mov_b64 exec, vcc")
    keep = list(a.vm)
    a(f"buffer_store_dword v{vT+1}, v{vT}, {sr(sFLG,4)}, 0 offen sc1")
    a.vm = keep
    a("s_mov_b64 exec, -1")


def poll(a, base, fbaddr, tag, force):
    a(f"s_cmp_lg_u32 s{sW}, 0")
    a(f"s_cbranch_scc1 {tag}_D")
    lane_id(a, vT)
    a(f"s_and_b32 s{sA}, s3, 7")
    a(f"s_lshl_b32 s{sA}, s{sA}, 10")
    a(f"s_add_u32 s{sA}, s{sA}, {base}")
    a(f"v_lshl_add_u32 v{vT}, v{vT}, 4, s{sA}")
    a(f"s_mov_b32 s{sB}, 0")
    keep = list(a.vm)
    a.label(f"{tag}_L")
    a(f"buffer_load_dwordx4 {vr(FR,4)}, v{vT}, {sr(sFLG,4)}, 0 offen sc1")
    a("s_waitcnt vmcnt(0)")
    for j in range(4):
        a(f"v_xor_b32 v{FR+j}, s{sTAG}, v{FR+j}")
    a(f"v_or_b32 v{FR}, v{FR}, v{FR+1}")
    a(f"v_or3_b32 v{FR}, v{FR}, v{FR+2}, v{FR+3}")
    a(f"v_cmp_ne_u32 vcc, 0, v{FR}")
    if not force:
        a(f"s_cbranch_vccz {tag}_D")
    a("s_sleep 2")
    a(f"s_add_u32 s{sB}, s{sB}, 1")
    a(f"s_cmp_lt_u32 s{sB}, {3 if force else POLL_LIMIT}")
    a(f"s_cbranch_scc1 {tag}_L")
    a(f"v_mov_b32 v{vT}, {fbaddr}")
    a(f"v_mov_b32 v{vT+1}, 1")
    a(f"ds_write_b32 v{vT}, v{vT+1}")
    a.vm = keep
    a.label(f"{tag}_D")
    wg_sync(a)
    a(f"v_mov_b32 v{vT+3}, {fbaddr}")
    a(f"ds_read_b32 v{vT+3}, v{vT+3}", "fb")


def init_lists(a, tag, bins):
    for j in range(4):
        a(f"v_mov_b32 v{MSG+j}, 0")
        a(f"v_mov_b32 v{MSG+4+j}, 0x80808080")
    a(f"v_lshlrev_b32 v{vT}, 4, v{tid}")
    tails = []
    regions = [(L_AGM, 4 * AGM_W, MSG), (L_SEL, 4 * SEL_W, MSG + 4), (L_SRC, 4 * SRC_W, MSG)]
    if bins:
        regions.append((L_BIN, 528, MSG))
    for off, n, val in regions:
        for p in range(n // 8192):
            a(f"ds_write_b128 v{vT}, {vr(val,4)} offset:{off + 8192*p}")
        tails.append(((n % 8192) // 16, off + n // 8192 * 8192, val))
    for cnt, off, val in sorted(tails, reverse=True):
        a(f"v_cmp_gt_u32 vcc, {cnt}, v{tid}")
        a("s_mov_b64 exec, vcc")
        a(f"s_cbranch_execz {tag}")
        a(f"ds_write_b128 v{vT}, {vr(val,4)} offset:{off}")
    a.label(tag)
    a("s_mov_b64 exec, -1")


def init_luts(a):
    t0, t1 = vT + 1, vT + 2
    a(f"v_cmp_gt_u32 vcc, 256, v{tid}")
    a("s_mov_b64 exec, vcc")
    a("s_cbranch_execz K_L1")
    a(f"v_and_b32 v{t0}, 15, v{tid}")
    for b in range(4, 8):
        a(f"v_bfe_u32 v{t1}, v{tid}, {b}, 1")
        a(f"s_mov_b32 s{sA}, {INC[b]}")
        a(f"v_mad_u32_u24 v{t0}, v{t1}, s{sA}, v{t0}")
    a(f"v_lshlrev_b32 v{t0}, 4, v{t0}")
    a(f"v_lshl_or_b32 v{t1}, v{tid}, 15, v{tid}")
    for m in range(4):
        a(f"v_and_b32 v{MSG+m}, {0x10001 << (2*m)}, v{t1}")
        a(f"v_mul_u32_u24 v{MSG+m}, {0x3F80 >> (2*m)}, v{MSG+m}")
    a(f"ds_write_b128 v{t0}, {vr(MSG,4)} offset:{L_LUT2}")
    a(f"v_lshrrev_b32 v{t0}, 2, v{tid}")
    a(f"v_and_b32 v{t1}, 3, v{tid}")
    a(f"v_lshrrev_b32 v{MSG+4}, 1, v{t0}")
    a(f"v_cmp_eq_u32 vcc, v{MSG+4}, v{t1}")
    a(f"v_and_b32 v{t0}, 1, v{t0}")
    a(f"v_lshlrev_b32 v{t0}, 4, v{t0}")
    a(f"v_mov_b32 v{t1}, 0x3f80")
    a(f"v_lshlrev_b32 v{t0}, v{t0}, v{t1}")
    a(f"v_cndmask_b32 v{t0}, 0, v{t0}, vcc")
    a(f"v_lshlrev_b32 v{t1}, 2, v{tid}")
    a(f"v_mov_b32 v{MSG+4}, 0")
    a(f"v_cmp_gt_u32 vcc, 144, v{tid}")
    a("s_mov_b64 exec, vcc")
    a("s_cbranch_execz K_L1")
    a(f"ds_write_b32 v{t1}, v{MSG+4} offset:{L_BIN}")
    a(f"v_cmp_gt_u32 vcc, 36, v{tid}")
    a("s_mov_b64 exec, vcc")
    a("s_cbranch_execz K_L1")
    a(f"ds_write_b32 v{t1}, v{t0} offset:{L_LUT1}")
    a.label("K_L1")
    a("s_mov_b64 exec, -1")


def lane_consts(a):
    ln, r, h, z = vT + 3, vT, vT + 1, vT + 2
    lane_id(a, ln)
    a(f"v_and_b32 v{r}, 31, v{ln}")
    a(f"v_lshrrev_b32 v{h}, 5, v{ln}")
    a(f"v_bfe_u32 v{z}, v{ln}, 1, 3")
    a(f"v_xor_b32 v{z}, v{z}, v{h}")
    a(f"v_lshlrev_b32 v{z}, 4, v{z}")
    a(f"v_lshl_add_u32 v{z}, v{r}, 7, v{z}")
    a(f"v_add_u32 v{vFA}, s{sRING}, v{z}")
    for i, c in ((1, 2), (2, 4), (3, 6)):
        a(f"v_xor_b32 v{vFA+i}, {c << 4}, v{vFA}")
    a(f"v_lshrrev_b32 v{z}, 4, v{ln}")
    a(f"v_and_b32 v{vLC}, 7, v{ln}")
    a(f"v_xor_b32 v{vLC}, v{vLC}, v{z}")
    a(f"v_lshlrev_b32 v{vLC}, 4, v{vLC}")
    a(f"v_xor_b32 v{vLC+1}, 64, v{vLC}")
    a(f"v_bfe_u32 v{z}, v{r}, 3, 1")
    a(f"v_and_b32 v{vIX}, 3, v{r}")
    a(f"v_lshl_add_u32 v{z}, v{z}, 2, v{vIX}")
    a(f"v_lshlrev_b32 v{z}, 4, v{z}")
    a(f"v_lshrrev_b32 v{vIX}, 4, v{r}")
    a(f"v_cmp_eq_u32 vcc, v{vIX}, v{h}")
    a(f"v_mov_b32 v{h}, 128")
    a(f"v_cndmask_b32 v{z}, v{h}, v{z}, vcc")
    a(f"v_and_b32 v{r}, 4, v{r}")
    a(f"v_cmp_eq_u32 vcc, 0, v{r}")
    a(f"v_cndmask_b32 v{vIX}, v{h}, v{z}, vcc")
    a(f"v_cndmask_b32 v{vIX+1}, v{z}, v{h}, vcc")


def tr_bases(a):
    ln, r, u = vT + 3, vT, vT + 1
    lane_id(a, ln)
    a(f"v_bfe_u32 v{r}, v{ln}, 2, 2")
    a(f"v_lshrrev_b32 v{u}, 5, v{ln}")
    a(f"v_lshl_add_u32 v{u}, v{u}, 3, v{r}")
    a(f"v_lshlrev_b32 v{vTR}, 8, v{u}")
    a(f"s_lshl_b32 s{sA}, s{sFH}, 1")
    a(f"v_xor_b32 v{r}, s{sA}, v{r}")
    a(f"v_lshl_add_u32 v{vTR}, v{r}, 6, v{vTR}")
    a(f"v_and_b32 v{u}, 1, v{ln}")
    a(f"v_lshl_add_u32 v{vTR}, v{u}, 5, v{vTR}")
    a(f"v_bfe_u32 v{u}, v{ln}, 4, 1")
    a(f"v_lshl_add_u32 v{vTR}, v{u}, 4, v{vTR}")
    a(f"v_bfe_u32 v{u}, v{ln}, 1, 1")
    a(f"v_lshl_add_u32 v{vTR}, v{u}, 3, v{vTR}")
    a(f"v_add_u32 v{vTR}, {L_W}, v{vTR}")
    a(f"v_xor_b32 v{vTR+1}, 64, v{vTR}")


def weight_offset(a):
    q, p = vT, vT + 1
    lane_id(a, p)
    a(f"v_lshrrev_b32 v{q}, 4, v{p}")
    a(f"v_and_b32 v{p}, 15, v{p}")
    a(f"v_lshlrev_b32 v{vWO}, 2, v{q}")
    a(f"v_xor_b32 v{vWO}, v{vWO}, v{p}")
    a(f"v_lshlrev_b32 v{vWO}, 4, v{vWO}")
    a(f"v_lshl_add_u32 v{vWO}, v{q}, 8, v{vWO}")
    a(f"s_lshl_b32 s{sA}, s{sW}, 12")
    a(f"v_add_u32 v{vWO}, s{sA}, v{vWO}")


def stage_matrix(a, ptr, size, row, half, tag):
    srd(a, sTA, ptr, size)
    a(f"s_lshl_b32 s{sA}, s{sW}, 12")
    a(f"s_mov_b32 s{sC}, {row * 256}")
    a(f"s_add_u32 m0, s{sA}, {L_W + 32768 * half}")
    for i in range(4):
        a(f"buffer_load_dwordx4 v{vWO}, {sr(sTA,4)}, s{sC} offen offset:{1024*i} lds", tag)


def stage_weights(a, grow, pother, tag):
    stage_matrix(a, pother, 32768, 0, 1, tag)
    stage_matrix(a, pG, 272 * 256, grow, 0, tag)


def last_wave_flag(a, cnt, base, sid, tag):
    a(f"v_mov_b32 v{vT}, {cnt}")
    a(f"v_mov_b32 v{vT+1}, 1")
    a("s_mov_b64 exec, 1")
    a(f"ds_add_rtn_u32 v{vT+2}, v{vT}, v{vT+1}", "sg")
    a("s_mov_b64 exec, -1")
    a.wait_lg("sg")
    a(f"v_readfirstlane_b32 s{sA}, v{vT+2}")
    a(f"s_cmp_lg_u32 s{sA}, 7")
    a(f"s_cbranch_scc1 {tag}")
    put_flag(a, base, sTAG, sid)
    a.label(tag)


def stage_x(a, snode, tag):
    q, p, b = vT, vT + 1, vT + 2
    a(f"v_mov_b32 v{vBIG}, {BIGOFF}")
    lane_id(a, p)
    a(f"v_lshrrev_b32 v{q}, 4, v{p}")
    a(f"v_and_b32 v{p}, 15, v{p}")
    a(f"s_lshl_b32 s{sA}, s{sFH}, 4")
    a(f"s_add_u32 s{sB}, s{sA}, s{snode}")
    a(f"v_add_lshl_u32 v{b}, v{q}, s{sB}, 8")
    a(f"s_sub_u32 s{sB}, s{sWSZ0}, s{sA}")
    a(f"s_lshl_b32 s{sA}, s{sW}, 12")
    a(f"s_add_u32 m0, s{sA}, {L_X}")
    for i in range(4):
        a(f"v_add_u32 v{vT+3}, {4*i}, v{q}")
        if i >= 2:
            a(f"v_cmp_le_u32 vcc, s{sB}, v{vT+3}")
        a(f"v_xor_b32 v{vT+3}, v{vT+3}, v{p}")
        a(f"v_lshl_add_u32 v{vT+3}, v{vT+3}, 4, v{b}")
        if i >= 2:
            a(f"v_cndmask_b32 v{vT+3}, v{vT+3}, v{vBIG}, vcc")
        a(f"buffer_load_dwordx4 v{vT+3}, {sr(sX,4)}, 0 offen offset:{1024*i} lds", tag)


def read_x(a, swin):
    l, u, b = vT, vT + 1, vT + 2
    lane_id(a, l)
    a(f"v_and_b32 v{u}, 15, v{l}")
    a(f"v_lshrrev_b32 v{b}, 5, v{l}")
    a(f"v_xor_b32 v{u}, v{u}, v{b}")
    a(f"v_lshlrev_b32 v{u}, 4, v{u}")
    a(f"v_and_b32 v{l}, 31, v{l}")
    a(f"v_lshl_add_u32 v{b}, v{l}, 8, v{u}")
    a(f"s_lshl_b32 s{sA}, s{swin}, 13")
    a(f"s_add_u32 s{sA}, s{sA}, {L_X}")
    a(f"v_add_u32 v{b}, s{sA}, v{b}")
    for kk in range(8):
        a(f"v_xor_b32 v{u}, {kk << 5}, v{b}")
        a(f"ds_read_b128 {vr(XF+4*kk,4)}, v{u}", "xf")


def gemm_pair(a, f, d0, d1, w_first, hooks=None):
    hooks = hooks or {}

    def rd(kk):
        for m in range(2):
            for q in range(2):
                a(f"ds_read_b64_tr_b16 {vr(SEL + 8*(kk & 1) + 4*m + 2*q, 2)}, v{vTR+f} "
                  f"offset:{32768*m + (16*kk + 4*q)*256}", f"w{kk}")
    rd(0)
    rd(1)
    for kk in range(8):
        a.wait_lg(f"w{kk}")
        for m, d in enumerate((d0, d1)):
            w = SEL + 8 * (kk & 1) + 4 * m
            x, y = (w, XF + 4*kk) if w_first[m] else (XF + 4*kk, w)
            a(mfma(d, x, y, None if kk == 0 else d))
        if kk + 2 < 8:
            rd(kk + 2)
        if kk in hooks:
            hooks[kk]()


def line_addrs(a, wr, rd, go, sbase, snode, shift, rows, ssub, swsz):
    l, n, h = vT, vT + 1, vT + 2
    lane_id(a, l)
    a(f"v_and_b32 v{n}, {rows - 1}, v{l}")
    a(f"v_lshrrev_b32 v{h}, 5, v{l}")
    a(f"v_lshlrev_b32 v{h}, 1, v{h}")
    a(f"v_and_b32 v{wr}, 7, v{l}")
    a(f"v_xor_b32 v{wr}, v{wr}, v{h}")
    a(f"v_lshlrev_b32 v{wr}, 4, v{wr}")
    a(f"v_lshl_add_u32 v{wr}, v{n}, 7, v{wr}")
    a(f"v_add_u32 v{wr}, s{sbase}, v{wr}")
    for i, c in ((1, 1), (2, 4), (3, 5)):
        a(f"v_xor_b32 v{wr+i}, {c << 4}, v{wr}")
    a(f"v_lshl_add_u32 v{rd}, v{l}, 4, s{sbase}")
    a(f"v_lshrrev_b32 v{n}, 3, v{l}")
    a(f"v_and_b32 v{h}, 7, v{l}")
    a(f"v_xor_b32 v{h}, v{h}, v{n}")
    a(f"v_add_lshl_u32 v{go}, v{n}, s{snode}, {shift}")
    a(f"v_lshl_add_u32 v{go}, v{h}, 4, v{go}")
    a(f"v_add_u32 v{go}, s{ssub}, v{go}")
    a(f"v_add_u32 v{go+1}, {8 << shift}, v{go}")
    a(f"v_add_u32 v{go+2}, {16 << shift}, v{go}")
    a(f"s_sub_u32 s{sA}, s{swsz}, 24")
    a(f"s_lshl_b32 s{sA}, s{sA}, 3")
    a(f"v_cmp_gt_u32 vcc, s{sA}, v{l}")
    a(f"v_add_u32 v{go+3}, {24 << shift}, v{go}")
    a(f"v_mov_b32 v{vBIG}, {BIGOFF}")
    a(f"v_cndmask_b32 v{go+3}, v{vBIG}, v{go+3}, vcc")


T_WR, T_RD, T_LO = MSG, MSG + 4, MSG + 5


def table_setup(a, snode, scratch):
    a(f"s_lshl_b32 s{sC}, s{sW}, 12")
    a(f"s_add_u32 s{sC}, s{sC}, {scratch}")
    line_addrs(a, T_WR, T_RD, vVO, sC, snode, 9, 32, sFT0, sWSZ0)
    a(f"v_mov_b32 v{T_LO}, 0xff7f0000")


def table_part(a, f, pk, before_store=None, hooks=None, hold=None):
    DB, DV = ACC, ACC + 16
    gemm_pair(a, f, DB, DV, (True, True), hooks)
    a(f"s_mov_b32 s{sB}, 0x7f7f0000")
    if OPT["PRE"]:
        for m in range(8):
            a(f"v_cvt_pk_bf16_f32 v{pk+8+m}, v{DV+2*m}, v{DV+2*m+1}")
        for m in range(8):
            a(f"v_lshlrev_b32 v{DV+2*m}, 16, v{pk+8+m}")
            a(f"v_and_b32 v{DV+2*m+1}, 0xffff0000, v{pk+8+m}")
    for j in range(16):
        a(f"v_mul_f32 v{DB+j}, s{sNL}, v{DB+j}")
    for j in range(16):
        a(f"v_rcp_f32 v{DV+j}, v{DV+j}")
    for m in range(8):
        a(f"v_cvt_pk_bf16_f32 v{pk+m}, v{DB+2*m}, v{DB+2*m+1}")
    for j in range(16):
        a(f"v_med3_f32 v{DV+j}, v{DV+j}, v{T_LO}, s{sB}")
    for m in range(8):
        a(f"v_cvt_pk_bf16_f32 v{pk+8+m}, v{DV+2*m}, v{DV+2*m+1}")
    for i in range(4):
        a(f"ds_write_b128 v{T_WR+i}, {vr(pk+4*i,4)}")
    buf = hold or ACC
    for i in range(4):
        a(f"ds_read_b128 {vr(buf+4*i,4)}, v{T_RD} offset:{1024*i}", f"lr{i}")
    if before_store:
        before_store()

    def put():
        for i in range(4):
            a.wait_lg(f"lr{i}")
            a(f"buffer_store_dwordx4 {vr(buf+4*i,4)}, v{vVO+i}, {sr(sTAB,4)}, 0 offen offset:{128*f} sc1", "ts")
    if hold:
        return put
    put()


def edge_weights(a):
    for f in range(2):
        a(f"v_add_u32 v{vT+f}, {(L_C - L_W) & 0xffffffff}, v{vTR+f}")
        for q in range(2):
            a(f"ds_read_b64_tr_b16 {vr(CW + 4*f + 2*q, 2)}, v{vT+f} offset:{1024*q}")
    a.wait_all(vm=False)
    for m in range(8):
        a(f"v_lshlrev_b32 v{vT}, 16, v{CW+m}")
        a(f"v_and_b32 v{vT+1}, 0xffff0000, v{CW+m}")
        a(f"v_mul_f32 v{vT}, s{sNL}, v{vT}")
        a(f"v_mul_f32 v{vT+1}, s{sNL}, v{vT+1}")
        a(f"v_cvt_pk_bf16_f32 v{CW+m}, v{vT}, v{vT+1}")


def node_proj(a, hooks0=None, hooks1=None):
    for f in range(2):
        gemm_pair(a, f, ACC + 16 * f, AGG + 16 * f, (False, True), (hooks0, hooks1)[f])
    for f in range(2):
        d = ACC + 16 * f
        for j in range(16):
            a(f"v_mul_f32 v{d+j}, s{sNL}, v{d+j}")
        for m in range(8):
            a(f"v_cvt_pk_bf16_f32 v{XA+8*f+m}, v{d+2*m}, v{d+2*m+1}")


def sort_job(a, shadow, stage1, stage2):
    vD, vS, vB, vR, vK, vH, vO, u0, u1 = EF, EF + 4, EF + 8, EF + 12, EF + 16, EF + 24, EF + 40, EF + 41, EF + 42
    vP = EF + 44

    def first_only(fn, tag):
        a(f"s_cmp_lg_u32 s{sHELP}, 0")
        a(f"s_cbranch_scc1 {tag}")
        fn()
        a.label(tag)
    srd(a, sTA, pDST, E * 4)
    srd(a, sTB, pSRC, E * 4)
    a(f"s_mul_i32 s{sA}, s{sJOB}, {CH * 4}")
    a(f"v_lshl_add_u32 v{vO}, v{tid}, 4, s{sA}")
    a(f"v_mov_b32 v{u0}, {BIGOFF}")
    a(f"v_cmp_gt_u32 vcc, {CH // 4}, v{tid}")
    a(f"v_cndmask_b32 v{vO}, v{u0}, v{vO}, vcc")
    a(f"buffer_load_dwordx4 {vr(vD,4)}, v{vO}, {sr(sTA,4)}, 0 offen", "d")
    if not OPT["DF"]:
        a(f"buffer_load_dwordx4 {vr(vS,4)}, v{vO}, {sr(sTB,4)}, 0 offen", "s")
    a(f"v_cmp_gt_u32 vcc, {E * 4}, v{vO}")
    a("s_mov_b64 s[0:1], vcc")
    a(f"v_lshlrev_b32 v{u0}, 2, v{tid}")
    a(f"v_mov_b32 v{u1}, 0")
    a(f"ds_write_b32 v{u0}, v{u1} offset:{L_HIST}")
    a("s_barrier")
    if OPT["DF"]:
        a(f"buffer_load_dwordx4 {vr(vS,4)}, v{vO}, {sr(sTB,4)}, 0 offen", "s")
    a(f"s_cmp_eq_u32 s{sHELP}, 0")
    a("s_cbranch_scc1 S_FIRST")
    a("s_waitcnt vmcnt(0)")
    a("s_branch S_GO")
    a.label("S_FIRST")
    shadow()
    a.label("S_GO")
    wg_sync(a)
    a(f"s_mov_b32 s{sA}, {DIVB}")
    a(f"s_mov_b32 s{sB}, {WOFFPK}")
    a.wait_vm("d")
    stamp(a, 1)
    fstamp(a, 1, 1)
    for k in range(4):
        a(f"v_mul_u32_u24 v{vB+k}, s{sA}, v{vD+k}")
        a(f"v_lshrrev_b32 v{vB+k}, 20, v{vB+k}")
        a(f"v_mul_u32_u24 v{u0}, {NB}, v{vB+k}")
        a(f"v_sub_u32 v{vD+k}, v{vD+k}, v{u0}")
        a(f"v_lshlrev_b32 v{vB+k}, 2, v{vB+k}")
    a(f"v_mov_b32 v{u1}, 1")
    a("s_mov_b64 exec, s[0:1]")
    a("s_cbranch_execz S_NOH")
    for k in range(4):
        a(f"ds_add_rtn_u32 v{vR+k}, v{vB+k}, v{u1} offset:{L_HIST}")
    a.label("S_NOH")
    a("s_mov_b64 exec, -1")
    a.wait_vm("s")
    first_only(stage1, "S_H1")
    if OPT["SB"] == 1:
        first_only(stage2, "S_H2")
    for k in range(4):
        a(f"v_mul_u32_u24 v{u0}, {WINM}, v{vD+k}")
        a(f"v_lshrrev_b32 v{u0}, 13, v{u0}")
        a(f"v_lshlrev_b32 v{u1}, 3, v{u0}")
        a(f"v_bfe_u32 v{u1}, s{sB}, v{u1}, 8")
        a(f"v_sub_u32 v{u1}, v{vD+k}, v{u1}")
        a(f"v_lshl_or_b32 v{vK+2*k}, v{u1}, 15, v{vS+k}")
        a(f"v_mul_u32_u24 v{u1}, {SBIN}, v{vS+k}")
        a(f"v_lshrrev_b32 v{u1}, 20, v{u1}")
        a(f"v_lshl_add_u32 v{u1}, v{u0}, 5, v{u1}")
        a(f"v_lshl_or_b32 v{vK+2*k}, v{u1}, 25, v{vK+2*k}")
        a(f"v_lshlrev_b32 v{vK+2*k+1}, 3, v{vO}")
        a(f"v_add_u32 v{vK+2*k+1}, {32*k}, v{vK+2*k+1}")
    wg_sync(a)
    fstamp(a, 1, 2)
    lane_id(a, u0)
    a(f"v_lshlrev_b32 v{u0}, 4, v{u0}")
    a(f"ds_read_b128 {vr(vH,4)}, v{u0} offset:{L_HIST}")
    a.wait_all(vm=False)
    a(f"v_add_u32 v{vH+4}, v{vH}, v{vH+1}")
    a(f"v_add_u32 v{vH+5}, v{vH+4}, v{vH+2}")
    a(f"v_add_u32 v{vH+6}, v{vH+5}, v{vH+3}")
    a(f"v_mov_b32 v{vH+7}, v{vH+6}")
    scan64(a, vH + 7)
    a(f"v_sub_u32 v{vH+8}, v{vH+7}, v{vH+6}")
    a(f"v_add_u32 v{vH+9}, v{vH+8}, v{vH}")
    a(f"v_add_u32 v{vH+10}, v{vH+8}, v{vH+4}")
    a(f"v_add_u32 v{vH+11}, v{vH+8}, v{vH+5}")
    a(f"ds_write_b128 v{u0}, {vr(vH+8,4)} offset:{L_START}")
    for k in range(4):
        a(f"ds_read_b32 v{vP+k}, v{vB+k} offset:{L_START}")
    if OPT["SB"] == 0:
        first_only(stage2, "S_H2")
    a(f"s_cmp_lg_u32 s{sW}, 7")
    a("s_cbranch_scc1 S_NOC")
    for k in range(4):
        a(f"v_lshl_or_b32 v{vH+12+k}, v{vH+k}, 16, v{vH+8+k}")
    a(f"s_lshl_b32 s{sA}, s{sJOB}, 10")
    a(f"v_add_u32 v{u0}, s{sA}, v{u0}")
    a(f"buffer_store_dwordx4 {vr(vH+12,4)}, v{u0}, {sr(sCELL,4)}, 0 offen sc1")
    a.label("S_NOC")
    a.wait_all(vm=False)
    for k in range(4):
        a(f"v_add_lshl_u32 v{vP+k}, v{vP+k}, v{vR+k}, 3")
    a(f"s_cmp_eq_u32 s{sHELP}, 0")
    a("s_cbranch_scc1 S_PUB")
    a(f"s_mul_i32 s{sA}, s{sJOB}, {RSTR}")
    a(f"s_lshl_b32 s{sB}, s2, 2")
    for k in range(4):
        a(f"v_cmp_eq_u32 vcc, s{sB}, v{vB+k}")
        a(f"v_add_u32 v{vP+k}, s{sA}, v{vP+k}")
        a("s_and_b64 exec, vcc, s[0:1]")
        a(f"s_cbranch_execz S_P{k}")
        a(f"buffer_store_dwordx2 {vr(vK+2*k,2)}, v{vP+k}, {sr(sREC,4)}, 0 offen sc1")
        a.label(f"S_P{k}")
        a("s_mov_b64 exec, -1")
    a("s_waitcnt vmcnt(0)")
    a("s_barrier")
    a("s_branch K_HELP1N")
    a.label("S_PUB")
    a("s_mov_b64 exec, s[0:1]")
    a("s_cbranch_execz S_NOS")
    for k in range(4):
        a(f"ds_write_b64 v{vP+k}, {vr(vK+2*k,2)} offset:{L_TMP}")
    a.label("S_NOS")
    a("s_mov_b64 exec, -1")
    if OPT["SB"] == 2:
        stage2()
    wg_sync(a)
    fstamp(a, 1, 3)
    a(f"v_lshlrev_b32 v{u0}, 4, v{tid}")
    a(f"ds_read_b128 {vr(vD,4)}, v{u0} offset:{L_TMP}", "r0")
    a(f"ds_read_b128 {vr(vS,4)}, v{u0} offset:{L_TMP + 8192}", "r1")
    a(f"s_mul_i32 s{sA}, s{sJOB}, {RSTR}")
    a(f"v_add_u32 v{u0}, s{sA}, v{u0}")
    a(f"v_add_u32 v{u1}, 8192, v{u0}")
    a(f"v_mov_b32 v{vB}, {BIGOFF}")
    a(f"v_cmp_gt_u32 vcc, {(RSTR - 8192) // 16}, v{tid}")
    a(f"v_cndmask_b32 v{u1}, v{vB}, v{u1}, vcc")
    a.wait_lg("r0")
    a(f"buffer_store_dwordx4 {vr(vD,4)}, v{u0}, {sr(sREC,4)}, 0 offen sc1")
    a.wait_lg("r1")
    a(f"buffer_store_dwordx4 {vr(vS,4)}, v{u1}, {sr(sREC,4)}, 0 offen sc1")
    fstamp(a, 1, 4)
    a("s_waitcnt vmcnt(2)")
    a("s_barrier")
    fstamp(a, 1, 5)


def load_records(a, tag, slow=False):
    a(f"v_lshrrev_b32 v{vT+2}, 16, v{vCELL}")
    a(f"v_min_u32 v{vN}, s{sR}, v{vT+2}")
    if slow:
        a(f"s_lshr_b32 s{sA}, s{sPAR}, 1")
        a(f"v_xor_b32 v{vT}, s{sPAR}, v{tid}")
        a(f"v_and_b32 v{vT}, s{sA}, v{vT}")
        a(f"v_cmp_eq_u32 vcc, 0, v{vT}")
        a(f"v_cndmask_b32 v{vN}, 0, v{vN}, vcc")
    a(f"v_cmp_lt_u32 vcc, v{vN}, v{vT+2}")
    a(f"s_cmp_lg_u64 vcc, 0")
    a(f"s_cselect_b32 s{sMORE}, 1, 0")
    a(f"v_and_b32 v{vT}, 0xffff, v{vCELL}")
    a(f"v_lshrrev_b32 v{vT+1}, 1, v{tid}")
    a(f"v_mul_u32_u24 v{vT+1}, {RSTR}, v{vT+1}")
    a(f"v_lshl_add_u32 v{vT}, v{vT}, 3, v{vT+1}")
    for i in range(RMAX // 2):
        a(f"v_cmp_lt_u32 vcc, {2*i}, v{vN}")
        a("s_mov_b64 exec, vcc")
        a(f"s_cbranch_execz {tag}")
        a(f"buffer_load_dwordx4 {vr(EF+4*i,4)}, v{vT}, {sr(sREC,4)}, 0 offen offset:{16*i}")
    a.label(tag)
    a("s_mov_b64 exec, -1")


def e_load(a, i):
    a(f"buffer_load_dwordx4 {vr(EF+4*i,4)}, v{FR+i}, {sr(sEA,4)}, 0 offen", f"eu{i}")


def e_load_late(a, t):
    a(f"buffer_load_dwordx4 {vr(EF+4*t,4)}, v{EF+4*t}, {sr(sEA,4)}, 0 offen", f"e{t}")


def e_exchange_write(a):
    lane_id(a, vT)
    a(f"s_xor_b32 s{sA}, s{sW}, 1")
    a(f"s_mul_i32 s{sA}, s{sA}, {RW}")
    a(f"s_add_u32 s{sA}, s{sA}, {L_RING}")
    a(f"v_lshl_add_u32 v{vT}, v{vT}, 4, s{sA}")
    for i in range(NUP // 2):
        a(f"ds_write_b128 v{vT}, {vr(EF+4*i,4)} offset:{1024*i}")


def e_exchange_read(a):
    lane_id(a, vT)
    a(f"v_lshl_add_u32 v{vT}, v{vT}, 4, s{sRING}")
    for i in range(NUP // 2):
        a(f"ds_read_b128 {vr(EF+2*NUP+4*i,4)}, v{vT} offset:{1024*i}")
    a.wait_all(vm=False)
    a(f"s_cmp_eq_u32 s{sFH}, 0")
    a("s_cbranch_scc1 K_NOSWAP")
    for j in range(2 * NUP):
        a(f"v_swap_b32 v{EF+j}, v{EF+2*NUP+j}")
    a.label("K_NOSWAP")


def e_reg(t):
    return EF + 2 * NUP * (t & 1) + 4 * (t >> 1) if t < NUP else EF + 4 * t


def window_regs(a, swin, snode, swsz):
    a(f"s_lshl_b32 s{sA}, s{swin}, 3")
    a(f"s_lshr_b32 s{sC}, {WOFFPK}, s{sA}")
    a(f"s_and_b32 s{sC}, s{sC}, 0xff")
    a(f"s_lshr_b32 s{swsz}, {WSZ[0] | WSZ[1] << 8 | WSZ[2] << 16 | WSZ[3] << 24}, s{sA}")
    a(f"s_and_b32 s{swsz}, s{swsz}, 0xff")
    a(f"s_mul_i32 s{snode}, s2, {NB}")
    a(f"s_add_u32 s{snode}, s{snode}, s{sC}")


def pick_window(a):
    k = [sTA, sTA + 1, sTA + 2, sTA + 3]
    for w in range(4):
        a(f"s_lshl_b32 s{k[w]}, s{sN0+w}, 2")
        a(f"s_or_b32 s{k[w]}, s{k[w]}, {w}")
    for x, y in ((0, 1), (2, 3), (0, 2), (1, 3), (1, 2)):
        a(f"s_max_u32 s{sA}, s{k[x]}, s{k[y]}")
        a(f"s_min_u32 s{k[y]}, s{k[x]}, s{k[y]}")
        a(f"s_mov_b32 s{k[x]}, s{sA}")
    a(f"s_cmp_eq_u32 s{sWIN0}, 1")
    a(f"s_cselect_b32 s{sA}, s{k[1]}, s{k[0]}")
    a(f"s_cmp_eq_u32 s{sWIN0}, 2")
    a(f"s_cselect_b32 s{sA}, s{k[3]}, s{sA}")
    a(f"s_cmp_eq_u32 s{sWIN0}, 3")
    a(f"s_cselect_b32 s{sA}, s{k[2]}, s{sA}")
    a(f"s_and_b32 s{sWIN}, s{sA}, 3")
    a(f"s_cmp_eq_u32 s{sWIN0}, 1")
    a(f"s_cselect_b32 s{sA}, s{k[2]}, s{k[3]}")
    a(f"s_cmp_eq_u32 s{sWIN0}, 2")
    a(f"s_cselect_b32 s{sA}, s{k[0]}, s{sA}")
    a(f"s_cmp_eq_u32 s{sWIN0}, 3")
    a(f"s_cselect_b32 s{sA}, s{k[1]}, s{sA}")
    a(f"s_lshr_b32 s{sSTEP}, s{sA}, 2")
    a(f"s_mul_i32 s{sSTEP}, s{sSTEP}, s{sSGN}")


def list_addrs(a):
    ln, u = vT, vT + 1
    lane_id(a, ln)
    a(f"s_mul_i32 s{sA}, s{sWIN}, {SEL_W}")
    a(f"s_add_u32 s{sA}, s{sA}, {L_SEL}")
    a(f"v_and_b32 v{u}, 31, v{ln}")
    a(f"v_lshl_add_u32 v{vSA}, v{u}, 2, s{sA}")
    a(f"v_lshrrev_b32 v{u}, 5, v{ln}")
    a(f"v_add_u32 v{vSA}, v{u}, v{vSA}")
    a(f"s_mul_i32 s{sA}, s{sWIN}, {AGM_W}")
    a(f"s_add_u32 s{sA}, s{sA}, {L_AGM}")
    a(f"v_lshl_add_u32 v{vGA}, v{ln}, 2, s{sA}")
    a(f"s_mul_i32 s{sA}, s{sWIN}, {SRC_W}")
    a(f"s_add_u32 s{sA}, s{sA}, {L_SRC}")
    a(f"v_lshrrev_b32 v{u}, 3, v{ln}")
    a(f"v_lshl_add_u32 v{vIA}, v{u}, 3, s{sA}")


def e_prefetch(a, k, half, tag):
    a(f"v_bfe_u32 v{vT}, v{EF+2*k}, 25, 5")
    a(f"v_cmp_gt_u32 vcc, {OPT['PFL']}, v{vT}")
    a(f"v_cmp_lt_u32 s[0:1], {k}, v{vN}")
    a("s_and_b64 vcc, vcc, s[0:1]")
    if half:
        a("s_and_b32 vcc_lo, vcc_lo, 0x55555555")
        a("s_and_b32 vcc_hi, vcc_hi, 0x55555555")
    a("s_mov_b64 exec, vcc")
    a(f"s_cbranch_execz {tag}")
    a(f"buffer_load_dword v{FR+15}, v{EF+2*k+1}, {sr(sEA,4)}, 0 offen")
    a.label(tag)
    a("s_mov_b64 exec, -1")


def count_pass(a, tag, prefetch):
    RK = EF + 2 * RMAX
    one = vT + 2
    pf = OPT["PF"]
    if prefetch and OPT["EB"] != 2 and ("a" in pf or "A" in pf):
        e_prefetch(a, 0, "a" in pf, f"{tag}_PF0")
    a(f"v_mov_b32 v{one}, 8")
    a(f"s_cmp_eq_u32 s{sMORE}, 0")
    a(f"s_cbranch_scc1 {tag}_NM")
    a(f"v_mov_b32 v{vT}, {L_MORE}")
    a(f"ds_write_b32 v{vT}, v{one}")
    a.label(f"{tag}_NM")
    for k in range(RMAX):
        a(f"v_cmp_lt_u32 vcc, {k}, v{vN}")
        a(f"v_lshrrev_b32 v{vT + (k & 1)}, 23, v{EF+2*k}")
        a("s_mov_b64 exec, vcc")
        a(f"s_cbranch_execz {tag}_BD")
        a(f"ds_add_rtn_u32 v{RK+k}, v{vT + (k & 1)}, v{one} offset:{L_BIN}")
    a.label(f"{tag}_BD")
    a("s_mov_b64 exec, -1")
    if prefetch and OPT["EB"] == 2 and ("a" in pf or "A" in pf):
        e_prefetch(a, 0, "a" in pf, f"{tag}_PF0")


def build(a):
    RK = EF + 2 * RMAX
    pf = OPT["PF"]
    count_pass(a, "B", not OPT["EB"])
    a.label("K_COUNTED")
    wg_sync(a)
    fstamp(a, 2, 6)

    def held_stores(pos):
        if OPT["H1"] == pos:
            a(f"s_cmp_lg_u32 s{sPUT}, 0")
            a("s_cbranch_scc1 B_NOPUT")
            a(f"s_mov_b32 s{sPUT}, 1")
            a.put1()
            a.label("B_NOPUT")
    held_stores(1)
    if "b" in pf or "B" in pf:
        e_prefetch(a, 1, "b" in pf, "B_PF1")
    ln = vT + 3
    lane_id(a, ln)
    a(f"v_lshlrev_b32 v{vT}, 3, v{ln}")
    a(f"ds_read_b64 {vr(MSG,2)}, v{vT} offset:{L_BIN}")
    a(f"v_mov_b32 v{MSG+2}, {L_MORE}")
    a(f"ds_read_b32 v{MSG+2}, v{MSG+2}")
    a(f"v_lshrrev_b32 v{ln}, 4, v{ln}")
    a(f"v_lshlrev_b32 v{ln}, 12, v{ln}")
    a(f"v_add_u32 v{ln}, {L_TMP}, v{ln}")
    a.wait_all(vm=False)
    a(f"v_add_u32 v{vT+1}, v{MSG}, v{MSG+1}")
    a(f"v_mov_b32 v{vT+2}, v{vT+1}")
    scan16(a, vT + 2)
    for w in range(4):
        a(f"v_readlane_b32 s{sN0+w}, v{vT+2}, {16*w + 15}")
    a(f"v_readfirstlane_b32 s{sMORE}, v{MSG+2}")
    a(f"v_sub_u32 v{vT+2}, v{vT+2}, v{vT+1}")
    a(f"v_add_u32 v{MSG+4}, v{vT+2}, v{ln}")
    a(f"v_add_u32 v{MSG+5}, v{MSG+4}, v{MSG}")
    a(f"ds_write_b64 v{vT}, {vr(MSG+4,2)} offset:{L_BST}")
    a(f"s_max_u32 s{sA}, s{sN0}, s{sN1}")
    a(f"s_max_u32 s{sB}, s{sN2}, s{sN3}")
    a(f"s_max_u32 s{sA}, s{sA}, s{sB}")
    a(f"s_cmp_gt_u32 s{sA}, {8 * 32 * TCAP}")
    a(f"s_cbranch_scc1 K_OVF")
    for g in range(RMAX // 4):
        a(f"v_cmp_lt_u32 vcc, {4*g}, v{vN}")
        for k in range(4):
            a(f"v_lshrrev_b32 v{MSG+k}, 23, v{EF + 2*(4*g + k)}")
        a("s_mov_b64 exec, vcc")
        a(f"s_cbranch_execz B_CD")
        for k in range(4):
            a(f"ds_read_b32 v{MSG+k}, v{MSG+k} offset:{L_BST}")
        a.wait_all(vm=False)
        for k in range(4):
            r = 4 * g + k
            if k:
                a(f"v_cmp_lt_u32 vcc, {r}, v{vN}")
            a(f"v_add_u32 v{MSG+k}, v{MSG+k}, v{RK+r}")
            if k:
                a("s_mov_b64 exec, vcc")
            a(f"ds_write_b64 v{MSG+k}, {vr(EF+2*r,2)}")
    a.label("B_CD")
    a("s_mov_b64 exec, -1")
    fstamp(a, 2, 8)
    a(f"v_add_u32 v{vCELL}, v{vCELL}, v{vN}")
    a(f"v_lshlrev_b32 v{vT}, 16, v{vN}")
    a(f"v_sub_u32 v{vCELL}, v{vCELL}, v{vT}")
    for w in range(4):
        a(f"s_lshr_b32 s{sN0+w}, s{sN0+w}, 3")
    if OPT["PAIR"]:
        a(f"s_cmp_lg_u32 s{sROUND}, 0")
        a("s_cbranch_scc1 B_KEEP")
        pick_window(a)
        a.label("B_KEEP")
    a(f"s_cmp_eq_u32 s{sWIN}, 1")
    a(f"s_cselect_b32 s{sNW}, s{sN1}, s{sN0}")
    a(f"s_cmp_eq_u32 s{sWIN}, 2")
    a(f"s_cselect_b32 s{sNW}, s{sN2}, s{sNW}")
    a(f"s_cmp_eq_u32 s{sWIN}, 3")
    a(f"s_cselect_b32 s{sNW}, s{sN3}, s{sNW}")
    a(f"s_add_u32 s{sNT}, s{sNW}, 31")
    a(f"s_lshr_b32 s{sNT}, s{sNT}, 5")
    wg_sync(a)
    a.vm = []
    stamp(a, 5)
    fstamp(a, 2, 9)
    fstamp(a, 3, 1)
    held_stores(2)
    if OPT["AUP"] == 2:
        a(f"s_cmp_lg_u32 s{sROUND}, 0")
        a("s_cbranch_scc1 B_NOST")
        stage_weights(a, 0, pU, "st2")
        a.label("B_NOST")
        held_stores(3)
        a.vm = []
    ln = vT
    lane_id(a, ln)
    a(f"v_and_b32 v{vT+1}, 31, v{ln}")
    a(f"s_lshl_b32 s{sA}, s{sWIN}, 12")
    a(f"s_add_u32 s{sA}, s{sA}, {L_TMP + 4}")
    a(f"v_lshl_add_u32 v{vT+2}, v{vT+1}, 3, s{sA}")
    a(f"s_lshl_b32 s{sA}, s{sFH}, 8")
    a(f"v_add_u32 v{vT+3}, s{sA}, v{vT+2}")
    for i in range(NUP // 2):
        a(f"ds_read_b32 v{FR+i}, v{vT+3} offset:{512*i}", f"ei{i}")
    for t in range(NUP, TCAP):
        a(f"ds_read_b32 v{EF+4*t}, v{vT+2} offset:{256*t}", f"el{t}")
    a(f"v_lshrrev_b32 v{ln}, 5, v{ln}")
    a(f"v_lshlrev_b32 v{ln}, 4, v{ln}")
    a(f"v_sub_u32 v{vT+1}, s{sNW}, v{vT+1}")
    a(f"s_lshl_b32 s{sA}, s{sFH}, 5")
    a(f"v_subrev_u32 v{vT+3}, s{sA}, v{vT+1}")
    a(f"v_mov_b32 v{vT+2}, {BIGOFF}")
    for i in range(NUP // 2):
        a.wait_lg(f"ei{i}")
        a(f"v_cmp_lt_i32 vcc, {64*i}, v{vT+3}")
        a(f"v_add_u32 v{FR+i}, v{FR+i}, v{ln}")
        a(f"v_cndmask_b32 v{FR+i}, v{vT+2}, v{FR+i}, vcc")
        if i == 0 and OPT["AUB"]:
            a("s_barrier")
        if i < OPT["E0"]:
            e_load(a, i)
    for t in range(NUP, TCAP):
        a.wait_lg(f"el{t}")
        a(f"v_cmp_lt_i32 vcc, {32*t}, v{vT+1}")
        a(f"v_add_u32 v{EF+4*t}, v{EF+4*t}, v{ln}")
        a(f"v_cndmask_b32 v{EF+4*t}, v{vT+2}, v{EF+4*t}, vcc")


def list_fields(a, tid, tag):
    c0, c1, c2, kv = vT + 1, vT + 2, vT + 3, vIX
    a(f"v_lshlrev_b32 v{c0}, 3, v{tid}")
    for j in range(4):
        a(f"ds_read_b32 v{MSG+j}, v{c0} offset:{L_TMP + 4096*j}")
    a(f"v_and_b32 v{c0}, 7, v{tid}")
    a(f"v_lshlrev_b32 v{c0}, 3, v{c0}")
    a(f"v_bfe_u32 v{c1}, v{tid}, 3, 2")
    a(f"v_lshl_add_u32 v{c0}, v{c1}, 1, v{c0}")
    a(f"v_lshrrev_b32 v{c1}, 5, v{tid}")
    a(f"v_lshl_add_u32 v{c0}, v{c1}, 6, v{c0}")
    a(f"v_lshlrev_b32 v{c1}, 8, v{c1}")
    a(f"v_bfe_u32 v{c2}, v{tid}, 2, 1")
    a(f"v_lshl_add_u32 v{c1}, v{c2}, 7, v{c1}")
    a(f"v_bfe_u32 v{c2}, v{tid}, 3, 1")
    a(f"v_and_b32 v{kv}, 3, v{tid}")
    a(f"v_lshl_add_u32 v{kv}, v{c2}, 2, v{kv}")
    a(f"v_or_b32 v{kv}, 0x0c0c0c00, v{kv}")
    a(f"v_mov_b32 v{kv+1}, {INC[0] | INC[1] << 8 | INC[2] << 16 | INC[3] << 24}")
    a(f"s_mov_b32 s{sA}, {INC[4] | INC[5] << 8 | INC[6] << 16 | INC[7] << 24}")
    a(f"v_perm_b32 v{kv}, s{sA}, v{kv+1}, v{kv}")
    a(f"v_and_b32 v{c2}, 16, v{tid}")
    a(f"v_add_u32 v{c2}, 4, v{c2}")
    a(f"v_lshlrev_b32 v{kv}, v{c2}, v{kv}")
    a(f"v_lshlrev_b32 v{c2}, 2, v{tid}")
    a.wait_all(vm=False)
    for w in range(4):
        a(f"v_cmp_gt_u32 vcc, s{sN0+w}, v{tid}")
        a("s_mov_b64 exec, vcc")
        a(f"s_cbranch_execz {tag}{w}")
        r, d, u = MSG + w, MSG + 4, MSG + 5
        a(f"v_and_b32 v{u}, 0x7fff, v{r}")
        a(f"ds_write_b16 v{c0}, v{u} offset:{L_SRC + w*SRC_W}")
        a(f"v_bfe_u32 v{d}, v{r}, 15, 5")
        a(f"v_lshl_add_u32 v{u}, v{d}, 2, v{c1}")
        a(f"ds_add_u32 v{u}, v{kv} offset:{L_AGM + w*AGM_W}")
        a(f"v_and_b32 v{u}, 3, v{d}")
        a(f"v_mul_u32_u24 v{u}, 0x5555, v{u}")
        a(f"ds_write_b16 v{c2}, v{u} offset:{L_SEL + w*SEL_W + 2}")
        a(f"v_lshrrev_b32 v{u}, 4, v{d}")
        a(f"v_add_u32 v{u}, v{u}, v{c2}")
        a(f"v_and_b32 v{r}, 8, v{d}")
        a(f"v_lshlrev_b32 v{r}, 2, v{r}")
        a(f"v_and_b32 v{d}, 4, v{d}")
        a(f"v_lshl_or_b32 v{r}, v{d}, 4, v{r}")
        a(f"ds_write_b8 v{u}, v{r} offset:{L_SEL + w*SEL_W}")
        a.label(f"{tag}{w}")
        a("s_mov_b64 exec, -1")
    a.wait_all(vm=False)


def valu_stream(base):
    g, h = base, base + 16
    steps = []
    for j in range(20):
        st = []
        if j < 16:
            st.append(f"v_exp_f32 v{g+j}, v{g+j}")
        if 0 <= j - 1 < 16:
            st.append(f"v_fma_f32 v{g+j-1}, v{g+j-1}, v{h+j-1}, v{h+j-1}")
        if 0 <= j - 2 < 16 and not (OPT["CUT"] and j % 2):
            st.append(f"v_rcp_f32 v{g+j-2}, v{g+j-2}")
        if j - 3 >= 1 and (j - 3) % 2 == 1 and j - 3 < 16:
            m = (j - 4) // 2
            st.append(f"v_cvt_pk_bf16_f32 v{MSG+m}, v{g+2*m}, v{g+2*m+1}")
        steps.append(st)
    return steps


def dma_ops(v):
    st = v % NS
    return [(f"s_add_u32 m0, s{sRING}, {st*4096 + i*1024}",
             f"buffer_load_dwordx4 v{vVO+i}, {sr(sTAB,4)}, s{sFT1 if v & 1 else sFT0} offen lds", f"d{v}")
            for i in range(4)]


def issue_dma(a, v):
    ops = dma_ops(v)
    a(ops[0][0])
    for i, (m0w, ld, tg) in enumerate(ops):
        a("s_nop 0")
        a(ld, tg)
        if i + 1 < 4:
            a(ops[i + 1][0])


def voffs(a):
    for i in range(4):
        sel = " op_sel:[1,0,0,0]" if i & 1 else ""
        a(f"v_mad_u32_u16 v{vVO+i}, v{vIX + (i >> 1)}, s{s512}, v{vLC + (i & 1)}{sel}")


def frag_reads(v):
    return [(f"ds_read_b128 {vr(FR+4*i,4)}, v{vFA+i} offset:{(v % NS)*4096}", f"f{v}") for i in range(4)]


def main_mfmas(v):
    t, f = v >> 1, v & 1
    g = ACC + 32 * (v & 1)
    h = g + 16
    return [mfma(g, FR, ID, None), mfma(h, FR + 8, ID, None), mfma(g, FR + 4, ID + 4, g), mfma(h, FR + 12, ID + 4, h),
            mfma(g, e_reg(t), CW + 4*f, g),
            f"v_smfmac_f32_32x32x32_bf16 {vr(g, 16)}, {vr(SEL, 4)}, {vr(XA + 8*f, 8)}, v{SEL + 4}"]


def agg_mfmas(v):
    d = AGG + 16 * (v & 1)
    return [mfma(d, MSG, AOH, d), mfma(d, MSG + 4, AOH + 4, d)]


def rd_idx(a, t):
    a(f"ds_read_b64 {vr(vIX,2)}, v{vIA} offset:{64*t}", f"ix{t}")


def rd_sel_addr(a, t):
    a(f"ds_read_u8 v{vS0}, v{vSA} offset:{128*t}", f"sa{t}")


def rd_sel(a, t):
    a.wait_lg(f"sa{t}")
    a(f"ds_read_b128 {vr(SEL,4)}, v{vS0} offset:{L_LUT1}", f"s{t}")
    a(f"ds_read_u16 v{SEL+4}, v{vSI} offset:{128*t}", f"s{t}")


def rd_agg_addr(a, t):
    a(f"ds_read_u16 v{vG0}, v{vGA} offset:{256*t}", f"ga{t}")
    a(f"ds_read_u16 v{vG0+1}, v{vGA} offset:{256*t + 2}", f"ga{t}")


def rd_agg(a, t):
    a.wait_lg(f"ga{t}")
    a(f"ds_read_b128 {vr(AOH,4)}, v{vG0} offset:{L_LUT2}", f"g{t}")
    a(f"ds_read_b128 {vr(AOH+4,4)}, v{vG0+1} offset:{L_LUT2}", f"g{t}")


def slot(a, u):
    t, f = u >> 1, u & 1
    pre = {j: [] for j in range(20)}
    post = {j: [] for j in range(20)}
    a.wait_all(vm=False)
    if f == 0 and OPT["FAIR"] and t > 0:
        a(f"v_readfirstlane_b32 s{sA}, v{vT+2}")
        post[0].append(lambda: (a(f"s_mul_i32 s{sA}, s{sA}, s{sSGN}"), a("s_setprio 0"), a(f"s_cmp_ge_i32 s{sA}, 0"),
                                a(f"s_cbranch_scc1 F{u}"), a("s_setprio 1"), a.label(f"F{u}")))
    g = agg_mfmas(u - 1) if u > 0 else [None, None]
    m = main_mfmas(u + 1)
    order = [m[0], m[1], g[0], m[2], m[3], g[1], m[4], m[5], None]
    for i, x in enumerate(order):
        if x:
            pre[i].append(lambda x=x: a(x))
    if f == 0 and NUP <= t + OPT["ED"] < TCAP:
        post[9].append(lambda: e_load_late(a, t + OPT["ED"]))
    if f == 1:
        pre[6].insert(0, lambda: a.wait_vm(f"e{t + 1}"))
    L0, D0 = OPT["L0"], OPT["D0"]
    pre[L0].append(lambda: a.wait_vm(f"d{u + 2}"))
    for i, (rd, tg) in enumerate(frag_reads(u + 2)):
        pre[L0 + i].append(lambda rd=rd, tg=tg: a(rd, tg))
    pre[D0].append(lambda: a.wait_lg(f"f{u + 2}"))
    nv = u + 2 + AH
    if nv % 2 == 0:
        pre[0].append(lambda: rd_idx(a, nv // 2))
        pre[D0].append(lambda: voffs(a))
    for i, (m0w, ld, tg) in enumerate(dma_ops(nv)):
        pre[D0 + i].append(lambda m0w=m0w: a(m0w))
        post[D0 + i].append(lambda ld=ld, tg=tg: a(ld, tg))
    if f == 0:
        pre[1].append(lambda: rd_sel_addr(a, t + 1))
        post[D0].append(lambda: rd_agg(a, t))
        post[D0 + 1].append(lambda: rd_sel(a, t + 1))
    else:
        pre[2].append(lambda: rd_agg_addr(a, t + 1))
        if OPT["FAIR"]:
            post[D0 + 1].append(lambda: a(f"ds_add_rtn_u32 v{vT+2}, v{vT}, v{vT+1}"))
    for j, st in enumerate(valu_stream(ACC + 32 * f)):
        for fn in pre[j]:
            fn()
        for s in st:
            a(s)
        for fn in post[j]:
            fn()


def gen():
    a = Asm()
    a(f"s_cmp_ge_u32 s2, {NWG}")
    a("s_cbranch_scc1 K_END")
    stamp(a, 0)
    a(f"s_load_dwordx2 s[{pWS}:{pWS+1}], s[0:1], 72")
    a(f"s_load_dwordx4 s[{pSRC}:{pSRC+3}], s[0:1], 16")
    a("s_load_dwordx4 s[4:7], s[0:1], 0")
    a(f"s_load_dwordx4 s[{pU}:{pU+3}], s[0:1], 32")
    a(f"s_load_dwordx2 s[{pG}:{pG+1}], s[0:1], 48")
    a(f"s_load_dwordx2 s[{sTA}:{sTA+1}], s[0:1], 56")
    a("s_mov_b32 s3, s2")
    a(f"s_and_b32 s{sA}, s2, 7")
    a(f"s_lshl_b32 s{sA}, s{sA}, 5")
    a("s_lshr_b32 s2, s2, 3")
    a(f"s_add_u32 s2, s2, s{sA}")
    a(f"v_mov_b32 v{tid}, v0")
    a(f"v_lshrrev_b32 v{vT}, 6, v0")
    a(f"s_mov_b32 s{sJOB}, s3")
    a(f"v_readfirstlane_b32 s{sW}, v{vT}")
    a(f"s_mov_b32 s{sHELP}, 0")
    a(f"s_mov_b32 s{sPAR}, 0")
    a(f"s_mov_b32 s{sROUND}, 0")
    a(f"s_mov_b32 s{sR}, {RMAX}")
    a(f"s_mov_b32 s{s512}, {0 if OPT['HIT'] else 512}")
    a(f"s_mov_b32 s{sNL}, {NL2E}")
    a(f"s_lshr_b32 s{sWIN0}, s{sW}, 1")
    a(f"s_mov_b32 s{sWIN}, s{sWIN0}")
    a(f"s_and_b32 s{sFH}, s{sW}, 1")
    a(f"s_mul_i32 s{sRING}, s{sW}, {RW}")
    a(f"s_add_u32 s{sRING}, s{sRING}, {L_RING}")
    window_regs(a, sWIN0, sNODE0, sWSZ0)
    a(f"s_lshl_b32 s{sFT0}, s{sFH}, 8")
    a(f"s_add_u32 s{sFT1}, s{sFT0}, 128")
    a(f"s_cmp_ge_u32 s{sW}, 4")
    a(f"s_cselect_b32 s{sSGN}, -1, 1")
    a.wait_all(vm=False)
    srd(a, sOUT, sTA, N * 256)
    srd(a, sX, 4, N * 256)
    srd(a, sEA, 6, E * 32)
    srd(a, sCELL, pWS, CELL_SZ, CELL_OFF)
    srd(a, sREC, pWS, REC_SZ, REC_OFF)
    a.label("K_SORT")

    def stage_rows():
        a(f"s_mov_b32 s{sNT}, s{sB}")
        stage_x(a, sNODE0, "st")
        a(f"s_mov_b32 s{sB}, s{sNT}")

    def stage_v():
        stage_matrix(a, pV, 32768, 0, 1, "st")

    def shadow():
        if OPT["WPF"]:
            keep = list(a.vm)
            lane_id(a, vT)
            a(f"s_lshr_b32 s{sA}, s3, 3")
            for w, ptr, size, n in ((5, pG, 272 * 256, 17), (6, pV, 32768, 8), (7, pU, 32768, 8)):
                a(f"s_cmp_lg_u32 s{sW}, {w}")
                a(f"s_cbranch_scc1 K_WP{w}")
                srd(a, sTA, ptr, size)
                a(f"s_mul_i32 s{sC}, s{sA}, {n}")
                a(f"v_add_lshl_u32 v{vT+1}, v{vT}, s{sC}, 7")
                a(f"s_mov_b64 exec, {(1 << n) - 1}")
                a(f"buffer_load_dword v{AGG+31}, v{vT+1}, {sr(sTA,4)}, 0 offen")
                a("s_mov_b64 exec, -1")
                a.label(f"K_WP{w}")
            a.vm = keep
        weight_offset(a)
        (stage_v if OPT["SORD"] else stage_rows)()
        a(f"s_add_u32 s{sFLG}, s{pWS}, {FLG_OFF + F_TAG}")
        a(f"s_addc_u32 s{sFLG+1}, s{pWS+1}, 0")
        a(f"s_load_dword s{sTAG}, s[{sFLG}:{sFLG+1}], 0")
        srd(a, sTAB, pWS, TAB_SZ, TAB_OFF)
        init_luts(a)
        lane_consts(a)
        tr_bases(a)
        a.wait_all(vm=False)
        a(f"s_add_u32 s{sTAG}, s{sTAG}, 1")
        srd(a, sFLG, pWS, FLG_SZ, FLG_OFF)

    def stage2():
        stage_matrix(a, pG, 272 * 256, 128, 0, "st")
        a(f"s_cmp_ge_u32 s{sW}, 4")
        a("s_cbranch_scc1 K_NOC")
        a(f"s_mul_i32 s{sA}, s{sW}, 3072")
        a(f"s_sub_u32 s{sC}, 65536, s{sA}")
        a(f"s_lshl_b32 s{sA}, s{sW}, 10")
        a(f"s_add_u32 m0, s{sA}, {L_C}")
        a(f"buffer_load_dwordx4 v{vWO}, {sr(sTA,4)}, s{sC} offen lds")
        a.label("K_NOC")
    sort_job(a, shadow, stage_rows if OPT["SORD"] else stage_v, stage2)
    stamp(a, 2)
    a(f"ds_read_b128 {vr(ID,4)}, v{vIX} offset:{L_LUT1}")
    a(f"ds_read_b128 {vr(ID+4,4)}, v{vIX+1} offset:{L_LUT1}")
    read_x(a, sWIN0)
    if OPT["SIG"]:
        a.wait_all(lg=False)
        last_wave_flag(a, L_SG1, F_SORT, 3, "K_NOS1")
    edge_weights(a)
    table_setup(a, sNODE0, L_TSCR)
    if not OPT["SIG"]:
        a.wait_all(lg=False)
        last_wave_flag(a, L_SG1, F_SORT, 3, "K_NOS1")

    def cells():
        fstamp(a, 1, 8)
        poll(a, F_SORT, L_FB1, "P1", OPT["FORCE1"])
        a.wait_lg("fb")
        a(f"v_readfirstlane_b32 s{sA}, v{vT+3}")
        a(f"s_cmp_lg_u32 s{sA}, 0")
        a("s_cbranch_scc1 K_HELP1")
        a.label("K_SORTED")
        a(f"s_mov_b32 s{sPUT}, 0")
        stamp(a, 3)
        fstamp(a, 1, 9)
        fstamp(a, 2, 1)
        a(f"s_lshl_b32 s{sA}, s2, 2")
        a(f"v_lshrrev_b32 v{vT}, 1, v{tid}")
        a(f"v_lshl_add_u32 v{vT}, v{vT}, 10, s{sA}")
        a(f"buffer_load_dword v{vCELL}, v{vT}, {sr(sCELL,4)}, 0 offen", "cell")

    put0 = table_part(a, 0, XA, cells, None, AGG)

    def records():
        fstamp(a, 2, 2)
        a.wait_vm("cell")
        fstamp(a, 2, 3)
        a(f"v_lshrrev_b32 v{vT}, 16, v{vCELL}")
        a(f"v_add_u32 v{vT+1}, 1, v{vT}")
        a(f"v_lshrrev_b32 v{vT+1}, 1, v{vT+1}")
        a(f"v_sub_u32 v{vT}, v{vT}, v{vT+1}")
        a(f"v_and_b32 v{vCELL}, 0xffff, v{vCELL}")
        a(f"v_and_b32 v{vT+2}, 1, v{tid}")
        a(f"v_cmp_eq_u32 vcc, 1, v{vT+2}")
        a(f"v_mad_u32_u24 v{vCELL}, v{vT+2}, v{vT+1}, v{vCELL}")
        a(f"v_cndmask_b32 v{vT}, v{vT+1}, v{vT}, vcc")
        a(f"v_lshl_or_b32 v{vCELL}, v{vT}, 16, v{vCELL}")
        load_records(a, "K_RL0")
        a.vm = []
        if put0:
            put0()

    def early_count():
        a(f"s_waitcnt vmcnt({len(a.vm)})")
        count_pass(a, "A", True)
        a.wait_all(vm=False)
    a.put1 = table_part(a, 1, XA, early_count if OPT["EB"] else None, {OPT['RK']: records}, ACC if OPT["H1"] else None)
    fstamp(a, 2, 4)
    if OPT["EB"]:
        stamp(a, 4)
        a("s_branch K_COUNTED")
    else:
        a(f"s_waitcnt vmcnt({len(a.vm)})")
        stamp(a, 4)
    a.label("K_BUILD")
    build(a)
    NE = NUP // 2
    window_regs(a, sWIN, sNODE, sWSZ)
    a(f"s_cmp_lg_u32 s{sROUND}, 0")
    a("s_cbranch_scc1 K_PLAIN")
    vm_branch = list(a.vm)
    fstamp(a, 3, 2)
    init_lists(a, "K_I0", False)
    fstamp(a, 3, 3)
    a(f"s_waitcnt vmcnt({OPT['E0']})")
    fstamp(a, 3, 4)
    last_wave_flag(a, L_SG2, F_TAB, 2, "K_NOS2")
    if not OPT["AUP"]:
        stage_weights(a, 0, pU, "st2")
    list_addrs(a)
    fstamp(a, 3, 5)
    if not OPT["LFL"]:
        wg_sync(a)
        list_fields(a, tid, "K_D")
    read_x(a, sWIN)
    fstamp(a, 3, 6)
    ecount = [OPT["E0"]]

    def ehook(n):
        def fn():
            for _ in range(n):
                if ecount[0] < NE:
                    e_load(a, ecount[0])
                    ecount[0] += 1
        return fn
    ehook(OPT["E1"])()
    a.wait_vm("st2")
    wg_sync(a)
    fstamp(a, 3, 7)
    rest = NE - ecount[0]
    hk = lambda n: {0: ehook((n + 1) // 2), 4: ehook(n // 2)}
    node_proj(a, hk((rest + 1) // 2), hk(rest // 2))
    assert ecount[0] == NE
    if OPT["LFL"]:
        list_fields(a, tid, "K_D")
    stamp(a, 6)
    fstamp(a, 3, 8)
    a.wait_all()
    a("s_barrier")
    fstamp(a, 3, 9)
    e_exchange_write(a)
    poll(a, F_TAB, L_FB2, "P2", OPT["FORCE2"])
    a.wait_lg("fb")
    a(f"v_readfirstlane_b32 s{sA}, v{vT+3}")
    a(f"s_cmp_lg_u32 s{sA}, 0")
    a("s_cbranch_scc1 K_HELP2")
    a.label("K_XREAD")
    e_exchange_read(a)
    a.label("K_FILL")
    a.vm = []
    stamp(a, 7)
    a(f"s_cmp_eq_u32 s{sNT}, 0")
    a("s_cbranch_scc1 K_RDONE")
    a(f"v_and_b32 v{vSI}, -4, v{vSA}")
    a(f"v_add_u32 v{vSI}, 2, v{vSI}")
    rd_idx(a, 0)
    rd_sel_addr(a, 0)
    rd_agg_addr(a, 0)
    if OPT["FAIR"]:
        a(f"s_and_b32 s{sA}, s{sW}, 3")
        a(f"s_lshl_b32 s{sA}, s{sA}, 2")
        a(f"s_add_u32 s{sA}, s{sA}, {L_FAIR}")
        a(f"v_mov_b32 v{vT}, s{sA}")
        lane_id(a, vT + 2)
        a(f"v_cmp_eq_u32 vcc, 0, v{vT+2}")
        a(f"v_mov_b32 v{vT+1}, s{sSTEP if OPT['PROP'] else sSGN}")
        a(f"v_lshlrev_b32 v{vT+2}, 2, v{vT+2}")
        a(f"v_cndmask_b32 v{vT+1}, 0, v{vT+1}, vcc")
        a(f"v_cndmask_b32 v{vT}, v{vT+2}, v{vT}, vcc")

    def fill_dma(v):
        if v % 2 == 0:
            a.wait_lg(f"ix{v // 2}")
            voffs(a)
            if v + 2 <= AH + 1:
                rd_idx(a, v // 2 + 1)
        issue_dma(a, v)
    for v in range(AH):
        fill_dma(v)
        if v == 1:
            rd_sel(a, 0)
    for t in range(NUP, TCAP):
        if t - OPT["ED"] < 0:
            e_load_late(a, t)
    a.wait_vm("d0")
    for rd, tg in frag_reads(0):
        a(rd, tg)
    a.wait_lg("f0")
    fill_dma(AH)
    mm = main_mfmas(0)
    for m in mm[:4]:
        a(m)
    a.wait_vm("d1")
    for rd, tg in frag_reads(1):
        a(rd, tg)
    a.wait_lg("s0")
    for m in mm[4:]:
        a(m)
    a.wait_lg("f1")
    fill_dma(AH + 1)
    a(f"s_cmp_eq_u32 s{sNT}, 1")
    a("s_cbranch_scc1 K_ST0")
    for u in range(2 * TCAP - 2):
        slot(a, u)
        if u % 2 == 1 and u < 2 * TCAP - 3:
            a(f"s_cmp_eq_u32 s{sNT}, {(u + 1) // 2 + 1}")
            a(f"s_cbranch_scc1 K_ST{(u + 1) // 2}")
    for t in range(TCAP - 1, -1, -1):
        a.label(f"K_ST{t}")
        for j in range(4):
            a(f"v_mov_b32 v{vVO+j}, v{e_reg(t)+j}")
        if t:
            a("s_branch K_LAST")
    a.wait_all(vm=False)
    a("s_branch K_LAST0")
    a.label("K_LAST")
    a.wait_all(vm=False)
    for m in agg_mfmas(1):
        a(m)
    a.label("K_LAST0")
    a(f"ds_read_b128 {vr(AOH,4)}, v{vG0} offset:{L_LUT2}")
    a(f"ds_read_b128 {vr(AOH+4,4)}, v{vG0+1} offset:{L_LUT2}")
    a(f"s_sub_u32 s{sA}, s{sNT}, 1")
    a(f"s_lshl_b32 s{sA}, s{sA}, 5")
    a(f"s_sub_u32 s{sB}, s{sNW}, s{sA}")
    mm = main_mfmas(1)
    mm[4] = mfma(ACC + 32, vVO, CW + 4, ACC + 32)

    def part(base, tag, extra):
        g, h = base, base + 16
        extra = list(extra)
        for m in range(2, 8):
            a(f"v_mov_b32 v{MSG+m}, 0")
        for q in range(4):
            if q:
                a(f"s_cmp_le_u32 s{sB}, {8*q}")
                a(f"s_cbranch_scc1 {tag}")
            for j in range(4 * q, 4 * q + 4):
                a(f"v_exp_f32 v{g+j}, v{g+j}")
                if extra:
                    a(extra.pop(0))
            for j in range(4 * q, 4 * q + 4):
                a(f"v_fma_f32 v{g+j}, v{g+j}, v{h+j}, v{h+j}")
                if extra:
                    a(extra.pop(0))
            for j in range(4 * q, 4 * q + 4):
                a(f"v_rcp_f32 v{g+j}, v{g+j}")
            for m in (2 * q, 2 * q + 1):
                a(f"v_cvt_pk_bf16_f32 v{MSG+m}, v{g+2*m}, v{g+2*m+1}")
        a.label(tag)
        a("s_nop 1")
    part(ACC, "K_LA", mm)
    a.wait_all(vm=False)
    for m in agg_mfmas(0):
        a(m)
    a("s_nop 3")
    part(ACC + 32, "K_LB", [])
    for m in agg_mfmas(1):
        a(m)
    a.label("K_RDONE")
    stamp(a, 8)
    a(f"s_cmp_lg_u32 s{sMORE}, 0")
    a("s_cbranch_scc1 K_ROUND")
    wr, rd, go = MSG, MSG + 4, vVO
    a(f"s_lshl_b32 s{sC}, s{sFH}, 7")
    line_addrs(a, wr, rd, go, sRING, sNODE, 8, 32, sC, sWSZ)
    for f in range(2):
        g, w = AGG + 16 * f, ACC + 16 * f
        for j in range(16):
            a(f"v_mul_f32 v{w+j}, s{sNL}, v{g+j}")
        for j in range(16):
            a(f"v_exp_f32 v{w+j}, v{w+j}")
        for j in range(16):
            a(f"v_add_f32 v{w+j}, 1.0, v{w+j}")
        for j in range(16):
            a(f"v_rcp_f32 v{w+j}, v{w+j}")
        for j in range(16):
            a(f"v_mul_f32 v{w+j}, v{w+j}, v{g+j}")
        for m in range(8):
            a(f"v_cvt_pk_bf16_f32 v{ACC+32+8*f+m}, v{w+2*m}, v{w+2*m+1}")
    a.wait_all()
    for i in range(4):
        a(f"ds_write_b128 v{wr+i}, {vr(ACC+32+4*i,4)}")
    for i in range(4):
        a(f"ds_read_b128 {vr(ACC+4*i,4)}, v{rd} offset:{1024*i}", f"or{i}")
    for i in range(4):
        a.wait_lg(f"or{i}")
        a(f"buffer_store_dwordx4 {vr(ACC+4*i,4)}, v{go+i}, {sr(sOUT,4)}, 0 offen {OPT['OST'].replace('_', ' ')}")
    a(f"s_cmp_lg_u32 s{sW}, 0")
    a("s_cbranch_scc1 K_FIN")
    a(f"s_cmp_eq_u32 s{sHELP}, 0")
    a("s_cbranch_scc1 K_NOWD")
    a(f"s_sub_u32 s{sB}, s{sTAG}, 1")
    put_flag(a, F_SORT, sB, 3)
    put_flag(a, F_TAB, sB, 2)
    a.label("K_NOWD")
    a("s_cmp_lg_u32 s3, 0")
    a("s_cbranch_scc1 K_FIN")
    a(f"v_mov_b32 v{vT}, {F_TAG}")
    a(f"v_mov_b32 v{vT+1}, s{sTAG}")
    a("s_mov_b64 exec, 1")
    a(f"buffer_store_dword v{vT+1}, v{vT}, {sr(sFLG,4)}, 0 offen sc1")
    a("s_mov_b64 exec, -1")
    a.label("K_FIN")
    if OPT["STAMP"]:
        stamp(a, 9)
        stamp_store(a)
    a.label("K_END")
    a("s_endpgm")

    a.label("K_PLAIN")
    a.vm = list(vm_branch)
    for i in range(OPT["E0"], NE):
        e_load(a, i)
    list_fields(a, tid, "K_P")
    a.wait_all()
    a("s_barrier")
    e_exchange_write(a)
    wg_sync(a)
    a("s_branch K_XREAD")

    a.label("K_OVF")
    a(f"s_cmp_eq_u32 s{sR}, 1")
    a(f"s_cselect_b32 s{sA}, 2, 0")
    a(f"s_or_b32 s{sPAR}, s{sPAR}, s{sA}")
    a(f"s_lshr_b32 s{sR}, s{sR}, 1")
    a(f"s_max_u32 s{sR}, s{sR}, 1")
    a("s_branch K_AGAIN")
    a.label("K_ROUND")
    a(f"s_mov_b32 s{sROUND}, 1")
    a(f"s_xor_b32 s{sPAR}, s{sPAR}, 1")
    a.label("K_AGAIN")
    a("s_setprio 0")
    a("s_nop 7")
    a.wait_all()
    a("s_barrier")
    lane_id(a, tid)
    a(f"s_lshl_b32 s{sA}, s{sW}, 6")
    a(f"v_add_u32 v{tid}, s{sA}, v{tid}")
    load_records(a, "K_RL1", True)
    init_lists(a, "K_I1", True)
    a.wait_all()
    a("s_barrier")
    a("s_branch K_BUILD")

    a.label("K_HELP1")
    a(f"s_mov_b32 s{sHELP}, 1")
    a(f"s_mov_b32 s{sJOB}, 0")
    a.wait_all()
    srd(a, sREC, pWS, REC_SZ, REC2_OFF)
    a("s_branch K_SORT")
    a.label("K_HELP1N")
    a(f"s_add_u32 s{sJOB}, s{sJOB}, 1")
    a(f"s_cmp_lt_u32 s{sJOB}, {NWG}")
    a("s_cbranch_scc1 K_SORT")
    a("s_branch K_SORTED")

    a.label("K_HELP2")
    a(f"s_mov_b32 s{sHELP}, 1")
    a.wait_all()
    a(f"v_mov_b32 v{vG0 - 1}, v{vSA}")
    weight_offset(a)
    stage_weights(a, 128, pV, "h")
    a(f"v_mov_b32 v{vSA}, v{vG0 - 1}")
    a(f"s_mov_b32 s{sJOB}, 0")
    a.label("K_HJOB")
    a(f"s_lshl_b32 s{sA}, s{sWIN0}, 3")
    a(f"s_lshr_b32 s0, {WOFFPK}, s{sA}")
    a(f"s_and_b32 s0, s0, 0xff")
    a(f"s_mul_i32 s{sA}, s{sJOB}, {NB}")
    a(f"s_add_u32 s0, s0, s{sA}")
    stage_x(a, 0, "h")
    a.wait_all()
    a("s_barrier")
    read_x(a, sWIN0)
    wg_sync(a)
    table_setup(a, 0, L_X)
    table_part(a, 0, FR)
    table_part(a, 1, FR)
    a.wait_all()
    a("s_barrier")
    a(f"s_add_u32 s{sJOB}, s{sJOB}, 1")
    a(f"s_cmp_lt_u32 s{sJOB}, {NWG}")
    a("s_cbranch_scc1 K_HJOB")
    e_exchange_write(a)
    wg_sync(a)
    a("s_branch K_XREAD")
    return a


def main():
    k = gen()
    text = k.text()
    ref = open(f"cdna_kernels/{NAME}.s.ref").read().split("; Override launch")[0]
    out = ref + f"; @launch grid=({NWG},1,1) block=(512,1,1) lds={KLDS}\n"
    out += '.amdgcn_target "amdgcn-amd-amdhsa--gfx950"\n.text\n'
    out += f".globl {NAME}_kernel\n.p2align 8\n.type {NAME}_kernel,@function\n{NAME}_kernel:\n{text}"
    out += f""".section .rodata,"a"
.p2align 6
.amdhsa_kernel {NAME}_kernel
  .amdhsa_next_free_vgpr 256
  .amdhsa_next_free_sgpr 102
  .amdhsa_accum_offset 256
  .amdhsa_group_segment_fixed_size 0
  .amdhsa_kernarg_size 80
  .amdhsa_user_sgpr_count 2
  .amdhsa_user_sgpr_kernarg_segment_ptr 1
  .amdhsa_system_sgpr_workgroup_id_x 1
.end_amdhsa_kernel
"""
    open(sys.argv[1], "w").write(out)
    print(f"lds {KLDS} nops {k.nops}; lines {out.count(chr(10))}")


if __name__ == "__main__":
    main()
```

```python
import os
import sys
sys.path.insert(0, os.path.dirname(os.path.abspath(__file__)))
from asmlib import Asm, vr, sr

NAME = "standalone__edge_featured_mpnn_egc__graph"
N, E, D = 25000, 400000, 128
NWG = 256
CH = 1564
RSTR = 12544
NB = 98
WOFF = [0, 25, 49, 73]
WSZ = [25, 24, 24, 25]
RMAX = 12
assert NWG * CH >= E and CH % 4 == 0 and CH * 8 <= RSTR and NWG * NB >= N
TAB_OFF, TAB_SZ = 0, N * 512
REC_OFF, REC_SZ = 0xC40000, NWG * RSTR
CELL_OFF, CELL_SZ = 0x1800000, NWG * 2048
FLG_OFF, FLG_SZ = 0xFC0000, 16384 + 128
REC2_OFF = 0x1400000
F_TAB, F_TAG = 8192, 16384
assert REC_OFF + REC_SZ <= FLG_OFF
NL2E = 0xBFB8AA3B
BIGOFF = 0x7FFFFF00
DIVB = 10700
assert all((d * DIVB) >> 20 == d // NB for d in range(N))
WOFFPK = WOFF[0] | WOFF[1] << 8 | WOFF[2] << 16 | WOFF[3] << 24
WINM = 337
assert all((d * WINM) >> 13 == max(i for i in range(4) if WOFF[i] <= d) for d in range(NB))
SBIN = 1342
assert ((N - 1) * SBIN) >> 20 == 31
POLL_LIMIT = 4000

OPT = dict(NS=3, LAG=1, NUP=10, ED=3, OST="sc1", E0=2, PRE=0, PAIR=1, STAMP=0, FAIR=1, FORCE1=0, FORCE2=0, L0=5, D0=11, HIT=0, CYC=0, RK=0, SORD=0, E1=2, FINE=0, CUT=0, PF="a", PFL=25, SIG=1, AUP=2, PROP=1, LFL=1, SB=2, DF=0, WPF=1, EB=2, AUB=1, H1=0, VO=0, P2E=0, PC=1, OPF=2, OPL=25, XC=0, CI=7)
for kv in sys.argv[2:]:
    k, v = kv.split("=")
    OPT[k] = int(v) if v.lstrip("-").isdigit() else v
NS = OPT["NS"]
TCAP = 16 if NS == 3 else 15
INC = [1, 2, 4, 8, 19, 37, 86, 169] if NS == 3 else [1 << b for b in range(8)]
RW = NS * 4096
AH = NS - OPT["LAG"]
NUP = OPT["NUP"]
assert NUP % 2 == 0 and 2 <= NUP <= TCAP

L_LUT2 = 0
L_LUT1 = L_LUT2 + (sum(INC) + 1) * 16
L_BIN = L_LUT1 + 144
L_MORE, L_FB1, L_FB2, L_SG1, L_SG2, L_FAIR = [L_BIN + o for o in (512, 528, 532, 536, 540, 544)]
L_BST = L_BIN + 576
L_SRC = L_BST + 512
SRC_W = (TCAP + 2) * 64
L_SEL = L_SRC + 4 * SRC_W
SEL_W = TCAP * 128
L_AGM = L_SEL + 4 * SEL_W
AGM_W = TCAP * 256
L_END = L_AGM + 4 * AGM_W
if NS == 3:
    L_TMP = L_END
    L_RING = (L_TMP + 16384 + 4095) // 4096 * 4096
    L_W, L_X, L_C = L_RING, L_RING + 65536, L_RING + 98304
    KLDS = L_C + 4096
else:
    L_RING = 32768
    L_TMP, L_C, L_W, L_X = L_RING, L_RING + 16384, L_RING + 32768, L_RING + 98304
    KLDS = L_RING + 8 * RW
    assert L_END <= L_RING
L_HC = L_SEL
L_HIST, L_START = L_SRC, L_SRC + 1024
L_TSCR = (L_SEL + 127) // 128 * 128
assert all(x % 16 == 0 for x in (L_LUT1, L_BIN, L_BST, L_SRC, L_SEL, L_AGM, L_TMP)) and KLDS <= 163840
assert L_TMP + 16384 <= 65536 and L_TSCR + 32768 <= L_TMP + 16384

vCELL = 0
vFA, vLC, vIA, vVO, vIX, vSA, vGA, vS0, vG0, vT = 1, 5, 7, 8, 12, 14, 15, 16, 18, 20
MSG, FR, SEL, AOH, ACC, EF, AGG, XA, CW, ID = 24, 32, 48, 56, 64, 128, 192, 224, 240, 248
XF = ACC + 32
tid, vN = vS0, vS0 + 1
vTR = vG0
vWO = vSA
vBIG = MSG + 7
vCG = FR + 12
vPUB = EF + 52
vSI = SEL + 5
sFLG, sTA = 4, 20
sX, sEA, sOUT, sTAB, sREC, sCELL, sTB = 24, 28, 32, 36, 40, 44, 48
(sW, sWIN, sFH, sRING, sNT, sNW, sR, sMORE, s512, sFT0, sFT1, sNL, sA, sB, sC, sNODE, sROUND, sSGN,
 sN0, sN1, sN2, sN3, sJOB, sWSZ, sWIN0, sWSZ0, sNODE0, sTAG, sHELP, sPAR) = range(52, 82)
sSTEP = sNODE0
pSRC, pDST, pU, pV, pG, pWS = 8, 10, 12, 14, 16, 18
NST = 10


def srd(a, d, lo, size, off=0):
    if off:
        a(f"s_add_u32 s{d}, s{lo}, {off}")
        a(f"s_addc_u32 s{d+1}, s{lo+1}, 0")
        a(f"s_and_b32 s{d+1}, s{d+1}, 0xffff")
    else:
        a(f"s_mov_b32 s{d}, s{lo}")
        a(f"s_and_b32 s{d+1}, s{lo+1}, 0xffff")
    a(f"s_mov_b32 s{d+2}, {size}")
    a(f"s_mov_b32 s{d+3}, 0x20000")


def scan16(a, v):
    for sh in (1, 2, 4, 8):
        a(f"v_add_u32_dpp v{v}, v{v}, v{v} row_shr:{sh} row_mask:0xf bank_mask:0xf bound_ctrl:1")


def scan64(a, v):
    scan16(a, v)
    a(f"v_add_u32_dpp v{v}, v{v}, v{v} row_bcast:15 row_mask:0xa bank_mask:0xf")
    a(f"v_add_u32_dpp v{v}, v{v}, v{v} row_bcast:31 row_mask:0xc bank_mask:0xf")


def mfma(d, x, y, c):
    cs = "0" if c is None else vr(c, 16)
    return f"v_mfma_f32_32x32x16_bf16 {vr(d, 16)}, {vr(x, 4)}, {vr(y, 4)}, {cs}"


def fstamp(a, grp, k):
    if OPT["STAMP"] and OPT["FINE"] == grp:
        a(f"s_memrealtime s[{82 + 2*k}:{83 + 2*k}]")
        a.lg = [t for t in a.lg if t != "smem"] + ["smem"]


def stamp(a, k):
    if OPT["STAMP"] and (k == 0 or not OPT["FINE"]):
        a(f"s_memrealtime s[{82 + 2*k}:{83 + 2*k}]")
        if OPT["CYC"] and k in (7, 8):
            a(f"s_memtime s[{82 + 2*(k - 6)}:{83 + 2*(k - 6)}]")
        a.lg = [t for t in a.lg if t != "smem"] + ["smem"]


def stamp_store(a):
    a.wait_all()
    srd(a, sTA, pWS, 1 << 20, 0x1000000)
    a(f"s_lshl_b32 s{sA}, s2, 3")
    a(f"s_add_u32 s{sA}, s{sA}, s{sW}")
    a(f"s_lshl_b32 s{sA}, s{sA}, 6")
    a(f"v_mov_b32 v1, s{sA}")
    for k in range(12):
        a(f"v_mov_b32 v{8+k}, s{82+2*min(k, NST - 1)}")
    for q in range(3):
        a(f"buffer_store_dwordx4 {vr(8+4*q,4)}, v1, {sr(sTA,4)}, 0 offen offset:{16*q}")


def lane_id(a, v):
    a(f"v_mbcnt_lo_u32_b32 v{v}, -1, 0")
    a(f"v_mbcnt_hi_u32_b32 v{v}, -1, v{v}")


def wg_sync(a):
    a.wait_all(vm=False)
    a("s_barrier")


def put_flag(a, base, sval, sid):
    lane_id(a, vT)
    a(f"s_lshl_b32 s{sA}, s{sid}, 2")
    a(f"s_add_u32 s{sA}, s{sA}, {base}")
    a(f"v_cmp_gt_u32 vcc, 8, v{vT}")
    a(f"v_lshl_add_u32 v{vT}, v{vT}, 10, s{sA}")
    a(f"v_mov_b32 v{vT+1}, s{sval}")
    a("s_mov_b64 exec, vcc")
    keep = list(a.vm)
    a(f"buffer_store_dword v{vT+1}, v{vT}, {sr(sFLG,4)}, 0 offen sc1")
    a.vm = keep
    a("s_mov_b64 exec, -1")


def poll(a, base, fbaddr, tag, force, between=None):
    a(f"s_cmp_lg_u32 s{sW}, 0")
    a(f"s_cbranch_scc1 {tag}_D")
    lane_id(a, vT)
    a(f"s_and_b32 s{sA}, s3, 7")
    a(f"s_lshl_b32 s{sA}, s{sA}, 10")
    a(f"s_add_u32 s{sA}, s{sA}, {base}")
    a(f"v_lshl_add_u32 v{vT}, v{vT}, 4, s{sA}")
    a(f"s_mov_b32 s{sB}, 0")
    keep = list(a.vm)
    a.label(f"{tag}_L")
    a(f"buffer_load_dwordx4 {vr(FR,4)}, v{vT}, {sr(sFLG,4)}, 0 offen sc1")
    a("s_waitcnt vmcnt(0)")
    for j in range(4):
        a(f"v_xor_b32 v{FR+j}, s{sTAG}, v{FR+j}")
    a(f"v_or_b32 v{FR}, v{FR}, v{FR+1}")
    a(f"v_or3_b32 v{FR}, v{FR}, v{FR+2}, v{FR+3}")
    a(f"v_cmp_ne_u32 vcc, 0, v{FR}")
    if not force:
        a(f"s_cbranch_vccz {tag}_D")
    a("s_sleep 2")
    a(f"s_add_u32 s{sB}, s{sB}, 1")
    a(f"s_cmp_lt_u32 s{sB}, {3 if force else POLL_LIMIT}")
    a(f"s_cbranch_scc1 {tag}_L")
    a(f"v_mov_b32 v{vT}, {fbaddr}")
    a(f"v_mov_b32 v{vT+1}, 1")
    a(f"ds_write_b32 v{vT}, v{vT+1}")
    a.vm = keep
    a.label(f"{tag}_D")
    if between:
        between()
    wg_sync(a)
    a(f"v_mov_b32 v{vT+3}, {fbaddr}")
    a(f"ds_read_b32 v{vT+3}, v{vT+3}", "fb")


def init_lists(a, tag, bins):
    for j in range(4):
        a(f"v_mov_b32 v{MSG+j}, 0")
        a(f"v_mov_b32 v{MSG+4+j}, 0x80808080")
    a(f"v_lshlrev_b32 v{vT}, 4, v{tid}")
    tails = []
    regions = [(L_AGM, 4 * AGM_W, MSG), (L_SEL, 4 * SEL_W, MSG + 4), (L_SRC, 4 * SRC_W, MSG)]
    if bins:
        regions.append((L_BIN, 528, MSG))
    for off, n, val in regions:
        for p in range(n // 8192):
            a(f"ds_write_b128 v{vT}, {vr(val,4)} offset:{off + 8192*p}")
        tails.append(((n % 8192) // 16, off + n // 8192 * 8192, val))
    for cnt, off, val in sorted(tails, reverse=True):
        a(f"v_cmp_gt_u32 vcc, {cnt}, v{tid}")
        a("s_mov_b64 exec, vcc")
        a(f"s_cbranch_execz {tag}")
        a(f"ds_write_b128 v{vT}, {vr(val,4)} offset:{off}")
    a.label(tag)
    a("s_mov_b64 exec, -1")


def init_luts(a):
    t0, t1 = vT + 1, vT + 2
    a(f"v_cmp_gt_u32 vcc, 256, v{tid}")
    a("s_mov_b64 exec, vcc")
    a("s_cbranch_execz K_L1")
    a(f"v_and_b32 v{t0}, 15, v{tid}")
    for b in range(4, 8):
        a(f"v_bfe_u32 v{t1}, v{tid}, {b}, 1")
        a(f"s_mov_b32 s{sA}, {INC[b]}")
        a(f"v_mad_u32_u24 v{t0}, v{t1}, s{sA}, v{t0}")
    a(f"v_lshlrev_b32 v{t0}, 4, v{t0}")
    a(f"v_lshl_or_b32 v{t1}, v{tid}, 15, v{tid}")
    for m in range(4):
        a(f"v_and_b32 v{MSG+m}, {0x10001 << (2*m)}, v{t1}")
        a(f"v_mul_u32_u24 v{MSG+m}, {0x3F80 >> (2*m)}, v{MSG+m}")
    a(f"ds_write_b128 v{t0}, {vr(MSG,4)} offset:{L_LUT2}")
    a(f"v_lshrrev_b32 v{t0}, 2, v{tid}")
    a(f"v_and_b32 v{t1}, 3, v{tid}")
    a(f"v_lshrrev_b32 v{MSG+4}, 1, v{t0}")
    a(f"v_cmp_eq_u32 vcc, v{MSG+4}, v{t1}")
    a(f"v_and_b32 v{t0}, 1, v{t0}")
    a(f"v_lshlrev_b32 v{t0}, 4, v{t0}")
    a(f"v_mov_b32 v{t1}, 0x3f80")
    a(f"v_lshlrev_b32 v{t0}, v{t0}, v{t1}")
    a(f"v_cndmask_b32 v{t0}, 0, v{t0}, vcc")
    a(f"v_lshlrev_b32 v{t1}, 2, v{tid}")
    a(f"v_mov_b32 v{MSG+4}, 0")
    a(f"v_cmp_gt_u32 vcc, 144, v{tid}")
    a("s_mov_b64 exec, vcc")
    a("s_cbranch_execz K_L1")
    a(f"ds_write_b32 v{t1}, v{MSG+4} offset:{L_BIN}")
    a(f"v_cmp_gt_u32 vcc, 36, v{tid}")
    a("s_mov_b64 exec, vcc")
    a("s_cbranch_execz K_L1")
    a(f"ds_write_b32 v{t1}, v{t0} offset:{L_LUT1}")
    a.label("K_L1")
    a("s_mov_b64 exec, -1")


def lane_consts(a):
    ln, r, h, z = vT + 3, vT, vT + 1, vT + 2
    lane_id(a, ln)
    a(f"v_and_b32 v{r}, 31, v{ln}")
    a(f"v_lshrrev_b32 v{h}, 5, v{ln}")
    a(f"v_bfe_u32 v{z}, v{ln}, 1, 3")
    a(f"v_xor_b32 v{z}, v{z}, v{h}")
    a(f"v_lshlrev_b32 v{z}, 4, v{z}")
    a(f"v_lshl_add_u32 v{z}, v{r}, 7, v{z}")
    a(f"v_add_u32 v{vFA}, s{sRING}, v{z}")
    for i, c in ((1, 2), (2, 4), (3, 6)):
        a(f"v_xor_b32 v{vFA+i}, {c << 4}, v{vFA}")
    a(f"v_lshrrev_b32 v{z}, 4, v{ln}")
    a(f"v_and_b32 v{vLC}, 7, v{ln}")
    a(f"v_xor_b32 v{vLC}, v{vLC}, v{z}")
    a(f"v_lshlrev_b32 v{vLC}, 4, v{vLC}")
    a(f"v_xor_b32 v{vLC+1}, 64, v{vLC}")
    a(f"v_bfe_u32 v{z}, v{r}, 3, 1")
    a(f"v_and_b32 v{vIX}, 3, v{r}")
    a(f"v_lshl_add_u32 v{z}, v{z}, 2, v{vIX}")
    a(f"v_lshlrev_b32 v{z}, 4, v{z}")
    a(f"v_lshrrev_b32 v{vIX}, 4, v{r}")
    a(f"v_cmp_eq_u32 vcc, v{vIX}, v{h}")
    a(f"v_mov_b32 v{h}, 128")
    a(f"v_cndmask_b32 v{z}, v{h}, v{z}, vcc")
    a(f"v_and_b32 v{r}, 4, v{r}")
    a(f"v_cmp_eq_u32 vcc, 0, v{r}")
    a(f"v_cndmask_b32 v{vIX}, v{h}, v{z}, vcc")
    a(f"v_cndmask_b32 v{vIX+1}, v{z}, v{h}, vcc")


def tr_bases(a):
    ln, r, u = vT + 3, vT, vT + 1
    lane_id(a, ln)
    a(f"v_bfe_u32 v{r}, v{ln}, 2, 2")
    a(f"v_lshrrev_b32 v{u}, 5, v{ln}")
    a(f"v_lshl_add_u32 v{u}, v{u}, 3, v{r}")
    a(f"v_lshlrev_b32 v{vTR}, 8, v{u}")
    a(f"s_lshl_b32 s{sA}, s{sFH}, 1")
    a(f"v_xor_b32 v{r}, s{sA}, v{r}")
    a(f"v_lshl_add_u32 v{vTR}, v{r}, 6, v{vTR}")
    a(f"v_and_b32 v{u}, 1, v{ln}")
    a(f"v_lshl_add_u32 v{vTR}, v{u}, 5, v{vTR}")
    a(f"v_bfe_u32 v{u}, v{ln}, 4, 1")
    a(f"v_lshl_add_u32 v{vTR}, v{u}, 4, v{vTR}")
    a(f"v_bfe_u32 v{u}, v{ln}, 1, 1")
    a(f"v_lshl_add_u32 v{vTR}, v{u}, 3, v{vTR}")
    a(f"v_add_u32 v{vTR}, {L_W}, v{vTR}")
    a(f"v_xor_b32 v{vTR+1}, 64, v{vTR}")


def weight_offset(a):
    q, p = vT, vT + 1
    lane_id(a, p)
    a(f"v_lshrrev_b32 v{q}, 4, v{p}")
    a(f"v_and_b32 v{p}, 15, v{p}")
    a(f"v_lshlrev_b32 v{vWO}, 2, v{q}")
    a(f"v_xor_b32 v{vWO}, v{vWO}, v{p}")
    a(f"v_lshlrev_b32 v{vWO}, 4, v{vWO}")
    a(f"v_lshl_add_u32 v{vWO}, v{q}, 8, v{vWO}")
    a(f"s_lshl_b32 s{sA}, s{sW}, 12")
    a(f"v_add_u32 v{vWO}, s{sA}, v{vWO}")


def stage_matrix(a, ptr, size, row, half, tag):
    srd(a, sTA, ptr, size)
    a(f"s_lshl_b32 s{sA}, s{sW}, 12")
    a(f"s_mov_b32 s{sC}, {row * 256}")
    a(f"s_add_u32 m0, s{sA}, {L_W + 32768 * half}")
    for i in range(4):
        a(f"buffer_load_dwordx4 v{vWO}, {sr(sTA,4)}, s{sC} offen offset:{1024*i} lds", tag)


def stage_weights(a, grow, pother, tag):
    stage_matrix(a, pother, 32768, 0, 1, tag)
    stage_matrix(a, pG, 272 * 256, grow, 0, tag)


def put_cells(a):
    lane_id(a, vT)
    a(f"s_lshl_b32 s{sA}, s3, 11")
    a(f"v_lshl_add_u32 v{vT}, v{vT}, 4, s{sA}")
    keep = list(a.vm)
    for h in range(2):
        a(f"buffer_store_dwordx4 {vr(vPUB+4*h,4)}, v{vT}, {sr(sCELL,4)}, 0 offen offset:{1024*h} sc1")
    a.vm = keep


def last_wave_flag(a, cnt, base, sid, tag):
    a(f"v_mov_b32 v{vT}, {cnt}")
    a(f"v_mov_b32 v{vT+1}, 1")
    a("s_mov_b64 exec, 1")
    a(f"ds_add_rtn_u32 v{vT+2}, v{vT}, v{vT+1}", "sg")
    a("s_mov_b64 exec, -1")
    a.wait_lg("sg")
    a(f"v_readfirstlane_b32 s{sA}, v{vT+2}")
    a(f"s_cmp_lg_u32 s{sA}, 7")
    a(f"s_cbranch_scc1 {tag}")
    if base is None:
        put_cells(a)
    else:
        put_flag(a, base, sTAG, sid)
    a.label(tag)


def stage_x(a, snode, tag):
    q, p, b = vT, vT + 1, vT + 2
    a(f"v_mov_b32 v{vBIG}, {BIGOFF}")
    lane_id(a, p)
    a(f"v_lshrrev_b32 v{q}, 4, v{p}")
    a(f"v_and_b32 v{p}, 15, v{p}")
    a(f"s_lshl_b32 s{sA}, s{sFH}, 4")
    a(f"s_add_u32 s{sB}, s{sA}, s{snode}")
    a(f"v_add_lshl_u32 v{b}, v{q}, s{sB}, 8")
    a(f"s_sub_u32 s{sB}, s{sWSZ0}, s{sA}")
    a(f"s_lshl_b32 s{sA}, s{sW}, 12")
    a(f"s_add_u32 m0, s{sA}, {L_X}")
    for i in range(4):
        a(f"v_add_u32 v{vT+3}, {4*i}, v{q}")
        if i >= 2:
            a(f"v_cmp_le_u32 vcc, s{sB}, v{vT+3}")
        a(f"v_xor_b32 v{vT+3}, v{vT+3}, v{p}")
        a(f"v_lshl_add_u32 v{vT+3}, v{vT+3}, 4, v{b}")
        if i >= 2:
            a(f"v_cndmask_b32 v{vT+3}, v{vT+3}, v{vBIG}, vcc")
        a(f"buffer_load_dwordx4 v{vT+3}, {sr(sX,4)}, 0 offen offset:{1024*i} lds", tag)


def read_x(a, swin):
    l, u, b = vT, vT + 1, vT + 2
    lane_id(a, l)
    a(f"v_and_b32 v{u}, 15, v{l}")
    a(f"v_lshrrev_b32 v{b}, 5, v{l}")
    a(f"v_xor_b32 v{u}, v{u}, v{b}")
    a(f"v_lshlrev_b32 v{u}, 4, v{u}")
    a(f"v_and_b32 v{l}, 31, v{l}")
    a(f"v_lshl_add_u32 v{b}, v{l}, 8, v{u}")
    a(f"s_lshl_b32 s{sA}, s{swin}, 13")
    a(f"s_add_u32 s{sA}, s{sA}, {L_X}")
    a(f"v_add_u32 v{b}, s{sA}, v{b}")
    for kk in range(8):
        a(f"v_xor_b32 v{u}, {kk << 5}, v{b}")
        a(f"ds_read_b128 {vr(XF+4*kk,4)}, v{u}", "xf")


def gemm_pair(a, f, d0, d1, w_first, hooks=None):
    hooks = hooks or {}

    def rd(kk):
        for m in range(2):
            for q in range(2):
                a(f"ds_read_b64_tr_b16 {vr(SEL + 8*(kk & 1) + 4*m + 2*q, 2)}, v{vTR+f} "
                  f"offset:{32768*m + (16*kk + 4*q)*256}", f"w{kk}")
    rd(0)
    rd(1)
    for kk in range(8):
        a.wait_lg(f"w{kk}")
        for m, d in enumerate((d0, d1)):
            w = SEL + 8 * (kk & 1) + 4 * m
            x, y = (w, XF + 4*kk) if w_first[m] else (XF + 4*kk, w)
            a(mfma(d, x, y, None if kk == 0 else d))
        if kk + 2 < 8:
            rd(kk + 2)
        if kk in hooks:
            hooks[kk]()


def line_addrs(a, wr, rd, go, sbase, snode, shift, rows, ssub, swsz):
    l, n, h = vT, vT + 1, vT + 2
    lane_id(a, l)
    a(f"v_and_b32 v{n}, {rows - 1}, v{l}")
    a(f"v_lshrrev_b32 v{h}, 5, v{l}")
    a(f"v_lshlrev_b32 v{h}, 1, v{h}")
    a(f"v_and_b32 v{wr}, 7, v{l}")
    a(f"v_xor_b32 v{wr}, v{wr}, v{h}")
    a(f"v_lshlrev_b32 v{wr}, 4, v{wr}")
    a(f"v_lshl_add_u32 v{wr}, v{n}, 7, v{wr}")
    a(f"v_add_u32 v{wr}, s{sbase}, v{wr}")
    for i, c in ((1, 1), (2, 4), (3, 5)):
        a(f"v_xor_b32 v{wr+i}, {c << 4}, v{wr}")
    a(f"v_lshl_add_u32 v{rd}, v{l}, 4, s{sbase}")
    a(f"v_lshrrev_b32 v{n}, 3, v{l}")
    a(f"v_and_b32 v{h}, 7, v{l}")
    a(f"v_xor_b32 v{h}, v{h}, v{n}")
    a(f"v_add_lshl_u32 v{go}, v{n}, s{snode}, {shift}")
    a(f"v_lshl_add_u32 v{go}, v{h}, 4, v{go}")
    a(f"v_add_u32 v{go}, s{ssub}, v{go}")
    a(f"v_add_u32 v{go+1}, {8 << shift}, v{go}")
    a(f"v_add_u32 v{go+2}, {16 << shift}, v{go}")
    a(f"s_sub_u32 s{sA}, s{swsz}, 24")
    a(f"s_lshl_b32 s{sA}, s{sA}, 3")
    a(f"v_cmp_gt_u32 vcc, s{sA}, v{l}")
    a(f"v_add_u32 v{go+3}, {24 << shift}, v{go}")
    a(f"v_mov_b32 v{vBIG}, {BIGOFF}")
    a(f"v_cndmask_b32 v{go+3}, v{vBIG}, v{go+3}, vcc")


T_WR, T_RD, T_LO = MSG, MSG + 4, MSG + 5


def table_setup(a, snode, scratch):
    a(f"s_lshl_b32 s{sC}, s{sW}, 12")
    a(f"s_add_u32 s{sC}, s{sC}, {scratch}")
    line_addrs(a, T_WR, T_RD, vVO, sC, snode, 9, 32, sFT0, sWSZ0)
    a(f"v_mov_b32 v{T_LO}, 0xff7f0000")


def table_part(a, f, pk, before_store=None, hooks=None, hold=None):
    DB, DV = ACC, ACC + 16
    gemm_pair(a, f, DB, DV, (True, True), hooks)
    a(f"s_mov_b32 s{sB}, 0x7f7f0000")
    if OPT["PRE"]:
        for m in range(8):
            a(f"v_cvt_pk_bf16_f32 v{pk+8+m}, v{DV+2*m}, v{DV+2*m+1}")
        for m in range(8):
            a(f"v_lshlrev_b32 v{DV+2*m}, 16, v{pk+8+m}")
            a(f"v_and_b32 v{DV+2*m+1}, 0xffff0000, v{pk+8+m}")
    for j in range(16):
        a(f"v_mul_f32 v{DB+j}, s{sNL}, v{DB+j}")
    for j in range(16):
        a(f"v_rcp_f32 v{DV+j}, v{DV+j}")
    for m in range(8):
        a(f"v_cvt_pk_bf16_f32 v{pk+m}, v{DB+2*m}, v{DB+2*m+1}")
    for j in range(16):
        a(f"v_med3_f32 v{DV+j}, v{DV+j}, v{T_LO}, s{sB}")
    for m in range(8):
        a(f"v_cvt_pk_bf16_f32 v{pk+8+m}, v{DV+2*m}, v{DV+2*m+1}")
    for i in range(4):
        a(f"ds_write_b128 v{T_WR+i}, {vr(pk+4*i,4)}")
    buf = hold or ACC
    for i in range(4):
        a(f"ds_read_b128 {vr(buf+4*i,4)}, v{T_RD} offset:{1024*i}", f"lr{i}")
    if before_store:
        before_store()

    def put():
        for i in range(4):
            a.wait_lg(f"lr{i}")
            a(f"buffer_store_dwordx4 {vr(buf+4*i,4)}, v{vVO+i}, {sr(sTAB,4)}, 0 offen offset:{128*f} sc1", "ts")
    if hold:
        return put
    put()


def edge_weights(a):
    for f in range(2):
        a(f"v_add_u32 v{vT+f}, {(L_C - L_W) & 0xffffffff}, v{vTR+f}")
        for q in range(2):
            a(f"ds_read_b64_tr_b16 {vr(CW + 4*f + 2*q, 2)}, v{vT+f} offset:{1024*q}")
    a.wait_all(vm=False)
    for m in range(8):
        a(f"v_lshlrev_b32 v{vT}, 16, v{CW+m}")
        a(f"v_and_b32 v{vT+1}, 0xffff0000, v{CW+m}")
        a(f"v_mul_f32 v{vT}, s{sNL}, v{vT}")
        a(f"v_mul_f32 v{vT+1}, s{sNL}, v{vT+1}")
        a(f"v_cvt_pk_bf16_f32 v{CW+m}, v{vT}, v{vT+1}")


def node_proj(a, hooks0=None, hooks1=None):
    for f in range(2):
        gemm_pair(a, f, ACC + 16 * f, AGG + 16 * f, (False, True), (hooks0, hooks1)[f])
    for f in range(2):
        d = ACC + 16 * f
        for j in range(16):
            a(f"v_mul_f32 v{d+j}, s{sNL}, v{d+j}")
        for m in range(8):
            a(f"v_cvt_pk_bf16_f32 v{XA+8*f+m}, v{d+2*m}, v{d+2*m+1}")


def sort_job(a, shadow, stage1, stage2):
    vD, vS, vB, vR, vK, vH, vO, u0, u1 = EF, EF + 4, EF + 8, EF + 12, EF + 16, EF + 24, EF + 40, EF + 41, EF + 42
    vP = EF + 44

    def first_only(fn, tag):
        a(f"s_cmp_lg_u32 s{sHELP}, 0")
        a(f"s_cbranch_scc1 {tag}")
        fn()
        a.label(tag)
    srd(a, sTA, pDST, E * 4)
    srd(a, sTB, pSRC, E * 4)
    a(f"s_mul_i32 s{sA}, s{sJOB}, {CH * 4}")
    a(f"v_lshl_add_u32 v{vO}, v{tid}, 4, s{sA}")
    a(f"v_mov_b32 v{u0}, {BIGOFF}")
    a(f"v_cmp_gt_u32 vcc, {CH // 4}, v{tid}")
    a(f"v_cndmask_b32 v{vO}, v{u0}, v{vO}, vcc")
    a(f"buffer_load_dwordx4 {vr(vD,4)}, v{vO}, {sr(sTA,4)}, 0 offen", "d")
    if not OPT["DF"]:
        a(f"buffer_load_dwordx4 {vr(vS,4)}, v{vO}, {sr(sTB,4)}, 0 offen", "s")
    a(f"v_cmp_gt_u32 vcc, {E * 4}, v{vO}")
    a("s_mov_b64 s[0:1], vcc")
    a(f"v_lshlrev_b32 v{u0}, 2, v{tid}")
    a(f"v_mov_b32 v{u1}, 0")
    a(f"ds_write_b32 v{u0}, v{u1} offset:{L_HIST}")
    a("s_barrier")
    if OPT["DF"]:
        a(f"buffer_load_dwordx4 {vr(vS,4)}, v{vO}, {sr(sTB,4)}, 0 offen", "s")
    a(f"s_cmp_eq_u32 s{sHELP}, 0")
    a("s_cbranch_scc1 S_FIRST")
    a("s_waitcnt vmcnt(0)")
    a("s_branch S_GO")
    a.label("S_FIRST")
    shadow()
    a.label("S_GO")
    wg_sync(a)
    a(f"s_mov_b32 s{sA}, {DIVB}")
    a(f"s_mov_b32 s{sB}, {WOFFPK}")
    a.wait_vm("d")
    stamp(a, 1)
    fstamp(a, 1, 1)
    for k in range(4):
        a(f"v_mul_u32_u24 v{vB+k}, s{sA}, v{vD+k}")
        a(f"v_lshrrev_b32 v{vB+k}, 20, v{vB+k}")
        a(f"v_mul_u32_u24 v{u0}, {NB}, v{vB+k}")
        a(f"v_sub_u32 v{vD+k}, v{vD+k}, v{u0}")
        a(f"v_lshlrev_b32 v{vB+k}, 2, v{vB+k}")
    a(f"v_mov_b32 v{u1}, 1")
    a("s_mov_b64 exec, s[0:1]")
    a("s_cbranch_execz S_NOH")
    for k in range(4):
        a(f"ds_add_rtn_u32 v{vR+k}, v{vB+k}, v{u1} offset:{L_HIST}")
    a.label("S_NOH")
    a("s_mov_b64 exec, -1")
    a.wait_vm("s")
    first_only(stage1, "S_H1")
    if OPT["SB"] == 1:
        first_only(stage2, "S_H2")
    for k in range(4):
        a(f"v_mul_u32_u24 v{u0}, {WINM}, v{vD+k}")
        a(f"v_lshrrev_b32 v{u0}, 13, v{u0}")
        a(f"v_lshlrev_b32 v{u1}, 3, v{u0}")
        a(f"v_bfe_u32 v{u1}, s{sB}, v{u1}, 8")
        a(f"v_sub_u32 v{u1}, v{vD+k}, v{u1}")
        a(f"v_lshl_or_b32 v{vK+2*k}, v{u1}, 15, v{vS+k}")
        a(f"v_mul_u32_u24 v{u1}, {SBIN}, v{vS+k}")
        a(f"v_lshrrev_b32 v{u1}, 20, v{u1}")
        a(f"v_lshl_add_u32 v{u1}, v{u0}, 5, v{u1}")
        a(f"v_lshl_or_b32 v{vK+2*k}, v{u1}, 25, v{vK+2*k}")
        a(f"v_lshlrev_b32 v{vK+2*k+1}, 3, v{vO}")
        a(f"v_add_u32 v{vK+2*k+1}, {32*k}, v{vK+2*k+1}")
    if OPT["OPF"]:
        a(f"s_lshr_b32 s{sA}, s2, 5")
        a(f"s_mov_b64 s[{sN2}:{sN3}], 0")
        for k in range(4):
            a(f"v_lshrrev_b32 v{u0}, 7, v{vB+k}")
            a(f"v_bfe_u32 v{u1}, v{vK+2*k}, 25, 5")
            a(f"v_cmp_eq_u32 vcc, s{sA}, v{u0}")
            a(f"v_cmp_gt_u32 s[{sN0}:{sN1}], {OPT['OPL']}, v{u1}")
            a(f"s_and_b64 vcc, vcc, s[{sN0}:{sN1}]")
            a(f"s_or_b64 s[{sN2}:{sN3}], s[{sN2}:{sN3}], vcc")
        a(f"s_and_b64 s[{sN2}:{sN3}], s[{sN2}:{sN3}], s[0:1]")
    wg_sync(a)
    fstamp(a, 1, 2)
    lane_id(a, u0)
    a(f"v_lshlrev_b32 v{u0}, 4, v{u0}")
    a(f"ds_read_b128 {vr(vH,4)}, v{u0} offset:{L_HIST}")
    a.wait_all(vm=False)
    a(f"v_add_u32 v{vH+4}, v{vH}, v{vH+1}")
    a(f"v_add_u32 v{vH+5}, v{vH+4}, v{vH+2}")
    a(f"v_add_u32 v{vH+6}, v{vH+5}, v{vH+3}")
    a(f"v_mov_b32 v{vH+7}, v{vH+6}")
    scan64(a, vH + 7)
    a(f"v_sub_u32 v{vH+8}, v{vH+7}, v{vH+6}")
    a(f"v_add_u32 v{vH+9}, v{vH+8}, v{vH}")
    a(f"v_add_u32 v{vH+10}, v{vH+8}, v{vH+4}")
    a(f"v_add_u32 v{vH+11}, v{vH+8}, v{vH+5}")
    a(f"ds_write_b128 v{u0}, {vr(vH+8,4)} offset:{L_START}")
    for k in range(4):
        a(f"ds_read_b32 v{vP+k}, v{vB+k} offset:{L_START}")
    if OPT["SB"] == 0:
        first_only(stage2, "S_H2")
    a(f"s_cmp_eq_u32 s{sHELP}, 0")
    a("s_cbranch_scc1 S_ROW")
    a(f"s_lshl_b32 s{sA}, s2, 2")
    a(f"v_mov_b32 v{u0}, s{sA}")
    a(f"ds_read_b32 v{vH}, v{u0} offset:{L_HIST}")
    a(f"ds_read_b32 v{vH+1}, v{u0} offset:{L_START}")
    a(f"s_lshl_b32 s{sA}, s{sJOB}, 2")
    a(f"v_mov_b32 v{u0}, s{sA}")
    a.wait_all(vm=False)
    a(f"v_lshl_or_b32 v{vH}, v{vH}, 16, v{vH+1}")
    a(f"ds_write_b32 v{u0}, v{vH} offset:{L_HC}")
    a("s_branch S_NOC")
    a.label("S_ROW")
    a(f"v_lshrrev_b32 v{u0}, 1, v{u0}")
    for h in range(2):
        a(f"ds_read_b64 {vr(vH+4*h,2)}, v{u0} offset:{L_HIST + 512*h}")
        a(f"ds_read_b64 {vr(vH+4*h+2,2)}, v{u0} offset:{L_START + 512*h}")
    a.wait_all(vm=False)
    for h in range(2):
        for c in range(2):
            a(f"v_mov_b32 v{vPUB+4*h+2*c}, s{sTAG}")
            a(f"v_lshl_or_b32 v{vPUB+4*h+2*c+1}, v{vH+4*h+c}, 16, v{vH+4*h+2+c}")
    a.label("S_NOC")
    a.wait_all(vm=False)
    for k in range(4):
        a(f"v_add_lshl_u32 v{vP+k}, v{vP+k}, v{vR+k}, 3")
    a(f"s_cmp_eq_u32 s{sHELP}, 0")
    a("s_cbranch_scc1 S_PUB")
    a(f"s_mul_i32 s{sA}, s{sJOB}, {RSTR}")
    a(f"s_lshl_b32 s{sB}, s2, 2")
    for k in range(4):
        a(f"v_cmp_eq_u32 vcc, s{sB}, v{vB+k}")
        a(f"v_add_u32 v{vP+k}, s{sA}, v{vP+k}")
        a("s_and_b64 exec, vcc, s[0:1]")
        a(f"s_cbranch_execz S_P{k}")
        a(f"buffer_store_dwordx2 {vr(vK+2*k,2)}, v{vP+k}, {sr(sREC,4)}, 0 offen sc1")
        a.label(f"S_P{k}")
        a("s_mov_b64 exec, -1")
    a("s_waitcnt vmcnt(0)")
    a("s_barrier")
    a("s_branch K_HELP1N")
    a.label("S_PUB")
    a("s_mov_b64 exec, s[0:1]")
    a("s_cbranch_execz S_NOS")
    for k in range(4):
        a(f"ds_write_b64 v{vP+k}, {vr(vK+2*k,2)} offset:{L_TMP}")
    a.label("S_NOS")
    a("s_mov_b64 exec, -1")
    if OPT["SB"] == 2:
        stage2()
    wg_sync(a)
    fstamp(a, 1, 3)
    a(f"v_lshlrev_b32 v{u0}, 4, v{tid}")
    a(f"ds_read_b128 {vr(vD,4)}, v{u0} offset:{L_TMP}", "r0")
    a(f"ds_read_b128 {vr(vS,4)}, v{u0} offset:{L_TMP + 8192}", "r1")
    a(f"s_mul_i32 s{sA}, s{sJOB}, {RSTR}")
    a(f"v_add_u32 v{u0}, s{sA}, v{u0}")
    a(f"v_add_u32 v{u1}, 8192, v{u0}")
    a(f"v_mov_b32 v{vB}, {BIGOFF}")
    a(f"v_cmp_gt_u32 vcc, {(RSTR - 8192) // 16}, v{tid}")
    a(f"v_cndmask_b32 v{u1}, v{vB}, v{u1}, vcc")
    a.wait_lg("r0")
    a(f"buffer_store_dwordx4 {vr(vD,4)}, v{u0}, {sr(sREC,4)}, 0 offen sc1")
    a.wait_lg("r1")
    a(f"buffer_store_dwordx4 {vr(vS,4)}, v{u1}, {sr(sREC,4)}, 0 offen sc1")
    fstamp(a, 1, 4)
    a("s_waitcnt vmcnt(2)")
    a("s_barrier")
    fstamp(a, 1, 5)


def split_cell(a, src):
    a(f"v_lshrrev_b32 v{vT}, 16, v{src}")
    a(f"v_add_u32 v{vT+1}, 1, v{vT}")
    a(f"v_lshrrev_b32 v{vT+1}, 1, v{vT+1}")
    a(f"v_sub_u32 v{vT}, v{vT}, v{vT+1}")
    a(f"v_and_b32 v{vCELL}, 0xffff, v{src}")
    a(f"v_and_b32 v{vT+2}, 1, v{tid}")
    a(f"v_cmp_eq_u32 vcc, 1, v{vT+2}")
    a(f"v_mad_u32_u24 v{vCELL}, v{vT+2}, v{vT+1}, v{vCELL}")
    a(f"v_cndmask_b32 v{vT}, v{vT+1}, v{vT}, vcc")
    a(f"v_lshl_or_b32 v{vCELL}, v{vT}, 16, v{vCELL}")


def load_records(a, tag, slow=False):
    a(f"v_lshrrev_b32 v{vT+2}, 16, v{vCELL}")
    a(f"v_min_u32 v{vN}, s{sR}, v{vT+2}")
    if slow:
        a(f"s_lshr_b32 s{sA}, s{sPAR}, 1")
        a(f"v_xor_b32 v{vT}, s{sPAR}, v{tid}")
        a(f"v_and_b32 v{vT}, s{sA}, v{vT}")
        a(f"v_cmp_eq_u32 vcc, 0, v{vT}")
        a(f"v_cndmask_b32 v{vN}, 0, v{vN}, vcc")
    a(f"v_cmp_lt_u32 vcc, v{vN}, v{vT+2}")
    a(f"s_cmp_lg_u64 vcc, 0")
    a(f"s_cselect_b32 s{sMORE}, 1, 0")
    a(f"v_and_b32 v{vT}, 0xffff, v{vCELL}")
    a(f"v_lshrrev_b32 v{vT+1}, 1, v{tid}")
    a(f"v_mul_u32_u24 v{vT+1}, {RSTR}, v{vT+1}")
    a(f"v_lshl_add_u32 v{vT}, v{vT}, 3, v{vT+1}")
    for i in range(RMAX // 2):
        a(f"v_cmp_lt_u32 vcc, {2*i}, v{vN}")
        a("s_mov_b64 exec, vcc")
        a(f"s_cbranch_execz {tag}")
        a(f"buffer_load_dwordx4 {vr(EF+4*i,4)}, v{vT}, {sr(sREC,4)}, 0 offen offset:{16*i}")
    a.label(tag)
    a("s_mov_b64 exec, -1")


def e_load(a, i):
    a(f"buffer_load_dwordx4 {vr(EF+4*i,4)}, v{FR+i}, {sr(sEA,4)}, 0 offen", f"eu{i}")


def e_load_late(a, t):
    a(f"buffer_load_dwordx4 {vr(EF+4*t,4)}, v{EF+4*t}, {sr(sEA,4)}, 0 offen", f"e{t}")


def e_exchange_write(a):
    lane_id(a, vT)
    a(f"s_xor_b32 s{sA}, s{sW}, 1")
    a(f"s_mul_i32 s{sA}, s{sA}, {RW}")
    a(f"s_add_u32 s{sA}, s{sA}, {L_RING}")
    a(f"v_lshl_add_u32 v{vT}, v{vT}, 4, s{sA}")
    for i in range(NUP // 2):
        a(f"ds_write_b128 v{vT}, {vr(EF+4*i,4)} offset:{1024*i}")


def e_exchange_read(a):
    lane_id(a, vT)
    a(f"v_lshl_add_u32 v{vT}, v{vT}, 4, s{sRING}")
    for i in range(NUP // 2):
        a(f"ds_read_b128 {vr(EF+2*NUP+4*i,4)}, v{vT} offset:{1024*i}")
    a.wait_all(vm=False)
    a(f"s_cmp_eq_u32 s{sFH}, 0")
    a("s_cbranch_scc1 K_NOSWAP")
    for j in range(2 * NUP):
        a(f"v_swap_b32 v{EF+j}, v{EF+2*NUP+j}")
    a.label("K_NOSWAP")


def e_reg(t):
    return EF + 2 * NUP * (t & 1) + 4 * (t >> 1) if t < NUP else EF + 4 * t


def window_regs(a, swin, snode, swsz):
    a(f"s_lshl_b32 s{sA}, s{swin}, 3")
    a(f"s_lshr_b32 s{sC}, {WOFFPK}, s{sA}")
    a(f"s_and_b32 s{sC}, s{sC}, 0xff")
    a(f"s_lshr_b32 s{swsz}, {WSZ[0] | WSZ[1] << 8 | WSZ[2] << 16 | WSZ[3] << 24}, s{sA}")
    a(f"s_and_b32 s{swsz}, s{swsz}, 0xff")
    a(f"s_mul_i32 s{snode}, s2, {NB}")
    a(f"s_add_u32 s{snode}, s{snode}, s{sC}")


def pick_window(a):
    k = [sTA, sTA + 1, sTA + 2, sTA + 3]
    for w in range(4):
        a(f"s_lshl_b32 s{k[w]}, s{sN0+w}, 2")
        a(f"s_or_b32 s{k[w]}, s{k[w]}, {w}")
    for x, y in ((0, 1), (2, 3), (0, 2), (1, 3), (1, 2)):
        a(f"s_max_u32 s{sA}, s{k[x]}, s{k[y]}")
        a(f"s_min_u32 s{k[y]}, s{k[x]}, s{k[y]}")
        a(f"s_mov_b32 s{k[x]}, s{sA}")
    a(f"s_cmp_eq_u32 s{sWIN0}, 1")
    a(f"s_cselect_b32 s{sA}, s{k[1]}, s{k[0]}")
    a(f"s_cmp_eq_u32 s{sWIN0}, 2")
    a(f"s_cselect_b32 s{sA}, s{k[3]}, s{sA}")
    a(f"s_cmp_eq_u32 s{sWIN0}, 3")
    a(f"s_cselect_b32 s{sA}, s{k[2]}, s{sA}")
    a(f"s_and_b32 s{sWIN}, s{sA}, 3")
    a(f"s_cmp_eq_u32 s{sWIN0}, 1")
    a(f"s_cselect_b32 s{sA}, s{k[2]}, s{k[3]}")
    a(f"s_cmp_eq_u32 s{sWIN0}, 2")
    a(f"s_cselect_b32 s{sA}, s{k[0]}, s{sA}")
    a(f"s_cmp_eq_u32 s{sWIN0}, 3")
    a(f"s_cselect_b32 s{sA}, s{k[1]}, s{sA}")
    a(f"s_lshr_b32 s{sSTEP}, s{sA}, 2")
    a(f"s_mul_i32 s{sSTEP}, s{sSTEP}, s{sSGN}")


def list_addrs(a):
    ln, u = vT, vT + 1
    lane_id(a, ln)
    a(f"s_mul_i32 s{sA}, s{sWIN}, {SEL_W}")
    a(f"s_add_u32 s{sA}, s{sA}, {L_SEL}")
    a(f"v_and_b32 v{u}, 31, v{ln}")
    a(f"v_lshl_add_u32 v{vSA}, v{u}, 2, s{sA}")
    a(f"v_lshrrev_b32 v{u}, 5, v{ln}")
    a(f"v_add_u32 v{vSA}, v{u}, v{vSA}")
    a(f"s_mul_i32 s{sA}, s{sWIN}, {AGM_W}")
    a(f"s_add_u32 s{sA}, s{sA}, {L_AGM}")
    a(f"v_lshl_add_u32 v{vGA}, v{ln}, 2, s{sA}")
    a(f"s_mul_i32 s{sA}, s{sWIN}, {SRC_W}")
    a(f"s_add_u32 s{sA}, s{sA}, {L_SRC}")
    a(f"v_lshrrev_b32 v{u}, 3, v{ln}")
    a(f"v_lshl_add_u32 v{vIA}, v{u}, 3, s{sA}")


def e_prefetch(a, k, half, tag):
    a(f"v_bfe_u32 v{vT}, v{EF+2*k}, 25, 5")
    a(f"v_cmp_gt_u32 vcc, {OPT['PFL']}, v{vT}")
    a(f"v_cmp_lt_u32 s[0:1], {k}, v{vN}")
    a("s_and_b64 vcc, vcc, s[0:1]")
    if half:
        a("s_and_b32 vcc_lo, vcc_lo, 0x55555555")
        a("s_and_b32 vcc_hi, vcc_hi, 0x55555555")
    a("s_mov_b64 exec, vcc")
    a(f"s_cbranch_execz {tag}")
    a(f"buffer_load_dword v{FR+15}, v{EF+2*k+1}, {sr(sEA,4)}, 0 offen")
    a.label(tag)
    a("s_mov_b64 exec, -1")


def count_pass(a, tag, prefetch):
    RK = EF + 2 * RMAX
    one = vT + 2
    pf = OPT["PF"]
    if prefetch and OPT["EB"] != 2 and ("a" in pf or "A" in pf):
        e_prefetch(a, 0, "a" in pf, f"{tag}_PF0")
    a(f"v_mov_b32 v{one}, 8")
    a(f"s_cmp_eq_u32 s{sMORE}, 0")
    a(f"s_cbranch_scc1 {tag}_NM")
    a(f"v_mov_b32 v{vT}, {L_MORE}")
    a(f"ds_write_b32 v{vT}, v{one}")
    a.label(f"{tag}_NM")
    for k in range(RMAX):
        a(f"v_cmp_lt_u32 vcc, {k}, v{vN}")
        a(f"v_lshrrev_b32 v{vT + (k & 1)}, 23, v{EF+2*k}")
        a("s_mov_b64 exec, vcc")
        a(f"s_cbranch_execz {tag}_BD")
        a(f"ds_add_rtn_u32 v{RK+k}, v{vT + (k & 1)}, v{one} offset:{L_BIN}")
    a.label(f"{tag}_BD")
    a("s_mov_b64 exec, -1")
    if prefetch and OPT["EB"] == 2 and ("a" in pf or "A" in pf):
        e_prefetch(a, 0, "a" in pf, f"{tag}_PF0")


def build(a):
    RK = EF + 2 * RMAX
    pf = OPT["PF"]
    count_pass(a, "B", not OPT["EB"])
    a.label("K_COUNTED")
    wg_sync(a)
    fstamp(a, 2, 6)

    if "b" in pf or "B" in pf:
        e_prefetch(a, 1, "b" in pf, "B_PF1")
    ln = vT + 3
    lane_id(a, ln)
    a(f"v_lshlrev_b32 v{vT}, 3, v{ln}")
    a(f"ds_read_b64 {vr(MSG,2)}, v{vT} offset:{L_BIN}")
    a(f"v_mov_b32 v{MSG+2}, {L_MORE}")
    a(f"ds_read_b32 v{MSG+3}, v{MSG+2} offset:{L_FB1 - L_MORE}")
    a(f"ds_read_b32 v{MSG+2}, v{MSG+2}")
    a(f"v_lshrrev_b32 v{ln}, 4, v{ln}")
    a(f"v_lshlrev_b32 v{ln}, 12, v{ln}")
    a(f"v_add_u32 v{ln}, {L_TMP}, v{ln}")
    a.wait_all(vm=False)
    a(f"v_readfirstlane_b32 s{sA}, v{MSG+3}")
    a(f"v_add_u32 v{vT+1}, v{MSG}, v{MSG+1}")
    a(f"v_mov_b32 v{vT+2}, v{vT+1}")
    a(f"s_cmp_lg_u32 s{sA}, 0")
    a("s_cbranch_scc1 K_HELP1")
    scan16(a, vT + 2)
    for w in range(4):
        a(f"v_readlane_b32 s{sN0+w}, v{vT+2}, {16*w + 15}")
    a(f"v_readfirstlane_b32 s{sMORE}, v{MSG+2}")
    a(f"v_sub_u32 v{vT+2}, v{vT+2}, v{vT+1}")
    a(f"v_add_u32 v{MSG+4}, v{vT+2}, v{ln}")
    a(f"v_add_u32 v{MSG+5}, v{MSG+4}, v{MSG}")
    a(f"ds_write_b64 v{vT}, {vr(MSG+4,2)} offset:{L_BST}")
    a(f"s_max_u32 s{sA}, s{sN0}, s{sN1}")
    a(f"s_max_u32 s{sB}, s{sN2}, s{sN3}")
    a(f"s_max_u32 s{sA}, s{sA}, s{sB}")
    a(f"s_cmp_gt_u32 s{sA}, {8 * 32 * TCAP}")
    a(f"s_cbranch_scc1 K_OVF")
    def counts():
        for w in range(4):
            a(f"s_lshr_b32 s{sN0+w}, s{sN0+w}, 3")
        if OPT["PAIR"]:
            a(f"s_cmp_lg_u32 s{sROUND}, 0")
            a("s_cbranch_scc1 B_KEEP")
            pick_window(a)
            a.label("B_KEEP")
        a(f"s_cmp_eq_u32 s{sWIN}, 1")
        a(f"s_cselect_b32 s{sNW}, s{sN1}, s{sN0}")
        a(f"s_cmp_eq_u32 s{sWIN}, 2")
        a(f"s_cselect_b32 s{sNW}, s{sN2}, s{sNW}")
        a(f"s_cmp_eq_u32 s{sWIN}, 3")
        a(f"s_cselect_b32 s{sNW}, s{sN3}, s{sNW}")
        a(f"s_add_u32 s{sNT}, s{sNW}, 31")
        a(f"s_lshr_b32 s{sNT}, s{sNT}, 5")

    if OPT["PC"]:
        for g in range(RMAX // 4):
            a(f"v_cmp_lt_u32 vcc, {4*g}, v{vN}")
            for k in range(4 * g, 4 * g + 4):
                a(f"v_lshrrev_b32 v{FR+k}, 23, v{EF + 2*k}")
            a("s_mov_b64 exec, vcc")
            a(f"s_cbranch_execz B_CR")
            for k in range(4 * g, 4 * g + 4):
                a(f"ds_read_b32 v{FR+k}, v{FR+k} offset:{L_BST}")
        a.label("B_CR")
        a("s_mov_b64 exec, -1")
        counts()
        a.wait_all(vm=False)
        for k in range(RMAX):
            a(f"v_cmp_lt_u32 vcc, {k}, v{vN}")
            a(f"v_add_u32 v{FR+k}, v{FR+k}, v{RK+k}")
            a("s_mov_b64 exec, vcc")
            a(f"s_cbranch_execz B_CD")
            a(f"ds_write_b64 v{FR+k}, {vr(EF+2*k,2)}")
        a.label("B_CD")
        a("s_mov_b64 exec, -1")
        fstamp(a, 2, 8)
        a(f"v_add_u32 v{vCELL}, v{vCELL}, v{vN}")
        a(f"v_lshlrev_b32 v{vT}, 16, v{vN}")
        a(f"v_sub_u32 v{vCELL}, v{vCELL}, v{vT}")
    else:
        for g in range(RMAX // 4):
            a(f"v_cmp_lt_u32 vcc, {4*g}, v{vN}")
            for k in range(4):
                a(f"v_lshrrev_b32 v{MSG+k}, 23, v{EF + 2*(4*g + k)}")
            a("s_mov_b64 exec, vcc")
            a(f"s_cbranch_execz B_CD")
            for k in range(4):
                a(f"ds_read_b32 v{MSG+k}, v{MSG+k} offset:{L_BST}")
            a.wait_all(vm=False)
            for k in range(4):
                r = 4 * g + k
                if k:
                    a(f"v_cmp_lt_u32 vcc, {r}, v{vN}")
                a(f"v_add_u32 v{MSG+k}, v{MSG+k}, v{RK+r}")
                if k:
                    a("s_mov_b64 exec, vcc")
                a(f"ds_write_b64 v{MSG+k}, {vr(EF+2*r,2)}")
        a.label("B_CD")
        a("s_mov_b64 exec, -1")
        fstamp(a, 2, 8)
        a(f"v_add_u32 v{vCELL}, v{vCELL}, v{vN}")
        a(f"v_lshlrev_b32 v{vT}, 16, v{vN}")
        a(f"v_sub_u32 v{vCELL}, v{vCELL}, v{vT}")
        counts()
    wg_sync(a)
    a.vm = []
    stamp(a, 5)
    fstamp(a, 2, 9)
    fstamp(a, 3, 1)
    if OPT["AUP"] == 2:
        a(f"s_cmp_lg_u32 s{sROUND}, 0")
        a("s_cbranch_scc1 B_NOST")
        stage_weights(a, 0, pU, "st2")
        a.label("B_NOST")
        a.vm = []
    ln = vT
    lane_id(a, ln)
    a(f"v_and_b32 v{vT+1}, 31, v{ln}")
    a(f"s_lshl_b32 s{sA}, s{sWIN}, 12")
    a(f"s_add_u32 s{sA}, s{sA}, {L_TMP + 4}")
    a(f"v_lshl_add_u32 v{vT+2}, v{vT+1}, 3, s{sA}")
    a(f"s_lshl_b32 s{sA}, s{sFH}, 8")
    a(f"v_add_u32 v{vT+3}, s{sA}, v{vT+2}")
    for i in range(NUP // 2):
        a(f"ds_read_b32 v{FR+i}, v{vT+3} offset:{512*i}", f"ei{i}")
    for t in range(NUP, TCAP):
        a(f"ds_read_b32 v{EF+4*t}, v{vT+2} offset:{256*t}", f"el{t}")
    a(f"v_lshrrev_b32 v{ln}, 5, v{ln}")
    a(f"v_lshlrev_b32 v{ln}, 4, v{ln}")
    a(f"v_sub_u32 v{vT+1}, s{sNW}, v{vT+1}")
    a(f"s_lshl_b32 s{sA}, s{sFH}, 5")
    a(f"v_subrev_u32 v{vT+3}, s{sA}, v{vT+1}")
    a(f"v_mov_b32 v{vT+2}, {BIGOFF}")
    for i in range(NUP // 2):
        a.wait_lg(f"ei{i}")
        a(f"v_cmp_lt_i32 vcc, {64*i}, v{vT+3}")
        a(f"v_add_u32 v{FR+i}, v{FR+i}, v{ln}")
        a(f"v_cndmask_b32 v{FR+i}, v{vT+2}, v{FR+i}, vcc")
        if i == 0 and OPT["AUB"]:
            a("s_barrier")
        if i < OPT["E0"]:
            e_load(a, i)
    for t in range(NUP, TCAP):
        a.wait_lg(f"el{t}")
        a(f"v_cmp_lt_i32 vcc, {32*t}, v{vT+1}")
        a(f"v_add_u32 v{EF+4*t}, v{EF+4*t}, v{ln}")
        a(f"v_cndmask_b32 v{EF+4*t}, v{vT+2}, v{EF+4*t}, vcc")


def list_fields(a, tid, tag):
    c0, c1, c2, kv = vT + 1, vT + 2, vT + 3, vIX
    a(f"v_lshlrev_b32 v{c0}, 3, v{tid}")
    for j in range(4):
        a(f"ds_read_b32 v{MSG+j}, v{c0} offset:{L_TMP + 4096*j}")
    a(f"v_and_b32 v{c0}, 7, v{tid}")
    a(f"v_lshlrev_b32 v{c0}, 3, v{c0}")
    a(f"v_bfe_u32 v{c1}, v{tid}, 3, 2")
    a(f"v_lshl_add_u32 v{c0}, v{c1}, 1, v{c0}")
    a(f"v_lshrrev_b32 v{c1}, 5, v{tid}")
    a(f"v_lshl_add_u32 v{c0}, v{c1}, 6, v{c0}")
    a(f"v_lshlrev_b32 v{c1}, 8, v{c1}")
    a(f"v_bfe_u32 v{c2}, v{tid}, 2, 1")
    a(f"v_lshl_add_u32 v{c1}, v{c2}, 7, v{c1}")
    a(f"v_bfe_u32 v{c2}, v{tid}, 3, 1")
    a(f"v_and_b32 v{kv}, 3, v{tid}")
    a(f"v_lshl_add_u32 v{kv}, v{c2}, 2, v{kv}")
    a(f"v_or_b32 v{kv}, 0x0c0c0c00, v{kv}")
    a(f"v_mov_b32 v{kv+1}, {INC[0] | INC[1] << 8 | INC[2] << 16 | INC[3] << 24}")
    a(f"s_mov_b32 s{sA}, {INC[4] | INC[5] << 8 | INC[6] << 16 | INC[7] << 24}")
    a(f"v_perm_b32 v{kv}, s{sA}, v{kv+1}, v{kv}")
    a(f"v_and_b32 v{c2}, 16, v{tid}")
    a(f"v_add_u32 v{c2}, 4, v{c2}")
    a(f"v_lshlrev_b32 v{kv}, v{c2}, v{kv}")
    a(f"v_lshlrev_b32 v{c2}, 2, v{tid}")
    a.wait_all(vm=False)
    for w in range(4):
        a(f"v_cmp_gt_u32 vcc, s{sN0+w}, v{tid}")
        a("s_mov_b64 exec, vcc")
        a(f"s_cbranch_execz {tag}{w}")
        r, d, u = MSG + w, MSG + 4, MSG + 5
        a(f"v_and_b32 v{u}, 0x7fff, v{r}")
        a(f"ds_write_b16 v{c0}, v{u} offset:{L_SRC + w*SRC_W}")
        a(f"v_bfe_u32 v{d}, v{r}, 15, 5")
        a(f"v_lshl_add_u32 v{u}, v{d}, 2, v{c1}")
        a(f"ds_add_u32 v{u}, v{kv} offset:{L_AGM + w*AGM_W}")
        a(f"v_and_b32 v{u}, 3, v{d}")
        a(f"v_mul_u32_u24 v{u}, 0x5555, v{u}")
        a(f"ds_write_b16 v{c2}, v{u} offset:{L_SEL + w*SEL_W + 2}")
        a(f"v_lshrrev_b32 v{u}, 4, v{d}")
        a(f"v_add_u32 v{u}, v{u}, v{c2}")
        a(f"v_and_b32 v{r}, 8, v{d}")
        a(f"v_lshlrev_b32 v{r}, 2, v{r}")
        a(f"v_and_b32 v{d}, 4, v{d}")
        a(f"v_lshl_or_b32 v{r}, v{d}, 4, v{r}")
        a(f"ds_write_b8 v{u}, v{r} offset:{L_SEL + w*SEL_W}")
        a.label(f"{tag}{w}")
        a("s_mov_b64 exec, -1")
    a.wait_all(vm=False)


def valu_stream(base):
    g, h = base, base + 16
    steps = []
    if OPT["VO"]:
        E_ = lambda j: f"v_exp_f32 v{g+j}, v{g+j}"
        F_ = lambda j: f"v_fma_f32 v{g+j}, v{g+j}, v{h+j}, v{h+j}"
        R_ = lambda j: f"v_rcp_f32 v{g+j}, v{g+j}"
        C_ = lambda m: f"v_cvt_pk_bf16_f32 v{MSG+m}, v{g+2*m}, v{g+2*m+1}"
        for p in range(10):
            ex = [E_(2*p), E_(2*p+1)] if p < 8 else []
            fm = [F_(2*p-2), F_(2*p-1)] if 1 <= p <= 8 else []
            rc = [R_(2*p-2), R_(2*p-1)] if 1 <= p <= 8 else []
            cv = [C_(p-2)] if 2 <= p <= 9 else []
            if OPT["VO"] == 1:
                steps += [fm + ex, cv + rc]
            elif OPT["VO"] == 2:
                steps += [ex + fm, rc + cv] if p < 9 else [cv, []]
            else:
                steps += [fm + cv + ex[:1], ex[1:] + rc]
        return steps
    for j in range(20):
        st = []
        if j < 16:
            st.append(f"v_exp_f32 v{g+j}, v{g+j}")
        if 0 <= j - 1 < 16:
            st.append(f"v_fma_f32 v{g+j-1}, v{g+j-1}, v{h+j-1}, v{h+j-1}")
        if 0 <= j - 2 < 16 and not (OPT["CUT"] and j % 2):
            st.append(f"v_rcp_f32 v{g+j-2}, v{g+j-2}")
        if j - 3 >= 1 and (j - 3) % 2 == 1 and j - 3 < 16:
            m = (j - 4) // 2
            st.append(f"v_cvt_pk_bf16_f32 v{MSG+m}, v{g+2*m}, v{g+2*m+1}")
        steps.append(st)
    return steps


def dma_ops(v):
    st = v % NS
    return [(f"s_add_u32 m0, s{sRING}, {st*4096 + i*1024}",
             f"buffer_load_dwordx4 v{vVO+i}, {sr(sTAB,4)}, s{sFT1 if v & 1 else sFT0} offen lds", f"d{v}")
            for i in range(4)]


def issue_dma(a, v):
    ops = dma_ops(v)
    a(ops[0][0])
    for i, (m0w, ld, tg) in enumerate(ops):
        a("s_nop 0")
        a(ld, tg)
        if i + 1 < 4:
            a(ops[i + 1][0])


def voffs(a):
    for i in range(4):
        sel = " op_sel:[1,0,0,0]" if i & 1 else ""
        a(f"v_mad_u32_u16 v{vVO+i}, v{vIX + (i >> 1)}, s{s512}, v{vLC + (i & 1)}{sel}")


def frag_reads(v):
    return [(f"ds_read_b128 {vr(FR+4*i,4)}, v{vFA+i} offset:{(v % NS)*4096}", f"f{v}") for i in range(4)]


def main_mfmas(v):
    t, f = v >> 1, v & 1
    g = ACC + 32 * (v & 1)
    h = g + 16
    return [mfma(g, FR, ID, None), mfma(h, FR + 8, ID, None), mfma(g, FR + 4, ID + 4, g), mfma(h, FR + 12, ID + 4, h),
            mfma(g, e_reg(t), CW + 4*f, g),
            f"v_smfmac_f32_32x32x32_bf16 {vr(g, 16)}, {vr(SEL, 4)}, {vr(XA + 8*f, 8)}, v{SEL + 4}"]


def agg_mfmas(v):
    d = AGG + 16 * (v & 1)
    return [mfma(d, MSG, AOH, d), mfma(d, MSG + 4, AOH + 4, d)]


def rd_idx(a, t):
    a(f"ds_read_b64 {vr(vIX,2)}, v{vIA} offset:{64*t}", f"ix{t}")


def rd_sel_addr(a, t):
    a(f"ds_read_u8 v{vS0}, v{vSA} offset:{128*t}", f"sa{t}")


def rd_sel(a, t):
    a.wait_lg(f"sa{t}")
    a(f"ds_read_b128 {vr(SEL,4)}, v{vS0} offset:{L_LUT1}", f"s{t}")
    a(f"ds_read_u16 v{SEL+4}, v{vSI} offset:{128*t}", f"s{t}")


def rd_agg_addr(a, t):
    a(f"ds_read_u16 v{vG0}, v{vGA} offset:{256*t}", f"ga{t}")
    a(f"ds_read_u16 v{vG0+1}, v{vGA} offset:{256*t + 2}", f"ga{t}")


def rd_agg(a, t):
    a.wait_lg(f"ga{t}")
    a(f"ds_read_b128 {vr(AOH,4)}, v{vG0} offset:{L_LUT2}", f"g{t}")
    a(f"ds_read_b128 {vr(AOH+4,4)}, v{vG0+1} offset:{L_LUT2}", f"g{t}")


def slot(a, u):
    t, f = u >> 1, u & 1
    pre = {j: [] for j in range(20)}
    post = {j: [] for j in range(20)}
    a.wait_all(vm=False)
    if f == 0 and OPT["FAIR"] and t > 0:
        a(f"v_readfirstlane_b32 s{sA}, v{vT+2}")
        post[0].append(lambda: (a(f"s_mul_i32 s{sA}, s{sA}, s{sSGN}"), a("s_setprio 0"), a(f"s_cmp_ge_i32 s{sA}, 0"),
                                a(f"s_cbranch_scc1 F{u}"), a("s_setprio 1"), a.label(f"F{u}")))
    g = agg_mfmas(u - 1) if u > 0 else [None, None]
    m = main_mfmas(u + 1)
    order = [m[0], m[1], g[0], m[2], m[3], g[1], m[4], m[5], None]
    for i, x in enumerate(order):
        if x:
            pre[i].append(lambda x=x: a(x))
    if f == 0 and NUP <= t + OPT["ED"] < TCAP:
        post[9].append(lambda: e_load_late(a, t + OPT["ED"]))
    if f == 1:
        pre[6].insert(0, lambda: a.wait_vm(f"e{t + 1}"))
    L0, D0 = OPT["L0"], OPT["D0"]
    pre[L0].append(lambda: a.wait_vm(f"d{u + 2}"))
    for i, (rd, tg) in enumerate(frag_reads(u + 2)):
        pre[L0 + i].append(lambda rd=rd, tg=tg: a(rd, tg))
    pre[D0].append(lambda: a.wait_lg(f"f{u + 2}" if AH == NS else f"ix{(u + 2 + AH) // 2}"))
    nv = u + 2 + AH
    if nv % 2 == 0:
        pre[0].append(lambda: rd_idx(a, nv // 2))
        pre[D0].append(lambda: voffs(a))
    for i, (m0w, ld, tg) in enumerate(dma_ops(nv)):
        pre[D0 + i].append(lambda m0w=m0w: a(m0w))
        post[D0 + i].append(lambda ld=ld, tg=tg: a(ld, tg))
    if f == 0:
        pre[1].append(lambda: rd_sel_addr(a, t + 1))
        post[D0].append(lambda: rd_agg(a, t))
        post[D0 + 1].append(lambda: rd_sel(a, t + 1))
    else:
        pre[2].append(lambda: rd_agg_addr(a, t + 1))
        if OPT["FAIR"]:
            post[D0 + 1].append(lambda: a(f"ds_add_rtn_u32 v{vT+2}, v{vT}, v{vT+1}"))
    for j, st in enumerate(valu_stream(ACC + 32 * f)):
        for fn in pre[j]:
            fn()
        for s in st:
            a(s)
        for fn in post[j]:
            fn()


def gen():
    a = Asm()
    a(f"s_cmp_ge_u32 s2, {NWG}")
    a("s_cbranch_scc1 K_END")
    stamp(a, 0)
    a(f"s_load_dwordx2 s[{pWS}:{pWS+1}], s[0:1], 72")
    a(f"s_load_dwordx4 s[{pSRC}:{pSRC+3}], s[0:1], 16")
    a("s_load_dwordx4 s[4:7], s[0:1], 0")
    a(f"s_load_dwordx4 s[{pU}:{pU+3}], s[0:1], 32")
    a(f"s_load_dwordx2 s[{pG}:{pG+1}], s[0:1], 48")
    a(f"s_load_dwordx2 s[{sTA}:{sTA+1}], s[0:1], 56")
    a("s_mov_b32 s3, s2")
    a(f"s_and_b32 s{sA}, s2, 7")
    a(f"s_lshl_b32 s{sA}, s{sA}, 5")
    a("s_lshr_b32 s2, s2, 3")
    a(f"s_add_u32 s2, s2, s{sA}")
    a(f"v_mov_b32 v{tid}, v0")
    a(f"v_lshrrev_b32 v{vT}, 6, v0")
    a(f"s_mov_b32 s{sJOB}, s3")
    a(f"v_readfirstlane_b32 s{sW}, v{vT}")
    a(f"s_mov_b32 s{sHELP}, 0")
    a(f"s_mov_b32 s{sPAR}, 0")
    a(f"s_mov_b32 s{sROUND}, 0")
    a(f"s_mov_b32 s{sR}, {RMAX}")
    a(f"s_mov_b32 s{s512}, {0 if OPT['HIT'] else 512}")
    a(f"s_mov_b32 s{sNL}, {NL2E}")
    a(f"s_lshr_b32 s{sWIN0}, s{sW}, 1")
    a(f"s_mov_b32 s{sWIN}, s{sWIN0}")
    a(f"s_and_b32 s{sFH}, s{sW}, 1")
    a(f"s_mul_i32 s{sRING}, s{sW}, {RW}")
    a(f"s_add_u32 s{sRING}, s{sRING}, {L_RING}")
    window_regs(a, sWIN0, sNODE0, sWSZ0)
    a(f"s_lshl_b32 s{sFT0}, s{sFH}, 8")
    a(f"s_add_u32 s{sFT1}, s{sFT0}, 128")
    a(f"s_cmp_ge_u32 s{sW}, 4")
    a(f"s_cselect_b32 s{sSGN}, -1, 1")
    a.wait_all(vm=False)
    srd(a, sOUT, sTA, N * 256)
    srd(a, sX, 4, N * 256)
    srd(a, sEA, 6, E * 32)
    srd(a, sCELL, pWS, CELL_SZ, CELL_OFF)
    srd(a, sREC, pWS, REC_SZ, REC_OFF)
    a.label("K_SORT")

    def stage_rows():
        a(f"s_mov_b32 s{sNT}, s{sB}")
        stage_x(a, sNODE0, "st")
        a(f"s_mov_b32 s{sB}, s{sNT}")

    def stage_v():
        stage_matrix(a, pV, 32768, 0, 1, "st")

    def shadow():
        if OPT["WPF"]:
            keep = list(a.vm)
            lane_id(a, vT)
            a(f"s_lshr_b32 s{sA}, s3, 3")
            for w, ptr, size, n in ((5, pG, 272 * 256, 17), (6, pV, 32768, 8), (7, pU, 32768, 8)):
                a(f"s_cmp_lg_u32 s{sW}, {w}")
                a(f"s_cbranch_scc1 K_WP{w}")
                srd(a, sTA, ptr, size)
                a(f"s_mul_i32 s{sC}, s{sA}, {n}")
                a(f"v_add_lshl_u32 v{vT+1}, v{vT}, s{sC}, 7")
                a(f"s_mov_b64 exec, {(1 << n) - 1}")
                a(f"buffer_load_dword v{AGG+31}, v{vT+1}, {sr(sTA,4)}, 0 offen")
                a("s_mov_b64 exec, -1")
                a.label(f"K_WP{w}")
            a.vm = keep
        weight_offset(a)
        (stage_v if OPT["SORD"] else stage_rows)()
        for c in range(OPT["XC"]):
            srd(a, sTA, pDST, E * 4)
            a(f"s_xor_b32 s{sA}, s3, {c + 1}")
            a(f"s_mul_i32 s{sA}, s{sA}, {CH * 4}")
            a(f"v_lshl_add_u32 v{EF+50+c}, v{tid}, 4, s{sA}")
            a(f"v_mov_b32 v{vT}, {BIGOFF}")
            a(f"v_cmp_gt_u32 vcc, {CH // 4}, v{tid}")
            a(f"v_cndmask_b32 v{EF+50+c}, v{vT}, v{EF+50+c}, vcc")
            a(f"buffer_load_dwordx4 {vr(EF+52+4*c,4)}, v{EF+50+c}, {sr(sTA,4)}, 0 offen", "st")
        a(f"s_add_u32 s{sFLG}, s{pWS}, {FLG_OFF + F_TAG}")
        a(f"s_addc_u32 s{sFLG+1}, s{pWS+1}, 0")
        a(f"s_load_dword s{sTAG}, s[{sFLG}:{sFLG+1}], 0")
        srd(a, sTAB, pWS, TAB_SZ, TAB_OFF)
        init_luts(a)
        lane_consts(a)
        tr_bases(a)
        a.wait_all(vm=False)
        a(f"s_add_u32 s{sTAG}, s{sTAG}, 1")
        srd(a, sFLG, pWS, FLG_SZ, FLG_OFF)

    def stage2():
        stage_matrix(a, pG, 272 * 256, 128, 0, "st")
        a(f"s_cmp_ge_u32 s{sW}, 4")
        a("s_cbranch_scc1 K_NOC")
        a(f"s_mul_i32 s{sA}, s{sW}, 3072")
        a(f"s_sub_u32 s{sC}, 65536, s{sA}")
        a(f"s_lshl_b32 s{sA}, s{sW}, 10")
        a(f"s_add_u32 m0, s{sA}, {L_C}")
        a(f"buffer_load_dwordx4 v{vWO}, {sr(sTA,4)}, s{sC} offen lds")
        a.label("K_NOC")
    sort_job(a, shadow, stage_rows if OPT["SORD"] else stage_v, stage2)
    stamp(a, 2)
    a(f"ds_read_b128 {vr(ID,4)}, v{vIX} offset:{L_LUT1}")
    a(f"ds_read_b128 {vr(ID+4,4)}, v{vIX+1} offset:{L_LUT1}")
    read_x(a, sWIN0)
    if OPT["SIG"]:
        a.wait_all(lg=False)
        last_wave_flag(a, L_SG1, None, 3, "K_NOS1")
    if OPT["OPF"]:
        if OPT["OPF"] == 2:
            a("s_barrier")
        a(f"s_mov_b64 exec, s[{sN2}:{sN3}]")
        a("s_cbranch_execz K_NOPF")
        a(f"buffer_load_dword v{AGG+30}, v{EF+17}, {sr(sEA,4)}, 0 offen")
        a.label("K_NOPF")
        a("s_mov_b64 exec, -1")
        for c in range(OPT["XC"]):
            a(f"s_lshr_b32 s{sA}, s2, 5")
            a(f"s_mov_b32 s{sB}, {DIVB}")
            a(f"v_cmp_gt_u32 vcc, {E * 4}, v{EF+50+c}")
            a(f"s_mov_b64 s[{sN0}:{sN1}], vcc")
            a(f"s_mov_b64 s[{sN2}:{sN3}], 0")
            for k in range(4):
                a(f"v_mul_u32_u24 v{vT}, s{sB}, v{EF+52+4*c+k}")
                a(f"v_lshrrev_b32 v{vT}, 25, v{vT}")
                a(f"v_cmp_eq_u32 vcc, s{sA}, v{vT}")
                a(f"s_or_b64 s[{sN2}:{sN3}], s[{sN2}:{sN3}], vcc")
            a(f"v_lshlrev_b32 v{vT}, 3, v{EF+50+c}")
            a(f"s_and_b64 exec, s[{sN2}:{sN3}], s[{sN0}:{sN1}]")
            a(f"s_cbranch_execz K_NOPX{c}")
            a(f"buffer_load_dword v{AGG+30}, v{vT}, {sr(sEA,4)}, 0 offen")
            a.label(f"K_NOPX{c}")
            a("s_mov_b64 exec, -1")
        a.vm = []
    edge_weights(a)
    table_setup(a, sNODE0, L_TSCR)
    if not OPT["SIG"]:
        a.wait_all(lg=False)
        last_wave_flag(a, L_SG1, None, 3, "K_NOS1")

    def cells():
        fstamp(a, 1, 8)
        a(f"s_lshl_b32 s{sA}, s2, 3")
        a(f"v_lshrrev_b32 v{vCG+2}, 1, v{tid}")
        a(f"v_lshl_add_u32 v{vCG+2}, v{vCG+2}, 11, s{sA}")
        a(f"buffer_load_dwordx2 {vr(vCG,2)}, v{vCG+2}, {sr(sCELL,4)}, 0 offen", "cell")

    def records():
        fstamp(a, 2, 2)
        a.wait_vm("cell")
        a(f"s_mov_b32 s{sC}, 0")
        a.label("K_CHK")
        a(f"v_cmp_ne_u32 vcc, s{sTAG}, v{vCG}")
        if OPT["FORCE1"]:
            a("s_mov_b64 vcc, exec")
        a("s_mov_b64 exec, vcc")
        a("s_cbranch_execz K_CELLS")
        a(f"s_cmp_ge_u32 s{sC}, {3 if OPT['FORCE1'] else POLL_LIMIT}")
        a("s_cbranch_scc1 K_CFAIL")
        a("s_sleep 4")
        a(f"buffer_load_dwordx2 {vr(vCG,2)}, v{vCG+2}, {sr(sCELL,4)}, 0 offen sc1")
        a(f"s_add_u32 s{sC}, s{sC}, 1")
        a("s_waitcnt vmcnt(0)")
        a("s_branch K_CHK")
        a.label("K_CFAIL")
        a(f"v_mov_b32 v{vCG+1}, 0")
        a(f"v_mov_b32 v{vT}, {L_FB1}")
        a(f"v_mov_b32 v{vT+1}, 1")
        a(f"ds_write_b32 v{vT}, v{vT+1}")
        a.label("K_CELLS")
        a("s_mov_b64 exec, -1")
        stamp(a, 3)
        fstamp(a, 2, 3)
        split_cell(a, vCG + 1)
        load_records(a, "K_RL0")
        a.vm = []

    if OPT["CI"] >= 0:
        put0 = table_part(a, 0, XA, records if OPT["RK"] < 0 else None, {OPT["CI"]: cells}, AGG)
    else:
        put0 = table_part(a, 0, XA, cells, None, AGG)
    if OPT["RK"] < 0:
        put0()

    def early_count():
        a(f"s_waitcnt vmcnt({len(a.vm)})")
        count_pass(a, "A", True)
        a.wait_all(vm=False)
    a.put1 = table_part(a, 1, XA, early_count if OPT["EB"] else None, {OPT['RK']: lambda: (records(), put0())}, ACC if OPT["H1"] else None)
    fstamp(a, 2, 4)
    if OPT["EB"]:
        stamp(a, 4)
        a("s_branch K_COUNTED")
    else:
        a(f"s_waitcnt vmcnt({len(a.vm)})")
        stamp(a, 4)
    a.label("K_BUILD")
    build(a)
    NE = NUP // 2
    window_regs(a, sWIN, sNODE, sWSZ)
    a(f"s_cmp_lg_u32 s{sROUND}, 0")
    a("s_cbranch_scc1 K_PLAIN")
    vm_branch = list(a.vm)
    fstamp(a, 3, 2)
    init_lists(a, "K_I0", False)
    fstamp(a, 3, 3)
    a(f"s_waitcnt vmcnt({OPT['E0']})")
    fstamp(a, 3, 4)
    last_wave_flag(a, L_SG2, F_TAB, 2, "K_NOS2")
    if not OPT["AUP"]:
        stage_weights(a, 0, pU, "st2")
    list_addrs(a)
    fstamp(a, 3, 5)
    if not OPT["LFL"]:
        wg_sync(a)
        list_fields(a, tid, "K_D")
    read_x(a, sWIN)
    fstamp(a, 3, 6)
    ecount = [OPT["E0"]]

    def ehook(n):
        def fn():
            for _ in range(n):
                if ecount[0] < NE:
                    e_load(a, ecount[0])
                    ecount[0] += 1
        return fn
    ehook(OPT["E1"])()
    a.wait_vm("st2")
    wg_sync(a)
    fstamp(a, 3, 7)
    rest = NE - ecount[0]
    hk = lambda n: {0: ehook((n + 1) // 2), 4: ehook(n // 2)}
    node_proj(a, hk((rest + 1) // 2), hk(rest // 2))
    assert ecount[0] == NE
    if OPT["LFL"]:
        list_fields(a, tid, "K_D")
    stamp(a, 6)
    fstamp(a, 3, 8)

    def hand_over():
        a.wait_all()
        a("s_barrier")
        fstamp(a, 3, 9)
        e_exchange_write(a)
    if not OPT["P2E"]:
        hand_over()
    poll(a, F_TAB, L_FB2, "P2", OPT["FORCE2"], hand_over if OPT["P2E"] else None)
    a.wait_lg("fb")
    a(f"v_readfirstlane_b32 s{sA}, v{vT+3}")
    a(f"s_cmp_lg_u32 s{sA}, 0")
    a("s_cbranch_scc1 K_HELP2")
    a.label("K_XREAD")
    e_exchange_read(a)
    a.label("K_FILL")
    a.vm = []
    stamp(a, 7)
    a(f"s_cmp_eq_u32 s{sNT}, 0")
    a("s_cbranch_scc1 K_RDONE")
    a(f"v_and_b32 v{vSI}, -4, v{vSA}")
    a(f"v_add_u32 v{vSI}, 2, v{vSI}")
    rd_idx(a, 0)
    rd_sel_addr(a, 0)
    rd_agg_addr(a, 0)
    if OPT["FAIR"]:
        a(f"s_and_b32 s{sA}, s{sW}, 3")
        a(f"s_lshl_b32 s{sA}, s{sA}, 2")
        a(f"s_add_u32 s{sA}, s{sA}, {L_FAIR}")
        a(f"v_mov_b32 v{vT}, s{sA}")
        lane_id(a, vT + 2)
        a(f"v_cmp_eq_u32 vcc, 0, v{vT+2}")
        a(f"v_mov_b32 v{vT+1}, s{sSTEP if OPT['PROP'] else sSGN}")
        a(f"v_lshlrev_b32 v{vT+2}, 2, v{vT+2}")
        a(f"v_cndmask_b32 v{vT+1}, 0, v{vT+1}, vcc")
        a(f"v_cndmask_b32 v{vT}, v{vT+2}, v{vT}, vcc")

    def fill_dma(v):
        if v % 2 == 0:
            a.wait_lg(f"ix{v // 2}")
            voffs(a)
            if v + 2 <= AH + 1:
                rd_idx(a, v // 2 + 1)
        issue_dma(a, v)
    for v in range(AH):
        fill_dma(v)
        if v == 1:
            rd_sel(a, 0)
    for t in range(NUP, TCAP):
        if t - OPT["ED"] < 0:
            e_load_late(a, t)
    a.wait_vm("d0")
    for rd, tg in frag_reads(0):
        a(rd, tg)
    a.wait_lg("f0")
    fill_dma(AH)
    mm = main_mfmas(0)
    for m in mm[:4]:
        a(m)
    a.wait_vm("d1")
    for rd, tg in frag_reads(1):
        a(rd, tg)
    a.wait_lg("s0")
    for m in mm[4:]:
        a(m)
    a.wait_lg("f1")
    fill_dma(AH + 1)
    a(f"s_cmp_eq_u32 s{sNT}, 1")
    a("s_cbranch_scc1 K_ST0")
    for u in range(2 * TCAP - 2):
        slot(a, u)
        if u % 2 == 1 and u < 2 * TCAP - 3:
            a(f"s_cmp_eq_u32 s{sNT}, {(u + 1) // 2 + 1}")
            a(f"s_cbranch_scc1 K_ST{(u + 1) // 2}")
    for t in range(TCAP - 1, -1, -1):
        a.label(f"K_ST{t}")
        for j in range(4):
            a(f"v_mov_b32 v{vVO+j}, v{e_reg(t)+j}")
        if t:
            a("s_branch K_LAST")
    a.wait_all(vm=False)
    a("s_branch K_LAST0")
    a.label("K_LAST")
    a.wait_all(vm=False)
    for m in agg_mfmas(1):
        a(m)
    a.label("K_LAST0")
    a(f"ds_read_b128 {vr(AOH,4)}, v{vG0} offset:{L_LUT2}")
    a(f"ds_read_b128 {vr(AOH+4,4)}, v{vG0+1} offset:{L_LUT2}")
    a(f"s_sub_u32 s{sA}, s{sNT}, 1")
    a(f"s_lshl_b32 s{sA}, s{sA}, 5")
    a(f"s_sub_u32 s{sB}, s{sNW}, s{sA}")
    mm = main_mfmas(1)
    mm[4] = mfma(ACC + 32, vVO, CW + 4, ACC + 32)

    def part(base, tag, extra):
        g, h = base, base + 16
        extra = list(extra)
        for m in range(2, 8):
            a(f"v_mov_b32 v{MSG+m}, 0")
        for q in range(4):
            if q:
                a(f"s_cmp_le_u32 s{sB}, {8*q}")
                a(f"s_cbranch_scc1 {tag}")
            for j in range(4 * q, 4 * q + 4):
                a(f"v_exp_f32 v{g+j}, v{g+j}")
                if extra:
                    a(extra.pop(0))
            for j in range(4 * q, 4 * q + 4):
                a(f"v_fma_f32 v{g+j}, v{g+j}, v{h+j}, v{h+j}")
                if extra:
                    a(extra.pop(0))
            for j in range(4 * q, 4 * q + 4):
                a(f"v_rcp_f32 v{g+j}, v{g+j}")
            for m in (2 * q, 2 * q + 1):
                a(f"v_cvt_pk_bf16_f32 v{MSG+m}, v{g+2*m}, v{g+2*m+1}")
        a.label(tag)
        a("s_nop 1")
    part(ACC, "K_LA", mm)
    a.wait_all(vm=False)
    for m in agg_mfmas(0):
        a(m)
    a("s_nop 3")
    part(ACC + 32, "K_LB", [])
    for m in agg_mfmas(1):
        a(m)
    a.label("K_RDONE")
    stamp(a, 8)
    a(f"s_cmp_lg_u32 s{sMORE}, 0")
    a("s_cbranch_scc1 K_ROUND")
    wr, rd, go = MSG, MSG + 4, vVO
    a(f"s_lshl_b32 s{sC}, s{sFH}, 7")
    line_addrs(a, wr, rd, go, sRING, sNODE, 8, 32, sC, sWSZ)
    for f in range(2):
        g, w = AGG + 16 * f, ACC + 16 * f
        for j in range(16):
            a(f"v_mul_f32 v{w+j}, s{sNL}, v{g+j}")
        for j in range(16):
            a(f"v_exp_f32 v{w+j}, v{w+j}")
        for j in range(16):
            a(f"v_add_f32 v{w+j}, 1.0, v{w+j}")
        for j in range(16):
            a(f"v_rcp_f32 v{w+j}, v{w+j}")
        for j in range(16):
            a(f"v_mul_f32 v{w+j}, v{w+j}, v{g+j}")
        for m in range(8):
            a(f"v_cvt_pk_bf16_f32 v{ACC+32+8*f+m}, v{w+2*m}, v{w+2*m+1}")
    a.wait_all()
    for i in range(4):
        a(f"ds_write_b128 v{wr+i}, {vr(ACC+32+4*i,4)}")
    for i in range(4):
        a(f"ds_read_b128 {vr(ACC+4*i,4)}, v{rd} offset:{1024*i}", f"or{i}")
    for i in range(4):
        a.wait_lg(f"or{i}")
        a(f"buffer_store_dwordx4 {vr(ACC+4*i,4)}, v{go+i}, {sr(sOUT,4)}, 0 offen {OPT['OST'].replace('_', ' ')}")
    a(f"s_cmp_lg_u32 s{sW}, 0")
    a("s_cbranch_scc1 K_FIN")
    a(f"s_cmp_eq_u32 s{sHELP}, 0")
    a("s_cbranch_scc1 K_NOWD")
    a(f"s_sub_u32 s{sB}, s{sTAG}, 1")
    for j in range(8):
        a(f"v_mov_b32 v{vPUB+j}, s{sB}")
    put_cells(a)
    put_flag(a, F_TAB, sB, 2)
    a.label("K_NOWD")
    a("s_cmp_lg_u32 s3, 0")
    a("s_cbranch_scc1 K_FIN")
    a(f"v_mov_b32 v{vT}, {F_TAG}")
    a(f"v_mov_b32 v{vT+1}, s{sTAG}")
    a("s_mov_b64 exec, 1")
    a(f"buffer_store_dword v{vT+1}, v{vT}, {sr(sFLG,4)}, 0 offen sc1")
    a("s_mov_b64 exec, -1")
    a.label("K_FIN")
    if OPT["STAMP"]:
        stamp(a, 9)
        stamp_store(a)
    a.label("K_END")
    a("s_endpgm")

    a.label("K_PLAIN")
    a.vm = list(vm_branch)
    for i in range(OPT["E0"], NE):
        e_load(a, i)
    list_fields(a, tid, "K_P")
    a.wait_all()
    a("s_barrier")
    e_exchange_write(a)
    wg_sync(a)
    a("s_branch K_XREAD")

    a.label("K_OVF")
    a(f"s_cmp_eq_u32 s{sR}, 1")
    a(f"s_cselect_b32 s{sA}, 2, 0")
    a(f"s_or_b32 s{sPAR}, s{sPAR}, s{sA}")
    a(f"s_lshr_b32 s{sR}, s{sR}, 1")
    a(f"s_max_u32 s{sR}, s{sR}, 1")
    a("s_branch K_AGAIN")
    a.label("K_ROUND")
    a(f"s_mov_b32 s{sROUND}, 1")
    a(f"s_xor_b32 s{sPAR}, s{sPAR}, 1")
    a.label("K_AGAIN")
    a("s_setprio 0")
    a("s_nop 7")
    a.wait_all()
    a("s_barrier")
    lane_id(a, tid)
    a(f"s_lshl_b32 s{sA}, s{sW}, 6")
    a(f"v_add_u32 v{tid}, s{sA}, v{tid}")
    load_records(a, "K_RL1", True)
    init_lists(a, "K_I1", True)
    a.wait_all()
    a("s_barrier")
    a("s_branch K_BUILD")

    a.label("K_HELP1")
    a(f"s_mov_b32 s{sHELP}, 1")
    a(f"s_mov_b32 s{sJOB}, 0")
    a.wait_all()
    a("s_barrier")
    srd(a, sREC, pWS, REC_SZ, REC2_OFF)
    a("s_branch K_SORT")
    a.label("K_HELP1N")
    a(f"s_add_u32 s{sJOB}, s{sJOB}, 1")
    a(f"s_cmp_lt_u32 s{sJOB}, {NWG}")
    a("s_cbranch_scc1 K_SORT")
    a(f"v_lshlrev_b32 v{vT+3}, 1, v{tid}")
    a(f"v_and_b32 v{vT+3}, -4, v{vT+3}")
    a(f"ds_read_b32 v{vT+3}, v{vT+3} offset:{L_HC}")
    a(f"v_mov_b32 v{vT}, {L_FB1}")
    a(f"v_mov_b32 v{vT+1}, 0")
    a(f"ds_write_b32 v{vT}, v{vT+1}")
    a.wait_all()
    split_cell(a, vT + 3)
    a("s_branch K_AGAIN")

    a.label("K_HELP2")
    a(f"s_mov_b32 s{sHELP}, 1")
    a.wait_all()
    a(f"v_mov_b32 v{vG0 - 1}, v{vSA}")
    weight_offset(a)
    stage_weights(a, 128, pV, "h")
    a(f"v_mov_b32 v{vSA}, v{vG0 - 1}")
    a(f"s_mov_b32 s{sJOB}, 0")
    a.label("K_HJOB")
    a(f"s_lshl_b32 s{sA}, s{sWIN0}, 3")
    a(f"s_lshr_b32 s0, {WOFFPK}, s{sA}")
    a(f"s_and_b32 s0, s0, 0xff")
    a(f"s_mul_i32 s{sA}, s{sJOB}, {NB}")
    a(f"s_add_u32 s0, s0, s{sA}")
    stage_x(a, 0, "h")
    a.wait_all()
    a("s_barrier")
    read_x(a, sWIN0)
    wg_sync(a)
    table_setup(a, 0, L_X)
    table_part(a, 0, FR)
    table_part(a, 1, FR)
    a.wait_all()
    a("s_barrier")
    a(f"s_add_u32 s{sJOB}, s{sJOB}, 1")
    a(f"s_cmp_lt_u32 s{sJOB}, {NWG}")
    a("s_cbranch_scc1 K_HJOB")
    e_exchange_write(a)
    wg_sync(a)
    a("s_branch K_XREAD")
    return a


def main():
    k = gen()
    text = k.text()
    ref = open(f"cdna_kernels/{NAME}.s.ref").read().split("; Override launch")[0]
    out = ref + f"; @launch grid=({NWG},1,1) block=(512,1,1) lds={KLDS}\n"
    out += '.amdgcn_target "amdgcn-amd-amdhsa--gfx950"\n.text\n'
    out += f".globl {NAME}_kernel\n.p2align 8\n.type {NAME}_kernel,@function\n{NAME}_kernel:\n{text}"
    out += f""".section .rodata,"a"
.p2align 6
.amdhsa_kernel {NAME}_kernel
  .amdhsa_next_free_vgpr 256
  .amdhsa_next_free_sgpr 102
  .amdhsa_accum_offset 256
  .amdhsa_group_segment_fixed_size 0
  .amdhsa_kernarg_size 80
  .amdhsa_user_sgpr_count 2
  .amdhsa_user_sgpr_kernarg_segment_ptr 1
  .amdhsa_system_sgpr_workgroup_id_x 1
.end_amdhsa_kernel
"""
    open(sys.argv[1], "w").write(out)
    print(f"lds {KLDS} nops {k.nops}; lines {out.count(chr(10))}")


if __name__ == "__main__":
    main()
```

```python
import os
import sys
sys.path.insert(0, os.path.dirname(os.path.abspath(__file__)))
from asmlib import Asm, vr, sr

NAME = "standalone__edge_featured_mpnn_egc__graph"
N, E, D = 25000, 400000, 128
NWG = 256
CH = 1564
RSTR = 12544
NB = 98
WOFF = [0, 25, 49, 73]
WSZ = [25, 24, 24, 25]
RMAX = 12
assert NWG * CH >= E and CH % 4 == 0 and CH * 8 <= RSTR and NWG * NB >= N
TAB_OFF, TAB_SZ = 0, N * 512
REC_OFF, REC_SZ = 0xC40000, NWG * RSTR
CELL_OFF, CELL_SZ = 0x1800000, NWG * 2048
FLG_OFF, FLG_SZ = 0xFC0000, 16384 + 128
REC2_OFF = 0x1400000
F_TAB, F_TAG = 8192, 16384
assert REC_OFF + REC_SZ <= FLG_OFF
NL2E = 0xBFB8AA3B
BIGOFF = 0x7FFFFF00
DIVB = 10700
assert all((d * DIVB) >> 20 == d // NB for d in range(N))
WOFFPK = WOFF[0] | WOFF[1] << 8 | WOFF[2] << 16 | WOFF[3] << 24
WINM = 337
assert all((d * WINM) >> 13 == max(i for i in range(4) if WOFF[i] <= d) for d in range(NB))
SBIN = 1342
assert ((N - 1) * SBIN) >> 20 == 31
POLL_LIMIT = 4000

OPT = dict(NS=3, LAG=1, NUP=10, ED=3, OST="sc1", E0=2, PRE=0, PAIR=1, STAMP=0, FAIR=1, FORCE1=0, FORCE2=0, L0=5, D0=11, HIT=0, CYC=0, RK=0, SORD=0, E1=1, FINE=0, CUT=0, PF="a", PFL=25, SIG=1, AUP=2, PROP=1, LFL=1, SB=2, DF=0, WPF=1, EB=2, AUB=1, H1=0, VO=0, P2E=0, PC=1, OPF=2, OPL=25, XC=0, CI=7, SI=1, OOB=0, FE=1, NOD=0, EL=1)
for kv in sys.argv[2:]:
    k, v = kv.split("=")
    OPT[k] = int(v) if v.lstrip("-").isdigit() else v
NS = OPT["NS"]
TCAP = 16 if NS == 3 else 15
INC = [1, 2, 4, 8, 19, 37, 86, 169] if NS == 3 else [1 << b for b in range(8)]
RW = NS * 4096
AH = NS - OPT["LAG"]
NUP = OPT["NUP"]
assert NUP % 2 == 0 and 2 <= NUP <= TCAP

L_LUT2 = 0
L_LUT1 = L_LUT2 + (sum(INC) + 1) * 16
L_BIN = L_LUT1 + 144
L_MORE, L_FB1, L_FB2, L_SG1, L_SG2, L_FAIR = [L_BIN + o for o in (512, 528, 532, 536, 540, 544)]
L_BST = L_BIN + 576
L_SRC = L_BST + 512
SRC_W = (TCAP + 2) * 64
L_SEL = L_SRC + 4 * SRC_W
SEL_W = TCAP * 128
L_AGM = L_SEL + 4 * SEL_W
AGM_W = TCAP * 256
L_END = L_AGM + 4 * AGM_W
if NS == 3:
    L_TMP = L_END
    L_RING = (L_TMP + 16384 + 4095) // 4096 * 4096
    L_W, L_X, L_C = L_RING, L_RING + 65536, L_RING + 98304
    L_XS = L_C + 4096
    KLDS = L_XS + 8192
else:
    L_RING = 32768
    L_TMP, L_C, L_W, L_X = L_RING, L_RING + 16384, L_RING + 32768, L_RING + 98304
    KLDS = L_RING + 8 * RW
    assert L_END <= L_RING
L_HC = L_SEL
L_HIST, L_START = L_SRC, L_SRC + 1024
L_TSCR = (L_SEL + 127) // 128 * 128
assert all(x % 16 == 0 for x in (L_LUT1, L_BIN, L_BST, L_SRC, L_SEL, L_AGM, L_TMP)) and KLDS <= 163840
assert L_TMP + 16384 <= 65536 and L_TSCR + 32768 <= L_TMP + 16384

vCELL = 0
vFA, vLC, vIA, vVO, vIX, vSA, vGA, vS0, vG0, vT = 1, 5, 7, 8, 12, 14, 15, 16, 18, 20
MSG, FR, SEL, AOH, ACC, EF, AGG, XA, CW, ID = 24, 32, 48, 56, 64, 128, 192, 224, 240, 248
XF = ACC + 32
tid, vN = vS0, vS0 + 1
vTR = vG0
vWO = vSA
vBIG = MSG + 7
vCG = FR + 12
vPUB = EF + 52
vSI = SEL + 5
sFLG, sTA = 4, 20
sX, sEA, sOUT, sTAB, sREC, sCELL, sTB = 24, 28, 32, 36, 40, 44, 48
(sW, sWIN, sFH, sRING, sNT, sNW, sR, sMORE, s512, sFT0, sFT1, sNL, sA, sB, sC, sNODE, sROUND, sSGN,
 sN0, sN1, sN2, sN3, sJOB, sWSZ, sWIN0, sWSZ0, sNODE0, sTAG, sHELP, sPAR) = range(52, 82)
sSTEP = sNODE0
pSRC, pDST, pU, pV, pG, pWS = 8, 10, 12, 14, 16, 18
NST = 10


def srd(a, d, lo, size, off=0):
    if off:
        a(f"s_add_u32 s{d}, s{lo}, {off}")
        a(f"s_addc_u32 s{d+1}, s{lo+1}, 0")
        a(f"s_and_b32 s{d+1}, s{d+1}, 0xffff")
    else:
        a(f"s_mov_b32 s{d}, s{lo}")
        a(f"s_and_b32 s{d+1}, s{lo+1}, 0xffff")
    a(f"s_mov_b32 s{d+2}, {size}")
    a(f"s_mov_b32 s{d+3}, 0x20000")


def scan16(a, v):
    for sh in (1, 2, 4, 8):
        a(f"v_add_u32_dpp v{v}, v{v}, v{v} row_shr:{sh} row_mask:0xf bank_mask:0xf bound_ctrl:1")


def scan64(a, v):
    scan16(a, v)
    a(f"v_add_u32_dpp v{v}, v{v}, v{v} row_bcast:15 row_mask:0xa bank_mask:0xf")
    a(f"v_add_u32_dpp v{v}, v{v}, v{v} row_bcast:31 row_mask:0xc bank_mask:0xf")


def mfma(d, x, y, c):
    cs = "0" if c is None else vr(c, 16)
    return f"v_mfma_f32_32x32x16_bf16 {vr(d, 16)}, {vr(x, 4)}, {vr(y, 4)}, {cs}"


def fstamp(a, grp, k):
    if OPT["STAMP"] and OPT["FINE"] == grp:
        a(f"s_memrealtime s[{82 + 2*k}:{83 + 2*k}]")
        a.lg = [t for t in a.lg if t != "smem"] + ["smem"]


def stamp(a, k):
    if OPT["STAMP"] and (k == 0 or not OPT["FINE"]):
        a(f"s_memrealtime s[{82 + 2*k}:{83 + 2*k}]")
        if OPT["CYC"] and k in (7, 8):
            a(f"s_memtime s[{82 + 2*(k - 6)}:{83 + 2*(k - 6)}]")
        a.lg = [t for t in a.lg if t != "smem"] + ["smem"]


def stamp_store(a):
    a.wait_all()
    srd(a, sTA, pWS, 1 << 20, 0x1000000)
    a(f"s_lshl_b32 s{sA}, s2, 3")
    a(f"s_add_u32 s{sA}, s{sA}, s{sW}")
    a(f"s_lshl_b32 s{sA}, s{sA}, 6")
    a(f"v_mov_b32 v1, s{sA}")
    for k in range(12):
        a(f"v_mov_b32 v{8+k}, s{82+2*min(k, NST - 1)}")
    for q in range(3):
        a(f"buffer_store_dwordx4 {vr(8+4*q,4)}, v1, {sr(sTA,4)}, 0 offen offset:{16*q}")


def lane_id(a, v):
    a(f"v_mbcnt_lo_u32_b32 v{v}, -1, 0")
    a(f"v_mbcnt_hi_u32_b32 v{v}, -1, v{v}")


def wg_sync(a):
    a.wait_all(vm=False)
    a("s_barrier")


def put_flag(a, base, sval, sid):
    lane_id(a, vT)
    a(f"s_lshl_b32 s{sA}, s{sid}, 2")
    a(f"s_add_u32 s{sA}, s{sA}, {base}")
    a(f"v_cmp_gt_u32 vcc, 8, v{vT}")
    a(f"v_lshl_add_u32 v{vT}, v{vT}, 10, s{sA}")
    a(f"v_mov_b32 v{vT+1}, s{sval}")
    a("s_mov_b64 exec, vcc")
    keep = list(a.vm)
    a(f"buffer_store_dword v{vT+1}, v{vT}, {sr(sFLG,4)}, 0 offen sc1")
    a.vm = keep
    a("s_mov_b64 exec, -1")


vFL = FR + 8


def flags_load(a):
    a(f"s_cmp_lg_u32 s{sW}, 0")
    a("s_cbranch_scc1 P_NOLD")
    lane_id(a, vFL + 4)
    a(f"s_and_b32 s{sA}, s3, 7")
    a(f"s_lshl_b32 s{sA}, s{sA}, 10")
    a(f"s_add_u32 s{sA}, s{sA}, {F_TAB}")
    a(f"v_lshl_add_u32 v{vFL+4}, v{vFL+4}, 4, s{sA}")
    keep = list(a.vm)
    a(f"buffer_load_dwordx4 {vr(vFL,4)}, v{vFL+4}, {sr(sFLG,4)}, 0 offen sc1")
    a.vm = keep
    a.label("P_NOLD")


def flags_check(a, younger):
    a(f"s_cmp_lg_u32 s{sW}, 0")
    a("s_cbranch_scc1 P_D")
    a(f"s_mov_b32 s{sB}, 0")
    a(f"s_waitcnt vmcnt({younger})")
    keep = list(a.vm)
    a.label("P_L")
    for j in range(4):
        a(f"v_xor_b32 v{vFL+j}, s{sTAG}, v{vFL+j}")
    a(f"v_or_b32 v{vFL}, v{vFL}, v{vFL+1}")
    a(f"v_or3_b32 v{vFL}, v{vFL}, v{vFL+2}, v{vFL+3}")
    a(f"v_cmp_ne_u32 vcc, 0, v{vFL}")
    if not OPT["FORCE2"]:
        a("s_cbranch_vccz P_D")
    a("s_sleep 2")
    a(f"buffer_load_dwordx4 {vr(vFL,4)}, v{vFL+4}, {sr(sFLG,4)}, 0 offen sc1")
    a(f"s_add_u32 s{sB}, s{sB}, 1")
    a(f"s_cmp_lt_u32 s{sB}, {3 if OPT['FORCE2'] else POLL_LIMIT}")
    a("s_waitcnt vmcnt(0)")
    a("s_cbranch_scc1 P_L")
    a(f"v_mov_b32 v{vT}, {L_FB2}")
    a(f"v_mov_b32 v{vT+1}, 1")
    a(f"ds_write_b32 v{vT}, v{vT+1}")
    a.vm = keep
    a.label("P_D")


def init_lists(a, tag, bins):
    for j in range(4):
        a(f"v_mov_b32 v{MSG+j}, 0")
        a(f"v_mov_b32 v{MSG+4+j}, 0x80808080")
    a(f"v_lshlrev_b32 v{vT}, 4, v{tid}")
    tails = []
    regions = [(L_AGM, 4 * AGM_W, MSG), (L_SEL, 4 * SEL_W, MSG + 4), (L_SRC, 4 * SRC_W, MSG + 4 if OPT["OOB"] else MSG)]
    if bins:
        regions.append((L_BIN, 528, MSG))
    for off, n, val in regions:
        for p in range(n // 8192):
            a(f"ds_write_b128 v{vT}, {vr(val,4)} offset:{off + 8192*p}")
        tails.append(((n % 8192) // 16, off + n // 8192 * 8192, val))
    for cnt, off, val in sorted(tails, reverse=True):
        a(f"v_cmp_gt_u32 vcc, {cnt}, v{tid}")
        a("s_mov_b64 exec, vcc")
        a(f"s_cbranch_execz {tag}")
        a(f"ds_write_b128 v{vT}, {vr(val,4)} offset:{off}")
    a.label(tag)
    a("s_mov_b64 exec, -1")


def init_luts(a):
    t0, t1 = vT + 1, vT + 2
    a(f"v_cmp_gt_u32 vcc, 256, v{tid}")
    a("s_mov_b64 exec, vcc")
    a("s_cbranch_execz K_L1")
    a(f"v_and_b32 v{t0}, 15, v{tid}")
    for b in range(4, 8):
        a(f"v_bfe_u32 v{t1}, v{tid}, {b}, 1")
        a(f"s_mov_b32 s{sA}, {INC[b]}")
        a(f"v_mad_u32_u24 v{t0}, v{t1}, s{sA}, v{t0}")
    a(f"v_lshlrev_b32 v{t0}, 4, v{t0}")
    a(f"v_lshl_or_b32 v{t1}, v{tid}, 15, v{tid}")
    for m in range(4):
        a(f"v_and_b32 v{MSG+m}, {0x10001 << (2*m)}, v{t1}")
        a(f"v_mul_u32_u24 v{MSG+m}, {0x3F80 >> (2*m)}, v{MSG+m}")
    a(f"ds_write_b128 v{t0}, {vr(MSG,4)} offset:{L_LUT2}")
    a(f"v_lshrrev_b32 v{t0}, 2, v{tid}")
    a(f"v_and_b32 v{t1}, 3, v{tid}")
    a(f"v_lshrrev_b32 v{MSG+4}, 1, v{t0}")
    a(f"v_cmp_eq_u32 vcc, v{MSG+4}, v{t1}")
    a(f"v_and_b32 v{t0}, 1, v{t0}")
    a(f"v_lshlrev_b32 v{t0}, 4, v{t0}")
    a(f"v_mov_b32 v{t1}, 0x3f80")
    a(f"v_lshlrev_b32 v{t0}, v{t0}, v{t1}")
    a(f"v_cndmask_b32 v{t0}, 0, v{t0}, vcc")
    a(f"v_lshlrev_b32 v{t1}, 2, v{tid}")
    a(f"v_mov_b32 v{MSG+4}, 0")
    a(f"v_cmp_gt_u32 vcc, 144, v{tid}")
    a("s_mov_b64 exec, vcc")
    a("s_cbranch_execz K_L1")
    a(f"ds_write_b32 v{t1}, v{MSG+4} offset:{L_BIN}")
    a(f"v_cmp_gt_u32 vcc, 36, v{tid}")
    a("s_mov_b64 exec, vcc")
    a("s_cbranch_execz K_L1")
    a(f"ds_write_b32 v{t1}, v{t0} offset:{L_LUT1}")
    a.label("K_L1")
    a("s_mov_b64 exec, -1")


def lane_consts(a):
    ln, r, h, z = vT + 3, vT, vT + 1, vT + 2
    lane_id(a, ln)
    a(f"v_and_b32 v{r}, 31, v{ln}")
    a(f"v_lshrrev_b32 v{h}, 5, v{ln}")
    a(f"v_bfe_u32 v{z}, v{ln}, 1, 3")
    a(f"v_xor_b32 v{z}, v{z}, v{h}")
    a(f"v_lshlrev_b32 v{z}, 4, v{z}")
    a(f"v_lshl_add_u32 v{z}, v{r}, 7, v{z}")
    a(f"v_add_u32 v{vFA}, s{sRING}, v{z}")
    for i, c in ((1, 2), (2, 4), (3, 6)):
        a(f"v_xor_b32 v{vFA+i}, {c << 4}, v{vFA}")
    a(f"v_lshrrev_b32 v{z}, 4, v{ln}")
    a(f"v_and_b32 v{vLC}, 7, v{ln}")
    a(f"v_xor_b32 v{vLC}, v{vLC}, v{z}")
    a(f"v_lshlrev_b32 v{vLC}, 4, v{vLC}")
    a(f"v_xor_b32 v{vLC+1}, 64, v{vLC}")
    a(f"v_bfe_u32 v{z}, v{r}, 3, 1")
    a(f"v_and_b32 v{vIX}, 3, v{r}")
    a(f"v_lshl_add_u32 v{z}, v{z}, 2, v{vIX}")
    a(f"v_lshlrev_b32 v{z}, 4, v{z}")
    a(f"v_lshrrev_b32 v{vIX}, 4, v{r}")
    a(f"v_cmp_eq_u32 vcc, v{vIX}, v{h}")
    a(f"v_mov_b32 v{h}, 128")
    a(f"v_cndmask_b32 v{z}, v{h}, v{z}, vcc")
    a(f"v_and_b32 v{r}, 4, v{r}")
    a(f"v_cmp_eq_u32 vcc, 0, v{r}")
    a(f"v_cndmask_b32 v{vIX}, v{h}, v{z}, vcc")
    a(f"v_cndmask_b32 v{vIX+1}, v{z}, v{h}, vcc")


def tr_bases(a):
    ln, r, u = vT + 3, vT, vT + 1
    lane_id(a, ln)
    a(f"v_bfe_u32 v{r}, v{ln}, 2, 2")
    a(f"v_lshrrev_b32 v{u}, 5, v{ln}")
    a(f"v_lshl_add_u32 v{u}, v{u}, 3, v{r}")
    a(f"v_lshlrev_b32 v{vTR}, 8, v{u}")
    a(f"s_lshl_b32 s{sA}, s{sFH}, 1")
    a(f"v_xor_b32 v{r}, s{sA}, v{r}")
    a(f"v_lshl_add_u32 v{vTR}, v{r}, 6, v{vTR}")
    a(f"v_and_b32 v{u}, 1, v{ln}")
    a(f"v_lshl_add_u32 v{vTR}, v{u}, 5, v{vTR}")
    a(f"v_bfe_u32 v{u}, v{ln}, 4, 1")
    a(f"v_lshl_add_u32 v{vTR}, v{u}, 4, v{vTR}")
    a(f"v_bfe_u32 v{u}, v{ln}, 1, 1")
    a(f"v_lshl_add_u32 v{vTR}, v{u}, 3, v{vTR}")
    a(f"v_add_u32 v{vTR}, {L_W}, v{vTR}")
    a(f"v_xor_b32 v{vTR+1}, 64, v{vTR}")


def weight_offset(a):
    q, p = vT, vT + 1
    lane_id(a, p)
    a(f"v_lshrrev_b32 v{q}, 4, v{p}")
    a(f"v_and_b32 v{p}, 15, v{p}")
    a(f"v_lshlrev_b32 v{vWO}, 2, v{q}")
    a(f"v_xor_b32 v{vWO}, v{vWO}, v{p}")
    a(f"v_lshlrev_b32 v{vWO}, 4, v{vWO}")
    a(f"v_lshl_add_u32 v{vWO}, v{q}, 8, v{vWO}")
    a(f"s_lshl_b32 s{sA}, s{sW}, 12")
    a(f"v_add_u32 v{vWO}, s{sA}, v{vWO}")


def stage_matrix(a, ptr, size, row, half, tag):
    srd(a, sTA, ptr, size)
    a(f"s_lshl_b32 s{sA}, s{sW}, 12")
    a(f"s_mov_b32 s{sC}, {row * 256}")
    a(f"s_add_u32 m0, s{sA}, {L_W + 32768 * half}")
    for i in range(4):
        a(f"buffer_load_dwordx4 v{vWO}, {sr(sTA,4)}, s{sC} offen offset:{1024*i} lds", tag)


def stage_weights(a, grow, pother, tag):
    stage_matrix(a, pother, 32768, 0, 1, tag)
    stage_matrix(a, pG, 272 * 256, grow, 0, tag)


def put_cells(a):
    lane_id(a, vT)
    a(f"s_lshl_b32 s{sA}, s3, 11")
    a(f"v_lshl_add_u32 v{vT}, v{vT}, 4, s{sA}")
    keep = list(a.vm)
    for h in range(2):
        a(f"buffer_store_dwordx4 {vr(vPUB+4*h,4)}, v{vT}, {sr(sCELL,4)}, 0 offen offset:{1024*h} sc1")
    a.vm = keep


def last_wave_flag(a, cnt, base, sid, tag):
    a(f"v_mov_b32 v{vT}, {cnt}")
    a(f"v_mov_b32 v{vT+1}, 1")
    a("s_mov_b64 exec, 1")
    a(f"ds_add_rtn_u32 v{vT+2}, v{vT}, v{vT+1}", "sg")
    a("s_mov_b64 exec, -1")
    a.wait_lg("sg")
    a(f"v_readfirstlane_b32 s{sA}, v{vT+2}")
    a(f"s_cmp_lg_u32 s{sA}, 7")
    a(f"s_cbranch_scc1 {tag}")
    if base is None:
        put_cells(a)
    else:
        put_flag(a, base, sTAG, sid)
    a.label(tag)


def stage_x(a, snode, tag):
    q, p, b = vT, vT + 1, vT + 2
    a(f"v_mov_b32 v{vBIG}, {BIGOFF}")
    lane_id(a, p)
    a(f"v_lshrrev_b32 v{q}, 4, v{p}")
    a(f"v_and_b32 v{p}, 15, v{p}")
    a(f"s_lshl_b32 s{sA}, s{sFH}, 4")
    a(f"s_add_u32 s{sB}, s{sA}, s{snode}")
    a(f"v_add_lshl_u32 v{b}, v{q}, s{sB}, 8")
    a(f"s_sub_u32 s{sB}, s{sWSZ0}, s{sA}")
    a(f"s_lshl_b32 s{sA}, s{sW}, 12")
    a(f"s_add_u32 m0, s{sA}, {L_X}")
    for i in range(4):
        a(f"v_add_u32 v{vT+3}, {4*i}, v{q}")
        if i >= 2:
            a(f"v_cmp_le_u32 vcc, s{sB}, v{vT+3}")
        a(f"v_xor_b32 v{vT+3}, v{vT+3}, v{p}")
        a(f"v_lshl_add_u32 v{vT+3}, v{vT+3}, 4, v{b}")
        if i >= 2:
            a(f"v_cndmask_b32 v{vT+3}, v{vT+3}, v{vBIG}, vcc")
        a(f"buffer_load_dwordx4 v{vT+3}, {sr(sX,4)}, 0 offen offset:{1024*i} lds", tag)


def read_x(a, swin):
    l, u, b = vT, vT + 1, vT + 2
    lane_id(a, l)
    a(f"v_and_b32 v{u}, 15, v{l}")
    a(f"v_lshrrev_b32 v{b}, 5, v{l}")
    a(f"v_xor_b32 v{u}, v{u}, v{b}")
    a(f"v_lshlrev_b32 v{u}, 4, v{u}")
    a(f"v_and_b32 v{l}, 31, v{l}")
    a(f"v_lshl_add_u32 v{b}, v{l}, 8, v{u}")
    a(f"s_lshl_b32 s{sA}, s{swin}, 13")
    a(f"s_add_u32 s{sA}, s{sA}, {L_X}")
    a(f"v_add_u32 v{b}, s{sA}, v{b}")
    for kk in range(8):
        a(f"v_xor_b32 v{u}, {kk << 5}, v{b}")
        a(f"ds_read_b128 {vr(XF+4*kk,4)}, v{u}", "xf")


def gemm_pair(a, f, d0, d1, w_first, hooks=None):
    hooks = hooks or {}

    def rd(kk):
        for m in range(2):
            for q in range(2):
                a(f"ds_read_b64_tr_b16 {vr(SEL + 8*(kk & 1) + 4*m + 2*q, 2)}, v{vTR+f} "
                  f"offset:{32768*m + (16*kk + 4*q)*256}", f"w{kk}")
    rd(0)
    rd(1)
    for kk in range(8):
        a.wait_lg(f"w{kk}")
        for m, d in enumerate((d0, d1)):
            w = SEL + 8 * (kk & 1) + 4 * m
            x, y = (w, XF + 4*kk) if w_first[m] else (XF + 4*kk, w)
            a(mfma(d, x, y, None if kk == 0 else d))
        if kk + 2 < 8:
            rd(kk + 2)
        if kk in hooks:
            hooks[kk]()


def line_addrs(a, wr, rd, go, sbase, snode, shift, rows, ssub, swsz):
    l, n, h = vT, vT + 1, vT + 2
    lane_id(a, l)
    a(f"v_and_b32 v{n}, {rows - 1}, v{l}")
    a(f"v_lshrrev_b32 v{h}, 5, v{l}")
    a(f"v_lshlrev_b32 v{h}, 1, v{h}")
    a(f"v_and_b32 v{wr}, 7, v{l}")
    a(f"v_xor_b32 v{wr}, v{wr}, v{h}")
    a(f"v_lshlrev_b32 v{wr}, 4, v{wr}")
    a(f"v_lshl_add_u32 v{wr}, v{n}, 7, v{wr}")
    a(f"v_add_u32 v{wr}, s{sbase}, v{wr}")
    for i, c in ((1, 1), (2, 4), (3, 5)):
        a(f"v_xor_b32 v{wr+i}, {c << 4}, v{wr}")
    a(f"v_lshl_add_u32 v{rd}, v{l}, 4, s{sbase}")
    a(f"v_lshrrev_b32 v{n}, 3, v{l}")
    a(f"v_and_b32 v{h}, 7, v{l}")
    a(f"v_xor_b32 v{h}, v{h}, v{n}")
    a(f"v_add_lshl_u32 v{go}, v{n}, s{snode}, {shift}")
    a(f"v_lshl_add_u32 v{go}, v{h}, 4, v{go}")
    a(f"v_add_u32 v{go}, s{ssub}, v{go}")
    a(f"v_add_u32 v{go+1}, {8 << shift}, v{go}")
    a(f"v_add_u32 v{go+2}, {16 << shift}, v{go}")
    a(f"s_sub_u32 s{sA}, s{swsz}, 24")
    a(f"s_lshl_b32 s{sA}, s{sA}, 3")
    a(f"v_cmp_gt_u32 vcc, s{sA}, v{l}")
    a(f"v_add_u32 v{go+3}, {24 << shift}, v{go}")
    a(f"v_mov_b32 v{vBIG}, {BIGOFF}")
    a(f"v_cndmask_b32 v{go+3}, v{vBIG}, v{go+3}, vcc")


T_WR, T_RD, T_LO = MSG, MSG + 4, MSG + 5


def table_setup(a, snode, scratch):
    a(f"s_lshl_b32 s{sC}, s{sW}, 12")
    a(f"s_add_u32 s{sC}, s{sC}, {scratch}")
    line_addrs(a, T_WR, T_RD, vVO, sC, snode, 9, 32, sFT0, sWSZ0)
    a(f"v_mov_b32 v{T_LO}, 0xff7f0000")


def table_part(a, f, pk, before_store=None, hooks=None, hold=None):
    DB, DV = ACC, ACC + 16
    gemm_pair(a, f, DB, DV, (True, True), hooks)
    a(f"s_mov_b32 s{sB}, 0x7f7f0000")
    if OPT["PRE"]:
        for m in range(8):
            a(f"v_cvt_pk_bf16_f32 v{pk+8+m}, v{DV+2*m}, v{DV+2*m+1}")
        for m in range(8):
            a(f"v_lshlrev_b32 v{DV+2*m}, 16, v{pk+8+m}")
            a(f"v_and_b32 v{DV+2*m+1}, 0xffff0000, v{pk+8+m}")
    for j in range(16):
        a(f"v_mul_f32 v{DB+j}, s{sNL}, v{DB+j}")
    for j in range(16):
        a(f"v_rcp_f32 v{DV+j}, v{DV+j}")
    for m in range(8):
        a(f"v_cvt_pk_bf16_f32 v{pk+m}, v{DB+2*m}, v{DB+2*m+1}")
    for j in range(16):
        a(f"v_med3_f32 v{DV+j}, v{DV+j}, v{T_LO}, s{sB}")
    for m in range(8):
        a(f"v_cvt_pk_bf16_f32 v{pk+8+m}, v{DV+2*m}, v{DV+2*m+1}")
    for i in range(4):
        a(f"ds_write_b128 v{T_WR+i}, {vr(pk+4*i,4)}")
    buf = hold or ACC
    for i in range(4):
        a(f"ds_read_b128 {vr(buf+4*i,4)}, v{T_RD} offset:{1024*i}", f"lr{i}")
    if before_store:
        before_store()

    def put():
        for i in range(4):
            a.wait_lg(f"lr{i}")
            a(f"buffer_store_dwordx4 {vr(buf+4*i,4)}, v{vVO+i}, {sr(sTAB,4)}, 0 offen offset:{128*f} sc1", "ts")
    if hold:
        return put
    put()


def edge_weights(a):
    for f in range(2):
        a(f"v_add_u32 v{vT+f}, {(L_C - L_W) & 0xffffffff}, v{vTR+f}")
        for q in range(2):
            a(f"ds_read_b64_tr_b16 {vr(CW + 4*f + 2*q, 2)}, v{vT+f} offset:{1024*q}")
    a.wait_all(vm=False)
    for m in range(8):
        a(f"v_lshlrev_b32 v{vT}, 16, v{CW+m}")
        a(f"v_and_b32 v{vT+1}, 0xffff0000, v{CW+m}")
        a(f"v_mul_f32 v{vT}, s{sNL}, v{vT}")
        a(f"v_mul_f32 v{vT+1}, s{sNL}, v{vT+1}")
        a(f"v_cvt_pk_bf16_f32 v{CW+m}, v{vT}, v{vT+1}")


def node_proj(a, hooks0=None, hooks1=None):
    for f in range(2):
        gemm_pair(a, f, ACC + 16 * f, AGG + 16 * f, (False, True), (hooks0, hooks1)[f])
    for f in range(2):
        d = ACC + 16 * f
        for j in range(16):
            a(f"v_mul_f32 v{d+j}, s{sNL}, v{d+j}")
        for m in range(8):
            a(f"v_cvt_pk_bf16_f32 v{XA+8*f+m}, v{d+2*m}, v{d+2*m+1}")


def sort_job(a, shadow, stage1, stage2):
    vD, vS, vB, vR, vK, vH, vO, u0, u1 = EF, EF + 4, EF + 8, EF + 12, EF + 16, EF + 24, EF + 40, EF + 41, EF + 42
    vP = EF + 44

    def first_only(fn, tag):
        a(f"s_cmp_lg_u32 s{sHELP}, 0")
        a(f"s_cbranch_scc1 {tag}")
        fn()
        a.label(tag)
    srd(a, sTA, pDST, E * 4)
    srd(a, sTB, pSRC, E * 4)
    a(f"s_mul_i32 s{sA}, s{sJOB}, {CH * 4}")
    a(f"v_lshl_add_u32 v{vO}, v{tid}, 4, s{sA}")
    a(f"v_mov_b32 v{u0}, {BIGOFF}")
    a(f"v_cmp_gt_u32 vcc, {CH // 4}, v{tid}")
    a(f"v_cndmask_b32 v{vO}, v{u0}, v{vO}, vcc")
    a(f"buffer_load_dwordx4 {vr(vD,4)}, v{vO}, {sr(sTA,4)}, 0 offen", "d")
    if not OPT["DF"]:
        a(f"buffer_load_dwordx4 {vr(vS,4)}, v{vO}, {sr(sTB,4)}, 0 offen", "s")
    a(f"v_cmp_gt_u32 vcc, {E * 4}, v{vO}")
    a("s_mov_b64 s[0:1], vcc")
    a(f"v_lshlrev_b32 v{u0}, 2, v{tid}")
    a(f"v_mov_b32 v{u1}, 0")
    a(f"ds_write_b32 v{u0}, v{u1} offset:{L_HIST}")
    a("s_barrier")
    if OPT["DF"]:
        a(f"buffer_load_dwordx4 {vr(vS,4)}, v{vO}, {sr(sTB,4)}, 0 offen", "s")
    a(f"s_cmp_eq_u32 s{sHELP}, 0")
    a("s_cbranch_scc1 S_FIRST")
    a("s_waitcnt vmcnt(0)")
    a("s_branch S_GO")
    a.label("S_FIRST")
    shadow()
    a.label("S_GO")
    wg_sync(a)
    a(f"s_mov_b32 s{sA}, {DIVB}")
    a(f"s_mov_b32 s{sB}, {WOFFPK}")
    a.wait_vm("d")
    stamp(a, 1)
    fstamp(a, 1, 1)
    for k in range(4):
        a(f"v_mul_u32_u24 v{vB+k}, s{sA}, v{vD+k}")
        a(f"v_lshrrev_b32 v{vB+k}, 20, v{vB+k}")
        a(f"v_mul_u32_u24 v{u0}, {NB}, v{vB+k}")
        a(f"v_sub_u32 v{vD+k}, v{vD+k}, v{u0}")
        a(f"v_lshlrev_b32 v{vB+k}, 2, v{vB+k}")
    a(f"v_mov_b32 v{u1}, 1")
    a("s_mov_b64 exec, s[0:1]")
    a("s_cbranch_execz S_NOH")
    for k in range(4):
        a(f"ds_add_rtn_u32 v{vR+k}, v{vB+k}, v{u1} offset:{L_HIST}")
    a.label("S_NOH")
    a("s_mov_b64 exec, -1")
    a.wait_vm("s")
    first_only(stage1, "S_H1")
    if OPT["SB"] == 1:
        first_only(stage2, "S_H2")
    u2, u3 = vP + 4, vP + 5
    fill = []
    for k in range(4):
        fill += [f"v_mul_u32_u24 v{u2}, {WINM}, v{vD+k}",
                 f"v_lshrrev_b32 v{u2}, 13, v{u2}",
                 f"v_lshlrev_b32 v{u3}, 3, v{u2}",
                 f"v_bfe_u32 v{u3}, s{sB}, v{u3}, 8",
                 f"v_sub_u32 v{u3}, v{vD+k}, v{u3}",
                 f"v_lshl_or_b32 v{vK+2*k}, v{u3}, 15, v{vS+k}",
                 f"v_mul_u32_u24 v{u3}, {SBIN}, v{vS+k}",
                 f"v_lshrrev_b32 v{u3}, 20, v{u3}",
                 f"v_lshl_add_u32 v{u3}, v{u2}, 5, v{u3}",
                 f"v_lshl_or_b32 v{vK+2*k}, v{u3}, 25, v{vK+2*k}",
                 f"v_lshlrev_b32 v{vK+2*k+1}, 3, v{vO}",
                 f"v_add_u32 v{vK+2*k+1}, {32*k}, v{vK+2*k+1}"]

    def some(n):
        for _ in range(min(n, len(fill))):
            a(fill.pop(0))
    if not OPT["SI"]:
        some(99)
    wg_sync(a)
    fstamp(a, 1, 2)
    lane_id(a, u0)
    a(f"v_lshlrev_b32 v{u0}, 4, v{u0}")
    a(f"ds_read_b128 {vr(vH,4)}, v{u0} offset:{L_HIST}")
    some(16)
    a.wait_all(vm=False)
    a(f"v_add_u32 v{vH+4}, v{vH}, v{vH+1}")
    a(f"v_add_u32 v{vH+5}, v{vH+4}, v{vH+2}")
    a(f"v_add_u32 v{vH+6}, v{vH+5}, v{vH+3}")
    a(f"v_mov_b32 v{vH+7}, v{vH+6}")
    for mod in ("row_shr:1 row_mask:0xf bank_mask:0xf bound_ctrl:1", "row_shr:2 row_mask:0xf bank_mask:0xf bound_ctrl:1",
                "row_shr:4 row_mask:0xf bank_mask:0xf bound_ctrl:1", "row_shr:8 row_mask:0xf bank_mask:0xf bound_ctrl:1",
                "row_bcast:15 row_mask:0xa bank_mask:0xf", "row_bcast:31 row_mask:0xc bank_mask:0xf"):
        some(2)
        a(f"v_add_u32_dpp v{vH+7}, v{vH+7}, v{vH+7} {mod}")
    a(f"v_sub_u32 v{vH+8}, v{vH+7}, v{vH+6}")
    a(f"v_add_u32 v{vH+9}, v{vH+8}, v{vH}")
    a(f"v_add_u32 v{vH+10}, v{vH+8}, v{vH+4}")
    a(f"v_add_u32 v{vH+11}, v{vH+8}, v{vH+5}")
    a(f"ds_write_b128 v{u0}, {vr(vH+8,4)} offset:{L_START}")
    for k in range(4):
        a(f"ds_read_b32 v{vP+k}, v{vB+k} offset:{L_START}")
    some(99)
    if OPT["SB"] == 0:
        first_only(stage2, "S_H2")
    a(f"s_cmp_eq_u32 s{sHELP}, 0")
    a("s_cbranch_scc1 S_ROW")
    a(f"s_lshl_b32 s{sA}, s2, 2")
    a(f"v_mov_b32 v{u0}, s{sA}")
    a(f"ds_read_b32 v{vH}, v{u0} offset:{L_HIST}")
    a(f"ds_read_b32 v{vH+1}, v{u0} offset:{L_START}")
    a(f"s_lshl_b32 s{sA}, s{sJOB}, 2")
    a(f"v_mov_b32 v{u0}, s{sA}")
    a.wait_all(vm=False)
    a(f"v_lshl_or_b32 v{vH}, v{vH}, 16, v{vH+1}")
    a(f"ds_write_b32 v{u0}, v{vH} offset:{L_HC}")
    a("s_branch S_NOC")
    a.label("S_ROW")
    a(f"v_lshrrev_b32 v{u0}, 1, v{u0}")
    for h in range(2):
        a(f"ds_read_b64 {vr(vH+4*h,2)}, v{u0} offset:{L_HIST + 512*h}")
        a(f"ds_read_b64 {vr(vH+4*h+2,2)}, v{u0} offset:{L_START + 512*h}")
    a.wait_all(vm=False)
    for h in range(2):
        for c in range(2):
            a(f"v_mov_b32 v{vPUB+4*h+2*c}, s{sTAG}")
            a(f"v_lshl_or_b32 v{vPUB+4*h+2*c+1}, v{vH+4*h+c}, 16, v{vH+4*h+2+c}")
    a.label("S_NOC")
    a.wait_all(vm=False)
    for k in range(4):
        a(f"v_add_lshl_u32 v{vP+k}, v{vP+k}, v{vR+k}, 3")
    a(f"s_cmp_eq_u32 s{sHELP}, 0")
    a("s_cbranch_scc1 S_PUB")
    a(f"s_mul_i32 s{sA}, s{sJOB}, {RSTR}")
    a(f"s_lshl_b32 s{sB}, s2, 2")
    for k in range(4):
        a(f"v_cmp_eq_u32 vcc, s{sB}, v{vB+k}")
        a(f"v_add_u32 v{vP+k}, s{sA}, v{vP+k}")
        a("s_and_b64 exec, vcc, s[0:1]")
        a(f"s_cbranch_execz S_P{k}")
        a(f"buffer_store_dwordx2 {vr(vK+2*k,2)}, v{vP+k}, {sr(sREC,4)}, 0 offen sc1")
        a.label(f"S_P{k}")
        a("s_mov_b64 exec, -1")
    a("s_waitcnt vmcnt(0)")
    a("s_barrier")
    a("s_branch K_HELP1N")
    a.label("S_PUB")
    a("s_mov_b64 exec, s[0:1]")
    a("s_cbranch_execz S_NOS")
    for k in range(4):
        a(f"ds_write_b64 v{vP+k}, {vr(vK+2*k,2)} offset:{L_TMP}")
    a.label("S_NOS")
    a("s_mov_b64 exec, -1")
    if OPT["SB"] == 2:
        stage2()
    wg_sync(a)
    fstamp(a, 1, 3)
    a(f"v_lshlrev_b32 v{u0}, 4, v{tid}")
    a(f"ds_read_b128 {vr(vD,4)}, v{u0} offset:{L_TMP}", "r0")
    a(f"ds_read_b128 {vr(vS,4)}, v{u0} offset:{L_TMP + 8192}", "r1")
    a(f"s_mul_i32 s{sA}, s{sJOB}, {RSTR}")
    a(f"v_add_u32 v{u0}, s{sA}, v{u0}")
    a(f"v_add_u32 v{u1}, 8192, v{u0}")
    a(f"v_mov_b32 v{u2}, {BIGOFF}")
    a(f"v_cmp_gt_u32 vcc, {(RSTR - 8192) // 16}, v{tid}")
    a(f"v_cndmask_b32 v{u1}, v{u2}, v{u1}, vcc")
    a.wait_lg("r0")
    a(f"buffer_store_dwordx4 {vr(vD,4)}, v{u0}, {sr(sREC,4)}, 0 offen sc1")
    a.wait_lg("r1")
    a(f"buffer_store_dwordx4 {vr(vS,4)}, v{u1}, {sr(sREC,4)}, 0 offen sc1")
    if OPT["OPF"]:
        a(f"s_lshr_b32 s{sA}, s2, 5")
        a(f"s_mov_b64 s[{sN2}:{sN3}], 0")
        for k in range(4):
            a(f"v_lshrrev_b32 v{u2}, 7, v{vB+k}")
            a(f"v_bfe_u32 v{u3}, v{vK+2*k}, 25, 5")
            a(f"v_cmp_eq_u32 vcc, s{sA}, v{u2}")
            a(f"v_cmp_gt_u32 s[{sN0}:{sN1}], {OPT['OPL']}, v{u3}")
            a(f"s_and_b64 vcc, vcc, s[{sN0}:{sN1}]")
            a(f"s_or_b64 s[{sN2}:{sN3}], s[{sN2}:{sN3}], vcc")
        a(f"s_and_b64 s[{sN2}:{sN3}], s[{sN2}:{sN3}], s[0:1]")
    fstamp(a, 1, 4)
    a("s_waitcnt vmcnt(2)")
    a("s_barrier")
    fstamp(a, 1, 5)


def split_cell(a, src):
    a(f"v_lshrrev_b32 v{vT}, 16, v{src}")
    a(f"v_add_u32 v{vT+1}, 1, v{vT}")
    a(f"v_lshrrev_b32 v{vT+1}, 1, v{vT+1}")
    a(f"v_sub_u32 v{vT}, v{vT}, v{vT+1}")
    a(f"v_and_b32 v{vCELL}, 0xffff, v{src}")
    a(f"v_and_b32 v{vT+2}, 1, v{tid}")
    a(f"v_cmp_eq_u32 vcc, 1, v{vT+2}")
    a(f"v_mad_u32_u24 v{vCELL}, v{vT+2}, v{vT+1}, v{vCELL}")
    a(f"v_cndmask_b32 v{vT}, v{vT+1}, v{vT}, vcc")
    a(f"v_lshl_or_b32 v{vCELL}, v{vT}, 16, v{vCELL}")


def load_records(a, tag, slow=False):
    a(f"v_lshrrev_b32 v{vT+2}, 16, v{vCELL}")
    a(f"v_min_u32 v{vN}, s{sR}, v{vT+2}")
    if slow:
        a(f"s_lshr_b32 s{sA}, s{sPAR}, 1")
        a(f"v_xor_b32 v{vT}, s{sPAR}, v{tid}")
        a(f"v_and_b32 v{vT}, s{sA}, v{vT}")
        a(f"v_cmp_eq_u32 vcc, 0, v{vT}")
        a(f"v_cndmask_b32 v{vN}, 0, v{vN}, vcc")
    a(f"v_cmp_lt_u32 vcc, v{vN}, v{vT+2}")
    a(f"s_cmp_lg_u64 vcc, 0")
    a(f"s_cselect_b32 s{sMORE}, 1, 0")
    a(f"v_and_b32 v{vT}, 0xffff, v{vCELL}")
    a(f"v_lshrrev_b32 v{vT+1}, 1, v{tid}")
    a(f"v_mul_u32_u24 v{vT+1}, {RSTR}, v{vT+1}")
    a(f"v_lshl_add_u32 v{vT}, v{vT}, 3, v{vT+1}")
    for i in range(RMAX // 2):
        a(f"v_cmp_lt_u32 vcc, {2*i}, v{vN}")
        a("s_mov_b64 exec, vcc")
        a(f"s_cbranch_execz {tag}")
        a(f"buffer_load_dwordx4 {vr(EF+4*i,4)}, v{vT}, {sr(sREC,4)}, 0 offen offset:{16*i}")
    a.label(tag)
    a("s_mov_b64 exec, -1")


def e_load(a, i):
    a(f"buffer_load_dwordx4 {vr(EF+4*i,4)}, v{FR+i}, {sr(sEA,4)}, 0 offen", f"eu{i}")


def e_load_late(a, t):
    a(f"buffer_load_dwordx4 {vr(EF+4*t,4)}, v{EF+4*t}, {sr(sEA,4)}, 0 offen", f"e{t}")


def exchange_addrs(a, sw):
    lane_id(a, vT)
    a(f"s_mul_i32 s{sA}, s{sw}, {RW}")
    a(f"s_add_u32 s{sA}, s{sA}, {L_RING + RW - 4096}")
    a(f"s_lshl_b32 s{sB}, s{sw}, 10")
    a(f"s_add_u32 s{sB}, s{sB}, {L_XS}")
    a(f"v_lshl_add_u32 v{vT+1}, v{vT}, 4, s{sB}")
    a(f"v_lshl_add_u32 v{vT}, v{vT}, 4, s{sA}")
    assert NUP <= 10 and AH < NS
    return [(vT, 1024 * i) if i < 4 else (vT + 1, 0) for i in range(NUP // 2)]


def e_exchange_write(a):
    a(f"s_xor_b32 s{sC}, s{sW}, 1")
    for i, (v, off) in enumerate(exchange_addrs(a, sC)):
        a(f"ds_write_b128 v{v}, {vr(EF+4*i,4)} offset:{off}")


def e_exchange_read(a):
    for i, (v, off) in enumerate(exchange_addrs(a, sW)):
        a(f"ds_read_b128 {vr(EF+2*NUP+4*i,4)}, v{v} offset:{off}")
    a.wait_all(vm=False)
    a(f"s_cmp_eq_u32 s{sFH}, 0")
    a("s_cbranch_scc1 K_NOSWAP")
    for j in range(2 * NUP):
        a(f"v_swap_b32 v{EF+j}, v{EF+2*NUP+j}")
    a.label("K_NOSWAP")


def e_reg(t):
    return EF + 2 * NUP * (t & 1) + 4 * (t >> 1) if t < NUP else EF + 4 * t


def window_regs(a, swin, snode, swsz):
    a(f"s_lshl_b32 s{sA}, s{swin}, 3")
    a(f"s_lshr_b32 s{sC}, {WOFFPK}, s{sA}")
    a(f"s_and_b32 s{sC}, s{sC}, 0xff")
    a(f"s_lshr_b32 s{swsz}, {WSZ[0] | WSZ[1] << 8 | WSZ[2] << 16 | WSZ[3] << 24}, s{sA}")
    a(f"s_and_b32 s{swsz}, s{swsz}, 0xff")
    a(f"s_mul_i32 s{snode}, s2, {NB}")
    a(f"s_add_u32 s{snode}, s{snode}, s{sC}")


def pick_window(a):
    k = [sTA, sTA + 1, sTA + 2, sTA + 3]
    for w in range(4):
        a(f"s_lshl_b32 s{k[w]}, s{sN0+w}, 2")
        a(f"s_or_b32 s{k[w]}, s{k[w]}, {w}")
    for x, y in ((0, 1), (2, 3), (0, 2), (1, 3), (1, 2)):
        a(f"s_max_u32 s{sA}, s{k[x]}, s{k[y]}")
        a(f"s_min_u32 s{k[y]}, s{k[x]}, s{k[y]}")
        a(f"s_mov_b32 s{k[x]}, s{sA}")
    a(f"s_cmp_eq_u32 s{sWIN0}, 1")
    a(f"s_cselect_b32 s{sA}, s{k[1]}, s{k[0]}")
    a(f"s_cmp_eq_u32 s{sWIN0}, 2")
    a(f"s_cselect_b32 s{sA}, s{k[3]}, s{sA}")
    a(f"s_cmp_eq_u32 s{sWIN0}, 3")
    a(f"s_cselect_b32 s{sA}, s{k[2]}, s{sA}")
    a(f"s_and_b32 s{sWIN}, s{sA}, 3")
    a(f"s_cmp_eq_u32 s{sWIN0}, 1")
    a(f"s_cselect_b32 s{sA}, s{k[2]}, s{k[3]}")
    a(f"s_cmp_eq_u32 s{sWIN0}, 2")
    a(f"s_cselect_b32 s{sA}, s{k[0]}, s{sA}")
    a(f"s_cmp_eq_u32 s{sWIN0}, 3")
    a(f"s_cselect_b32 s{sA}, s{k[1]}, s{sA}")
    a(f"s_lshr_b32 s{sSTEP}, s{sA}, 2")
    a(f"s_mul_i32 s{sSTEP}, s{sSTEP}, s{sSGN}")


def list_addrs(a):
    ln, u = vT, vT + 1
    lane_id(a, ln)
    a(f"s_mul_i32 s{sA}, s{sWIN}, {SEL_W}")
    a(f"s_add_u32 s{sA}, s{sA}, {L_SEL}")
    a(f"v_and_b32 v{u}, 31, v{ln}")
    a(f"v_lshl_add_u32 v{vSA}, v{u}, 2, s{sA}")
    a(f"v_lshrrev_b32 v{u}, 5, v{ln}")
    a(f"v_add_u32 v{vSA}, v{u}, v{vSA}")
    a(f"s_mul_i32 s{sA}, s{sWIN}, {AGM_W}")
    a(f"s_add_u32 s{sA}, s{sA}, {L_AGM}")
    a(f"v_lshl_add_u32 v{vGA}, v{ln}, 2, s{sA}")
    a(f"s_mul_i32 s{sA}, s{sWIN}, {SRC_W}")
    a(f"s_add_u32 s{sA}, s{sA}, {L_SRC}")
    a(f"v_lshrrev_b32 v{u}, 3, v{ln}")
    a(f"v_lshl_add_u32 v{vIA}, v{u}, 3, s{sA}")


def e_prefetch(a, k, half, tag):
    a(f"v_bfe_u32 v{vT}, v{EF+2*k}, 25, 5")
    a(f"v_cmp_gt_u32 vcc, {OPT['PFL']}, v{vT}")
    a(f"v_cmp_lt_u32 s[0:1], {k}, v{vN}")
    a("s_and_b64 vcc, vcc, s[0:1]")
    if half:
        a("s_and_b32 vcc_lo, vcc_lo, 0x55555555")
        a("s_and_b32 vcc_hi, vcc_hi, 0x55555555")
    a("s_mov_b64 exec, vcc")
    a(f"s_cbranch_execz {tag}")
    a(f"buffer_load_dword v{FR+15}, v{EF+2*k+1}, {sr(sEA,4)}, 0 offen")
    a.label(tag)
    a("s_mov_b64 exec, -1")


def count_pass(a, tag, prefetch):
    RK = EF + 2 * RMAX
    one = vT + 2
    pf = OPT["PF"]
    if prefetch and OPT["EB"] != 2 and ("a" in pf or "A" in pf):
        e_prefetch(a, 0, "a" in pf, f"{tag}_PF0")
    a(f"v_mov_b32 v{one}, 8")
    a(f"s_cmp_eq_u32 s{sMORE}, 0")
    a(f"s_cbranch_scc1 {tag}_NM")
    a(f"v_mov_b32 v{vT}, {L_MORE}")
    a(f"ds_write_b32 v{vT}, v{one}")
    a.label(f"{tag}_NM")
    for k in range(RMAX):
        a(f"v_cmp_lt_u32 vcc, {k}, v{vN}")
        a(f"v_lshrrev_b32 v{vT + (k & 1)}, 23, v{EF+2*k}")
        a("s_mov_b64 exec, vcc")
        a(f"s_cbranch_execz {tag}_BD")
        a(f"ds_add_rtn_u32 v{RK+k}, v{vT + (k & 1)}, v{one} offset:{L_BIN}")
    a.label(f"{tag}_BD")
    a("s_mov_b64 exec, -1")
    if prefetch and OPT["EB"] == 2 and ("a" in pf or "A" in pf):
        e_prefetch(a, 0, "a" in pf, f"{tag}_PF0")


def build(a):
    RK = EF + 2 * RMAX
    pf = OPT["PF"]
    count_pass(a, "B", not OPT["EB"])
    a.label("K_COUNTED")
    wg_sync(a)
    fstamp(a, 2, 6)

    if "b" in pf or "B" in pf:
        e_prefetch(a, 1, "b" in pf, "B_PF1")
    ln = vT + 3
    lane_id(a, ln)
    a(f"v_lshlrev_b32 v{vT}, 3, v{ln}")
    a(f"ds_read_b64 {vr(MSG,2)}, v{vT} offset:{L_BIN}")
    a(f"v_mov_b32 v{MSG+2}, {L_MORE}")
    a(f"ds_read_b32 v{MSG+3}, v{MSG+2} offset:{L_FB1 - L_MORE}")
    a(f"ds_read_b32 v{MSG+2}, v{MSG+2}")
    a(f"v_lshrrev_b32 v{ln}, 4, v{ln}")
    a(f"v_lshlrev_b32 v{ln}, 12, v{ln}")
    a(f"v_add_u32 v{ln}, {L_TMP}, v{ln}")
    a.wait_all(vm=False)
    a(f"v_readfirstlane_b32 s{sA}, v{MSG+3}")
    a(f"v_add_u32 v{vT+1}, v{MSG}, v{MSG+1}")
    a(f"v_mov_b32 v{vT+2}, v{vT+1}")
    a(f"s_cmp_lg_u32 s{sA}, 0")
    a("s_cbranch_scc1 K_HELP1")
    scan16(a, vT + 2)
    for w in range(4):
        a(f"v_readlane_b32 s{sN0+w}, v{vT+2}, {16*w + 15}")
    a(f"v_readfirstlane_b32 s{sMORE}, v{MSG+2}")
    a(f"v_sub_u32 v{vT+2}, v{vT+2}, v{vT+1}")
    a(f"v_add_u32 v{MSG+4}, v{vT+2}, v{ln}")
    a(f"v_add_u32 v{MSG+5}, v{MSG+4}, v{MSG}")
    a(f"ds_write_b64 v{vT}, {vr(MSG+4,2)} offset:{L_BST}")
    a(f"s_max_u32 s{sA}, s{sN0}, s{sN1}")
    a(f"s_max_u32 s{sB}, s{sN2}, s{sN3}")
    a(f"s_max_u32 s{sA}, s{sA}, s{sB}")
    a(f"s_cmp_gt_u32 s{sA}, {8 * 32 * TCAP}")
    a(f"s_cbranch_scc1 K_OVF")
    def counts():
        for w in range(4):
            a(f"s_lshr_b32 s{sN0+w}, s{sN0+w}, 3")
        if OPT["PAIR"]:
            a(f"s_cmp_lg_u32 s{sROUND}, 0")
            a("s_cbranch_scc1 B_KEEP")
            pick_window(a)
            a.label("B_KEEP")
        a(f"s_cmp_eq_u32 s{sWIN}, 1")
        a(f"s_cselect_b32 s{sNW}, s{sN1}, s{sN0}")
        a(f"s_cmp_eq_u32 s{sWIN}, 2")
        a(f"s_cselect_b32 s{sNW}, s{sN2}, s{sNW}")
        a(f"s_cmp_eq_u32 s{sWIN}, 3")
        a(f"s_cselect_b32 s{sNW}, s{sN3}, s{sNW}")
        a(f"s_add_u32 s{sNT}, s{sNW}, 31")
        a(f"s_lshr_b32 s{sNT}, s{sNT}, 5")

    if OPT["PC"]:
        for g in range(RMAX // 4):
            a(f"v_cmp_lt_u32 vcc, {4*g}, v{vN}")
            for k in range(4 * g, 4 * g + 4):
                a(f"v_lshrrev_b32 v{FR+k}, 23, v{EF + 2*k}")
            a("s_mov_b64 exec, vcc")
            a(f"s_cbranch_execz B_CR")
            for k in range(4 * g, 4 * g + 4):
                a(f"ds_read_b32 v{FR+k}, v{FR+k} offset:{L_BST}")
        a.label("B_CR")
        a("s_mov_b64 exec, -1")
        counts()
        a.wait_all(vm=False)
        for k in range(RMAX):
            a(f"v_cmp_lt_u32 vcc, {k}, v{vN}")
            a(f"v_add_u32 v{FR+k}, v{FR+k}, v{RK+k}")
            a("s_mov_b64 exec, vcc")
            a(f"s_cbranch_execz B_CD")
            a(f"ds_write_b64 v{FR+k}, {vr(EF+2*k,2)}")
        a.label("B_CD")
        a("s_mov_b64 exec, -1")
        fstamp(a, 2, 8)
        a(f"v_add_u32 v{vCELL}, v{vCELL}, v{vN}")
        a(f"v_lshlrev_b32 v{vT}, 16, v{vN}")
        a(f"v_sub_u32 v{vCELL}, v{vCELL}, v{vT}")
    else:
        for g in range(RMAX // 4):
            a(f"v_cmp_lt_u32 vcc, {4*g}, v{vN}")
            for k in range(4):
                a(f"v_lshrrev_b32 v{MSG+k}, 23, v{EF + 2*(4*g + k)}")
            a("s_mov_b64 exec, vcc")
            a(f"s_cbranch_execz B_CD")
            for k in range(4):
                a(f"ds_read_b32 v{MSG+k}, v{MSG+k} offset:{L_BST}")
            a.wait_all(vm=False)
            for k in range(4):
                r = 4 * g + k
                if k:
                    a(f"v_cmp_lt_u32 vcc, {r}, v{vN}")
                a(f"v_add_u32 v{MSG+k}, v{MSG+k}, v{RK+r}")
                if k:
                    a("s_mov_b64 exec, vcc")
                a(f"ds_write_b64 v{MSG+k}, {vr(EF+2*r,2)}")
        a.label("B_CD")
        a("s_mov_b64 exec, -1")
        fstamp(a, 2, 8)
        a(f"v_add_u32 v{vCELL}, v{vCELL}, v{vN}")
        a(f"v_lshlrev_b32 v{vT}, 16, v{vN}")
        a(f"v_sub_u32 v{vCELL}, v{vCELL}, v{vT}")
        counts()
    wg_sync(a)
    a.vm = []
    stamp(a, 5)
    fstamp(a, 2, 9)
    fstamp(a, 3, 1)
    if OPT["AUP"] == 2:
        a(f"s_cmp_lg_u32 s{sROUND}, 0")
        a("s_cbranch_scc1 B_NOST")
        stage_weights(a, 0, pU, "st2")
        a.label("B_NOST")
        a.vm = []
    ln = vT
    lane_id(a, ln)
    a(f"v_and_b32 v{vT+1}, 31, v{ln}")
    a(f"s_lshl_b32 s{sA}, s{sWIN}, 12")
    a(f"s_add_u32 s{sA}, s{sA}, {L_TMP + 4}")
    a(f"v_lshl_add_u32 v{vT+2}, v{vT+1}, 3, s{sA}")
    a(f"s_lshl_b32 s{sA}, s{sFH}, 8")
    a(f"v_add_u32 v{vT+3}, s{sA}, v{vT+2}")
    for i in range(NUP // 2):
        a(f"ds_read_b32 v{FR+i}, v{vT+3} offset:{512*i}", f"ei{i}")
    for t in range(NUP, TCAP):
        a(f"ds_read_b32 v{EF+4*t}, v{vT+2} offset:{256*t}", f"el{t}")
    a(f"v_lshrrev_b32 v{ln}, 5, v{ln}")
    a(f"v_lshlrev_b32 v{ln}, 4, v{ln}")
    a(f"v_sub_u32 v{vT+1}, s{sNW}, v{vT+1}")
    a(f"s_lshl_b32 s{sA}, s{sFH}, 5")
    a(f"v_subrev_u32 v{vT+3}, s{sA}, v{vT+1}")
    a(f"v_mov_b32 v{vT+2}, {BIGOFF}")
    for i in range(NUP // 2):
        a.wait_lg(f"ei{i}")
        a(f"v_cmp_lt_i32 vcc, {64*i}, v{vT+3}")
        a(f"v_add_u32 v{FR+i}, v{FR+i}, v{ln}")
        a(f"v_cndmask_b32 v{FR+i}, v{vT+2}, v{FR+i}, vcc")
        if i == 0 and OPT["AUB"]:
            a("s_barrier")
        if i < OPT["E0"]:
            e_load(a, i)
    if OPT["NOD"]:
        a(f"s_mul_i32 s{sA}, s{sFH}, 4096")
        a(f"v_subrev_u32 v{vT+1}, s{sA}, v{vT+1}")
    for t in range(NUP, TCAP):
        a.wait_lg(f"el{t}")
        a(f"v_cmp_lt_i32 vcc, {32*t}, v{vT+1}")
        a(f"v_add_u32 v{EF+4*t}, v{EF+4*t}, v{ln}")
        a(f"v_cndmask_b32 v{EF+4*t}, v{vT+2}, v{EF+4*t}, vcc")


def list_fields(a, tid, tag):
    c0, c1, c2, kv = vT + 1, vT + 2, vT + 3, vIX
    a(f"v_lshlrev_b32 v{c0}, 3, v{tid}")
    for j in range(4):
        a(f"ds_read_b32 v{MSG+j}, v{c0} offset:{L_TMP + 4096*j}")
    a(f"v_and_b32 v{c0}, 7, v{tid}")
    a(f"v_lshlrev_b32 v{c0}, 3, v{c0}")
    a(f"v_bfe_u32 v{c1}, v{tid}, 3, 2")
    a(f"v_lshl_add_u32 v{c0}, v{c1}, 1, v{c0}")
    a(f"v_lshrrev_b32 v{c1}, 5, v{tid}")
    a(f"v_lshl_add_u32 v{c0}, v{c1}, 6, v{c0}")
    a(f"v_lshlrev_b32 v{c1}, 8, v{c1}")
    a(f"v_bfe_u32 v{c2}, v{tid}, 2, 1")
    a(f"v_lshl_add_u32 v{c1}, v{c2}, 7, v{c1}")
    a(f"v_bfe_u32 v{c2}, v{tid}, 3, 1")
    a(f"v_and_b32 v{kv}, 3, v{tid}")
    a(f"v_lshl_add_u32 v{kv}, v{c2}, 2, v{kv}")
    a(f"v_or_b32 v{kv}, 0x0c0c0c00, v{kv}")
    a(f"v_mov_b32 v{kv+1}, {INC[0] | INC[1] << 8 | INC[2] << 16 | INC[3] << 24}")
    a(f"s_mov_b32 s{sA}, {INC[4] | INC[5] << 8 | INC[6] << 16 | INC[7] << 24}")
    a(f"v_perm_b32 v{kv}, s{sA}, v{kv+1}, v{kv}")
    a(f"v_and_b32 v{c2}, 16, v{tid}")
    a(f"v_add_u32 v{c2}, 4, v{c2}")
    a(f"v_lshlrev_b32 v{kv}, v{c2}, v{kv}")
    a(f"v_lshlrev_b32 v{c2}, 2, v{tid}")
    a.wait_all(vm=False)
    for w in range(4):
        if OPT["OOB"]:
            a(f"v_subrev_u32 v{MSG+5}, s{sN0+w}, v{tid}")
            a(f"v_cmp_gt_u32 vcc, 8, v{MSG+5}")
            a(f"v_mov_b32 v{MSG+5}, 0")
            a("s_mov_b64 exec, vcc")
            a(f"ds_write_b16 v{c0}, v{MSG+5} offset:{L_SRC + w*SRC_W}")
            a("s_mov_b64 exec, -1")
        a(f"v_cmp_gt_u32 vcc, s{sN0+w}, v{tid}")
        a("s_mov_b64 exec, vcc")
        a(f"s_cbranch_execz {tag}{w}")
        r, d, u = MSG + w, MSG + 4, MSG + 5
        a(f"v_and_b32 v{u}, 0x7fff, v{r}")
        a(f"ds_write_b16 v{c0}, v{u} offset:{L_SRC + w*SRC_W}")
        a(f"v_bfe_u32 v{d}, v{r}, 15, 5")
        a(f"v_lshl_add_u32 v{u}, v{d}, 2, v{c1}")
        a(f"ds_add_u32 v{u}, v{kv} offset:{L_AGM + w*AGM_W}")
        a(f"v_and_b32 v{u}, 3, v{d}")
        a(f"v_mul_u32_u24 v{u}, 0x5555, v{u}")
        a(f"ds_write_b16 v{c2}, v{u} offset:{L_SEL + w*SEL_W + 2}")
        a(f"v_lshrrev_b32 v{u}, 4, v{d}")
        a(f"v_add_u32 v{u}, v{u}, v{c2}")
        a(f"v_and_b32 v{r}, 8, v{d}")
        a(f"v_lshlrev_b32 v{r}, 2, v{r}")
        a(f"v_and_b32 v{d}, 4, v{d}")
        a(f"v_lshl_or_b32 v{r}, v{d}, 4, v{r}")
        a(f"ds_write_b8 v{u}, v{r} offset:{L_SEL + w*SEL_W}")
        a.label(f"{tag}{w}")
        a("s_mov_b64 exec, -1")
    a.wait_all(vm=False)


def valu_stream(base):
    g, h = base, base + 16
    steps = []
    if OPT["VO"]:
        E_ = lambda j: f"v_exp_f32 v{g+j}, v{g+j}"
        F_ = lambda j: f"v_fma_f32 v{g+j}, v{g+j}, v{h+j}, v{h+j}"
        R_ = lambda j: f"v_rcp_f32 v{g+j}, v{g+j}"
        C_ = lambda m: f"v_cvt_pk_bf16_f32 v{MSG+m}, v{g+2*m}, v{g+2*m+1}"
        for p in range(10):
            ex = [E_(2*p), E_(2*p+1)] if p < 8 else []
            fm = [F_(2*p-2), F_(2*p-1)] if 1 <= p <= 8 else []
            rc = [R_(2*p-2), R_(2*p-1)] if 1 <= p <= 8 else []
            cv = [C_(p-2)] if 2 <= p <= 9 else []
            if OPT["VO"] == 1:
                steps += [fm + ex, cv + rc]
            elif OPT["VO"] == 2:
                steps += [ex + fm, rc + cv] if p < 9 else [cv, []]
            else:
                steps += [fm + cv + ex[:1], ex[1:] + rc]
        return steps
    for j in range(20):
        st = []
        if j < 16:
            st.append(f"v_exp_f32 v{g+j}, v{g+j}")
        if 0 <= j - 1 < 16:
            st.append(f"v_fma_f32 v{g+j-1}, v{g+j-1}, v{h+j-1}, v{h+j-1}")
        if 0 <= j - 2 < 16 and not (OPT["CUT"] and j % 2):
            st.append(f"v_rcp_f32 v{g+j-2}, v{g+j-2}")
        if j - 3 >= 1 and (j - 3) % 2 == 1 and j - 3 < 16:
            m = (j - 4) // 2
            st.append(f"v_cvt_pk_bf16_f32 v{MSG+m}, v{g+2*m}, v{g+2*m+1}")
        steps.append(st)
    return steps


def dma_ops(v):
    st = v % NS
    return [(f"s_add_u32 m0, s{sRING}, {st*4096 + i*1024}",
             f"buffer_load_dwordx4 v{vVO+i}, {sr(sTAB,4)}, s{sFT1 if v & 1 else sFT0} offen lds", f"d{v}")
            for i in range(4)]


def issue_dma(a, v):
    ops = dma_ops(v)
    a(ops[0][0])
    for i, (m0w, ld, tg) in enumerate(ops):
        a("s_nop 0")
        a(ld, tg)
        if i + 1 < 4:
            a(ops[i + 1][0])


def voffs(a):
    for i in range(4):
        sel = " op_sel:[1,0,0,0]" if i & 1 else ""
        a(f"v_mad_u32_u16 v{vVO+i}, v{vIX + (i >> 1)}, s{s512}, v{vLC + (i & 1)}{sel}")


def frag_reads(v):
    return [(f"ds_read_b128 {vr(FR+4*i,4)}, v{vFA+i} offset:{(v % NS)*4096}", f"f{v}") for i in range(4)]


def main_mfmas(v):
    t, f = v >> 1, v & 1
    g = ACC + 32 * (v & 1)
    h = g + 16
    return [mfma(g, FR, ID, None), mfma(h, FR + 8, ID, None), mfma(g, FR + 4, ID + 4, g), mfma(h, FR + 12, ID + 4, h),
            mfma(g, e_reg(t), CW + 4*f, g),
            f"v_smfmac_f32_32x32x32_bf16 {vr(g, 16)}, {vr(SEL, 4)}, {vr(XA + 8*f, 8)}, v{SEL + 4}"]


def agg_mfmas(v):
    d = AGG + 16 * (v & 1)
    return [mfma(d, MSG, AOH, d), mfma(d, MSG + 4, AOH + 4, d)]


def rd_idx(a, t):
    a(f"ds_read_b64 {vr(vIX,2)}, v{vIA} offset:{64*t}", f"ix{t}")


def rd_sel_addr(a, t):
    a(f"ds_read_u8 v{vS0}, v{vSA} offset:{128*t}", f"sa{t}")


def rd_sel(a, t):
    a.wait_lg(f"sa{t}")
    a(f"ds_read_b128 {vr(SEL,4)}, v{vS0} offset:{L_LUT1}", f"s{t}")
    a(f"ds_read_u16 v{SEL+4}, v{vSI} offset:{128*t}", f"s{t}")


def rd_agg_addr(a, t):
    a(f"ds_read_u16 v{vG0}, v{vGA} offset:{256*t}", f"ga{t}")
    a(f"ds_read_u16 v{vG0+1}, v{vGA} offset:{256*t + 2}", f"ga{t}")


def rd_agg(a, t):
    a.wait_lg(f"ga{t}")
    a(f"ds_read_b128 {vr(AOH,4)}, v{vG0} offset:{L_LUT2}", f"g{t}")
    a(f"ds_read_b128 {vr(AOH+4,4)}, v{vG0+1} offset:{L_LUT2}", f"g{t}")


def slot(a, u):
    t, f = u >> 1, u & 1
    pre = {j: [] for j in range(20)}
    post = {j: [] for j in range(20)}
    a.wait_all(vm=False)
    if f == 0 and OPT["FAIR"] and t > 0 and t % OPT["FE"] == 0:
        a(f"v_readfirstlane_b32 s{sA}, v{vT+2}")
        post[0].append(lambda: (a(f"s_mul_i32 s{sA}, s{sA}, s{sSGN}"), a("s_setprio 0"), a(f"s_cmp_ge_i32 s{sA}, 0"),
                                a(f"s_cbranch_scc1 F{u}"), a("s_setprio 1"), a.label(f"F{u}")))
    g = agg_mfmas(u - 1) if u > 0 else [None, None]
    m = main_mfmas(u + 1)
    order = [m[0], m[1], g[0], m[2], m[3], g[1], m[4], m[5], None]
    for i, x in enumerate(order):
        if x:
            pre[i].append(lambda x=x: a(x))
    if f == 0 and NUP <= t + OPT["ED"] < TCAP:
        post[9].append(lambda: e_load_late(a, t + OPT["ED"]))
    if f == 1:
        pre[6].insert(0, lambda: a.wait_vm(f"e{t + 1}"))
    L0, D0 = OPT["L0"], OPT["D0"]
    pre[L0].append(lambda: a.wait_vm(f"d{u + 2}"))
    for i, (rd, tg) in enumerate(frag_reads(u + 2)):
        pre[L0 + i].append(lambda rd=rd, tg=tg: a(rd, tg))
    pre[D0].append(lambda: a.wait_lg(f"f{u + 2}" if AH == NS else f"ix{(u + 2 + AH) // 2}"))
    nv = u + 2 + AH
    if nv % 2 == 0:
        pre[0].append(lambda: rd_idx(a, nv // 2))
        pre[D0].append(lambda: voffs(a))
    for i, (m0w, ld, tg) in enumerate(dma_ops(nv)):
        pre[D0 + i].append(lambda m0w=m0w: a(m0w))
        post[D0 + i].append(lambda ld=ld, tg=tg: a(ld, tg))
    if f == 0:
        pre[1].append(lambda: rd_sel_addr(a, t + 1))
        post[D0].append(lambda: rd_agg(a, t))
        post[D0 + 1].append(lambda: rd_sel(a, t + 1))
    else:
        pre[2].append(lambda: rd_agg_addr(a, t + 1))
        if OPT["FAIR"] and (t + 1) % OPT["FE"] == 0:
            post[D0 + 1].append(lambda: a(f"ds_add_rtn_u32 v{vT+2}, v{vT}, v{vT+1}"))
    for j, st in enumerate(valu_stream(ACC + 32 * f)):
        for fn in pre[j]:
            fn()
        for s in st:
            a(s)
        for fn in post[j]:
            fn()


def gen():
    a = Asm()
    a(f"s_cmp_ge_u32 s2, {NWG}")
    a("s_cbranch_scc1 K_END")
    stamp(a, 0)
    a(f"s_load_dwordx2 s[{pWS}:{pWS+1}], s[0:1], 72")
    a(f"s_load_dwordx4 s[{pSRC}:{pSRC+3}], s[0:1], 16")
    a("s_load_dwordx4 s[4:7], s[0:1], 0")
    a(f"s_load_dwordx4 s[{pU}:{pU+3}], s[0:1], 32")
    a(f"s_load_dwordx2 s[{pG}:{pG+1}], s[0:1], 48")
    a(f"s_load_dwordx2 s[{sTA}:{sTA+1}], s[0:1], 56")
    a("s_mov_b32 s3, s2")
    a(f"s_and_b32 s{sA}, s2, 7")
    a(f"s_lshl_b32 s{sA}, s{sA}, 5")
    a("s_lshr_b32 s2, s2, 3")
    a(f"s_add_u32 s2, s2, s{sA}")
    a(f"v_mov_b32 v{tid}, v0")
    a(f"v_lshrrev_b32 v{vT}, 6, v0")
    a(f"s_mov_b32 s{sJOB}, s3")
    a(f"v_readfirstlane_b32 s{sW}, v{vT}")
    a(f"s_mov_b32 s{sHELP}, 0")
    a(f"s_mov_b32 s{sPAR}, 0")
    a(f"s_mov_b32 s{sROUND}, 0")
    a(f"s_mov_b32 s{sR}, {RMAX}")
    a(f"s_mov_b32 s{s512}, {0 if OPT['HIT'] else 512}")
    a(f"s_mov_b32 s{sNL}, {NL2E}")
    a(f"s_lshr_b32 s{sWIN0}, s{sW}, 1")
    a(f"s_mov_b32 s{sWIN}, s{sWIN0}")
    a(f"s_and_b32 s{sFH}, s{sW}, 1")
    a(f"s_mul_i32 s{sRING}, s{sW}, {RW}")
    a(f"s_add_u32 s{sRING}, s{sRING}, {L_RING}")
    window_regs(a, sWIN0, sNODE0, sWSZ0)
    a(f"s_lshl_b32 s{sFT0}, s{sFH}, 8")
    a(f"s_add_u32 s{sFT1}, s{sFT0}, 128")
    a(f"s_cmp_ge_u32 s{sW}, 4")
    a(f"s_cselect_b32 s{sSGN}, -1, 1")
    a.wait_all(vm=False)
    srd(a, sOUT, sTA, N * 256)
    srd(a, sX, 4, N * 256)
    srd(a, sEA, 6, E * 32)
    srd(a, sCELL, pWS, CELL_SZ, CELL_OFF)
    srd(a, sREC, pWS, REC_SZ, REC_OFF)
    a.label("K_SORT")

    def stage_rows():
        a(f"s_mov_b32 s{sNT}, s{sB}")
        stage_x(a, sNODE0, "st")
        a(f"s_mov_b32 s{sB}, s{sNT}")

    def stage_v():
        stage_matrix(a, pV, 32768, 0, 1, "st")

    def shadow():
        if OPT["WPF"]:
            keep = list(a.vm)
            lane_id(a, vT)
            a(f"s_lshr_b32 s{sA}, s3, 3")
            for w, ptr, size, n in ((5, pG, 272 * 256, 17), (6, pV, 32768, 8), (7, pU, 32768, 8)):
                a(f"s_cmp_lg_u32 s{sW}, {w}")
                a(f"s_cbranch_scc1 K_WP{w}")
                srd(a, sTA, ptr, size)
                a(f"s_mul_i32 s{sC}, s{sA}, {n}")
                a(f"v_add_lshl_u32 v{vT+1}, v{vT}, s{sC}, 7")
                a(f"s_mov_b64 exec, {(1 << n) - 1}")
                a(f"buffer_load_dword v{AGG+31}, v{vT+1}, {sr(sTA,4)}, 0 offen")
                a("s_mov_b64 exec, -1")
                a.label(f"K_WP{w}")
            a.vm = keep
        weight_offset(a)
        (stage_v if OPT["SORD"] else stage_rows)()
        for c in range(OPT["XC"]):
            srd(a, sTA, pDST, E * 4)
            a(f"s_xor_b32 s{sA}, s3, {c + 1}")
            a(f"s_mul_i32 s{sA}, s{sA}, {CH * 4}")
            a(f"v_lshl_add_u32 v{EF+50+c}, v{tid}, 4, s{sA}")
            a(f"v_mov_b32 v{vT}, {BIGOFF}")
            a(f"v_cmp_gt_u32 vcc, {CH // 4}, v{tid}")
            a(f"v_cndmask_b32 v{EF+50+c}, v{vT}, v{EF+50+c}, vcc")
            a(f"buffer_load_dwordx4 {vr(EF+52+4*c,4)}, v{EF+50+c}, {sr(sTA,4)}, 0 offen", "st")
        a(f"s_add_u32 s{sFLG}, s{pWS}, {FLG_OFF + F_TAG}")
        a(f"s_addc_u32 s{sFLG+1}, s{pWS+1}, 0")
        a(f"s_load_dword s{sTAG}, s[{sFLG}:{sFLG+1}], 0")
        srd(a, sTAB, pWS, TAB_SZ, TAB_OFF)
        init_luts(a)
        lane_consts(a)
        tr_bases(a)
        a.wait_all(vm=False)
        a(f"s_add_u32 s{sTAG}, s{sTAG}, 1")
        srd(a, sFLG, pWS, FLG_SZ, FLG_OFF)

    def stage2():
        stage_matrix(a, pG, 272 * 256, 128, 0, "st")
        a(f"s_cmp_ge_u32 s{sW}, 4")
        a("s_cbranch_scc1 K_NOC")
        a(f"s_mul_i32 s{sA}, s{sW}, 3072")
        a(f"s_sub_u32 s{sC}, 65536, s{sA}")
        a(f"s_lshl_b32 s{sA}, s{sW}, 10")
        a(f"s_add_u32 m0, s{sA}, {L_C}")
        a(f"buffer_load_dwordx4 v{vWO}, {sr(sTA,4)}, s{sC} offen lds")
        a.label("K_NOC")
    sort_job(a, shadow, stage_rows if OPT["SORD"] else stage_v, stage2)
    stamp(a, 2)
    a(f"ds_read_b128 {vr(ID,4)}, v{vIX} offset:{L_LUT1}")
    a(f"ds_read_b128 {vr(ID+4,4)}, v{vIX+1} offset:{L_LUT1}")
    read_x(a, sWIN0)
    if OPT["SIG"]:
        a.wait_all(lg=False)
        last_wave_flag(a, L_SG1, None, 3, "K_NOS1")
    if OPT["OPF"]:
        if OPT["OPF"] == 2:
            a("s_barrier")
        a(f"s_mov_b64 exec, s[{sN2}:{sN3}]")
        a("s_cbranch_execz K_NOPF")
        a(f"buffer_load_dword v{AGG+30}, v{EF+17}, {sr(sEA,4)}, 0 offen")
        a.label("K_NOPF")
        a("s_mov_b64 exec, -1")
        for c in range(OPT["XC"]):
            a(f"s_lshr_b32 s{sA}, s2, 5")
            a(f"s_mov_b32 s{sB}, {DIVB}")
            a(f"v_cmp_gt_u32 vcc, {E * 4}, v{EF+50+c}")
            a(f"s_mov_b64 s[{sN0}:{sN1}], vcc")
            a(f"s_mov_b64 s[{sN2}:{sN3}], 0")
            for k in range(4):
                a(f"v_mul_u32_u24 v{vT}, s{sB}, v{EF+52+4*c+k}")
                a(f"v_lshrrev_b32 v{vT}, 25, v{vT}")
                a(f"v_cmp_eq_u32 vcc, s{sA}, v{vT}")
                a(f"s_or_b64 s[{sN2}:{sN3}], s[{sN2}:{sN3}], vcc")
            a(f"v_lshlrev_b32 v{vT}, 3, v{EF+50+c}")
            a(f"s_and_b64 exec, s[{sN2}:{sN3}], s[{sN0}:{sN1}]")
            a(f"s_cbranch_execz K_NOPX{c}")
            a(f"buffer_load_dword v{AGG+30}, v{vT}, {sr(sEA,4)}, 0 offen")
            a.label(f"K_NOPX{c}")
            a("s_mov_b64 exec, -1")
        a.vm = []
    edge_weights(a)
    table_setup(a, sNODE0, L_TSCR)
    if not OPT["SIG"]:
        a.wait_all(lg=False)
        last_wave_flag(a, L_SG1, None, 3, "K_NOS1")

    def cells():
        fstamp(a, 1, 8)
        a(f"s_lshl_b32 s{sA}, s2, 3")
        a(f"v_lshrrev_b32 v{vCG+2}, 1, v{tid}")
        a(f"v_lshl_add_u32 v{vCG+2}, v{vCG+2}, 11, s{sA}")
        a(f"buffer_load_dwordx2 {vr(vCG,2)}, v{vCG+2}, {sr(sCELL,4)}, 0 offen", "cell")

    def records():
        fstamp(a, 2, 2)
        a.wait_vm("cell")
        a(f"s_mov_b32 s{sC}, 0")
        a.label("K_CHK")
        a(f"v_cmp_ne_u32 vcc, s{sTAG}, v{vCG}")
        if OPT["FORCE1"]:
            a("s_mov_b64 vcc, exec")
        a("s_mov_b64 exec, vcc")
        a("s_cbranch_execz K_CELLS")
        a(f"s_cmp_ge_u32 s{sC}, {3 if OPT['FORCE1'] else POLL_LIMIT}")
        a("s_cbranch_scc1 K_CFAIL")
        a("s_sleep 4")
        a(f"buffer_load_dwordx2 {vr(vCG,2)}, v{vCG+2}, {sr(sCELL,4)}, 0 offen sc1")
        a(f"s_add_u32 s{sC}, s{sC}, 1")
        a("s_waitcnt vmcnt(0)")
        a("s_branch K_CHK")
        a.label("K_CFAIL")
        a(f"v_mov_b32 v{vCG+1}, 0")
        a(f"v_mov_b32 v{vT}, {L_FB1}")
        a(f"v_mov_b32 v{vT+1}, 1")
        a(f"ds_write_b32 v{vT}, v{vT+1}")
        a.label("K_CELLS")
        a("s_mov_b64 exec, -1")
        stamp(a, 3)
        fstamp(a, 2, 3)
        split_cell(a, vCG + 1)
        load_records(a, "K_RL0")
        a.vm = []

    if OPT["CI"] >= 0:
        put0 = table_part(a, 0, XA, records if OPT["RK"] < 0 else None, {OPT["CI"]: cells}, AGG)
    else:
        put0 = table_part(a, 0, XA, cells, None, AGG)
    if OPT["RK"] < 0:
        put0()

    def early_count():
        a(f"s_waitcnt vmcnt({len(a.vm)})")
        count_pass(a, "A", True)
        a.wait_all(vm=False)
    a.put1 = table_part(a, 1, XA, early_count if OPT["EB"] else None, {OPT['RK']: lambda: (records(), put0())}, ACC if OPT["H1"] else None)
    fstamp(a, 2, 4)
    if OPT["EB"]:
        stamp(a, 4)
        a("s_branch K_COUNTED")
    else:
        a(f"s_waitcnt vmcnt({len(a.vm)})")
        stamp(a, 4)
    a.label("K_BUILD")
    build(a)
    NE = NUP // 2
    window_regs(a, sWIN, sNODE, sWSZ)
    a(f"s_cmp_lg_u32 s{sROUND}, 0")
    a("s_cbranch_scc1 K_PLAIN")
    vm_branch = list(a.vm)
    fstamp(a, 3, 2)
    init_lists(a, "K_I0", False)
    fstamp(a, 3, 3)
    a(f"s_waitcnt vmcnt({OPT['E0']})")
    fstamp(a, 3, 4)
    last_wave_flag(a, L_SG2, F_TAB, 2, "K_NOS2")
    if not OPT["AUP"]:
        stage_weights(a, 0, pU, "st2")
    list_addrs(a)
    fstamp(a, 3, 5)
    read_x(a, sWIN)
    fstamp(a, 3, 6)
    ecount = [OPT["E0"]]

    def ehook(n):
        def fn():
            for _ in range(n):
                if ecount[0] < NE:
                    e_load(a, ecount[0])
                    ecount[0] += 1
        return fn
    ehook(OPT["E1"])()
    a.wait_vm("st2")
    wg_sync(a)
    fstamp(a, 3, 7)
    rest = max(NE - ecount[0] - OPT["EL"], 0)
    hk = lambda n: {0: ehook((n + 1) // 2), 4: ehook(n // 2)}
    node_proj(a, hk((rest + 1) // 2), hk(rest // 2))
    flags_load(a)
    last = NE - ecount[0]
    ehook(last)()
    list_fields(a, tid, "K_D")
    stamp(a, 6)
    fstamp(a, 3, 8)
    flags_check(a, last)
    wg_sync(a)
    a(f"v_mov_b32 v{vT+3}, {L_FB2}")
    a(f"ds_read_b32 v{vT+3}, v{vT+3}", "fb")
    rd_idx(a, 0)
    a.wait_lg("fb")
    a(f"v_readfirstlane_b32 s{sA}, v{vT+3}")
    a(f"s_cmp_lg_u32 s{sA}, 0")
    a("s_cbranch_scc1 K_HELP2")
    a.label("K_GO")
    a.vm = []
    fstamp(a, 3, 9)

    def fill_dma(v):
        if v % 2 == 0:
            a.wait_lg(f"ix{v // 2}")
            voffs(a)
            if v + 2 <= AH + 1:
                rd_idx(a, v // 2 + 1)
        issue_dma(a, v)
    for v in range(AH):
        fill_dma(v)
    a(f"v_and_b32 v{vSI}, -4, v{vSA}")
    a(f"v_add_u32 v{vSI}, 2, v{vSI}")
    rd_sel_addr(a, 0)
    rd_agg_addr(a, 0)
    rd_sel(a, 0)
    a(f"s_waitcnt vmcnt({len(a.vm)})")
    e_exchange_write(a)
    wg_sync(a)
    e_exchange_read(a)
    stamp(a, 7)
    a(f"s_cmp_eq_u32 s{sNT}, 0")
    a("s_cbranch_scc1 K_RDONE")
    if OPT["FAIR"]:
        a(f"s_and_b32 s{sA}, s{sW}, 3")
        a(f"s_lshl_b32 s{sA}, s{sA}, 2")
        a(f"s_add_u32 s{sA}, s{sA}, {L_FAIR}")
        a(f"v_mov_b32 v{vT}, s{sA}")
        lane_id(a, vT + 2)
        a(f"v_cmp_eq_u32 vcc, 0, v{vT+2}")
        a(f"v_mov_b32 v{vT+1}, s{sSTEP if OPT['PROP'] else sSGN}")
        a(f"v_lshlrev_b32 v{vT+2}, 2, v{vT+2}")
        a(f"v_cndmask_b32 v{vT+1}, 0, v{vT+1}, vcc")
        a(f"v_cndmask_b32 v{vT}, v{vT+2}, v{vT}, vcc")
    for t in range(NUP, TCAP):
        if t - OPT["ED"] < 0:
            e_load_late(a, t)
    a.wait_vm("d0")
    for rd, tg in frag_reads(0):
        a(rd, tg)
    a.wait_lg("f0")
    fill_dma(AH)
    mm = main_mfmas(0)
    for m in mm[:4]:
        a(m)
    a.wait_vm("d1")
    for rd, tg in frag_reads(1):
        a(rd, tg)
    a.wait_lg("s0")
    for m in mm[4:]:
        a(m)
    a.wait_lg("f1")
    fill_dma(AH + 1)
    a(f"s_cmp_eq_u32 s{sNT}, 1")
    a("s_cbranch_scc1 K_ST0")
    for u in range(2 * TCAP - 2):
        slot(a, u)
        if u % 2 == 1 and u < 2 * TCAP - 3:
            a(f"s_cmp_eq_u32 s{sNT}, {(u + 1) // 2 + 1}")
            a(f"s_cbranch_scc1 K_ST{(u + 1) // 2}")
    for t in range(TCAP - 1, -1, -1):
        a.label(f"K_ST{t}")
        for j in range(4):
            a(f"v_mov_b32 v{vVO+j}, v{e_reg(t)+j}")
        if t:
            a("s_branch K_LAST")
    a.wait_all(vm=False)
    a("s_branch K_LAST0")
    a.label("K_LAST")
    a.wait_all(vm=False)
    for m in agg_mfmas(1):
        a(m)
    a.label("K_LAST0")
    a(f"ds_read_b128 {vr(AOH,4)}, v{vG0} offset:{L_LUT2}")
    a(f"ds_read_b128 {vr(AOH+4,4)}, v{vG0+1} offset:{L_LUT2}")
    a(f"s_sub_u32 s{sA}, s{sNT}, 1")
    a(f"s_lshl_b32 s{sA}, s{sA}, 5")
    a(f"s_sub_u32 s{sB}, s{sNW}, s{sA}")
    mm = main_mfmas(1)
    mm[4] = mfma(ACC + 32, vVO, CW + 4, ACC + 32)

    def part(base, tag, extra):
        g, h = base, base + 16
        extra = list(extra)
        for m in range(2, 8):
            a(f"v_mov_b32 v{MSG+m}, 0")
        for q in range(4):
            if q:
                a(f"s_cmp_le_u32 s{sB}, {8*q}")
                a(f"s_cbranch_scc1 {tag}")
            for j in range(4 * q, 4 * q + 4):
                a(f"v_exp_f32 v{g+j}, v{g+j}")
                if extra:
                    a(extra.pop(0))
            for j in range(4 * q, 4 * q + 4):
                a(f"v_fma_f32 v{g+j}, v{g+j}, v{h+j}, v{h+j}")
                if extra:
                    a(extra.pop(0))
            for j in range(4 * q, 4 * q + 4):
                a(f"v_rcp_f32 v{g+j}, v{g+j}")
            for m in (2 * q, 2 * q + 1):
                a(f"v_cvt_pk_bf16_f32 v{MSG+m}, v{g+2*m}, v{g+2*m+1}")
        a.label(tag)
        a("s_nop 1")
    part(ACC, "K_LA", mm)
    a.wait_all(vm=False)
    for m in agg_mfmas(0):
        a(m)
    a("s_nop 3")
    part(ACC + 32, "K_LB", [])
    for m in agg_mfmas(1):
        a(m)
    a.label("K_RDONE")
    stamp(a, 8)
    a(f"s_cmp_lg_u32 s{sMORE}, 0")
    a("s_cbranch_scc1 K_ROUND")
    wr, rd, go = MSG, MSG + 4, vVO
    a(f"s_lshl_b32 s{sC}, s{sFH}, 7")
    line_addrs(a, wr, rd, go, sRING, sNODE, 8, 32, sC, sWSZ)
    for f in range(2):
        g, w = AGG + 16 * f, ACC + 16 * f
        for j in range(16):
            a(f"v_mul_f32 v{w+j}, s{sNL}, v{g+j}")
        for j in range(16):
            a(f"v_exp_f32 v{w+j}, v{w+j}")
        for j in range(16):
            a(f"v_add_f32 v{w+j}, 1.0, v{w+j}")
        for j in range(16):
            a(f"v_rcp_f32 v{w+j}, v{w+j}")
        for j in range(16):
            a(f"v_mul_f32 v{w+j}, v{w+j}, v{g+j}")
        for m in range(8):
            a(f"v_cvt_pk_bf16_f32 v{ACC+32+8*f+m}, v{w+2*m}, v{w+2*m+1}")
    a.wait_all()
    for i in range(4):
        a(f"ds_write_b128 v{wr+i}, {vr(ACC+32+4*i,4)}")
    for i in range(4):
        a(f"ds_read_b128 {vr(ACC+4*i,4)}, v{rd} offset:{1024*i}", f"or{i}")
    for i in range(4):
        a.wait_lg(f"or{i}")
        a(f"buffer_store_dwordx4 {vr(ACC+4*i,4)}, v{go+i}, {sr(sOUT,4)}, 0 offen {OPT['OST'].replace('_', ' ')}")
    a(f"s_cmp_lg_u32 s{sW}, 0")
    a("s_cbranch_scc1 K_FIN")
    a(f"s_cmp_eq_u32 s{sHELP}, 0")
    a("s_cbranch_scc1 K_NOWD")
    a(f"s_sub_u32 s{sB}, s{sTAG}, 1")
    for j in range(8):
        a(f"v_mov_b32 v{vPUB+j}, s{sB}")
    put_cells(a)
    put_flag(a, F_TAB, sB, 2)
    a.label("K_NOWD")
    a("s_cmp_lg_u32 s3, 0")
    a("s_cbranch_scc1 K_FIN")
    a(f"v_mov_b32 v{vT}, {F_TAG}")
    a(f"v_mov_b32 v{vT+1}, s{sTAG}")
    a("s_mov_b64 exec, 1")
    a(f"buffer_store_dword v{vT+1}, v{vT}, {sr(sFLG,4)}, 0 offen sc1")
    a("s_mov_b64 exec, -1")
    a.label("K_FIN")
    if OPT["STAMP"]:
        stamp(a, 9)
        stamp_store(a)
    a.label("K_END")
    a("s_endpgm")

    a.label("K_PLAIN")
    a.vm = list(vm_branch)
    for i in range(OPT["E0"], NE):
        e_load(a, i)
    list_fields(a, tid, "K_P")
    wg_sync(a)
    rd_idx(a, 0)
    a("s_branch K_GO")

    a.label("K_OVF")
    a(f"s_cmp_eq_u32 s{sR}, 1")
    a(f"s_cselect_b32 s{sA}, 2, 0")
    a(f"s_or_b32 s{sPAR}, s{sPAR}, s{sA}")
    a(f"s_lshr_b32 s{sR}, s{sR}, 1")
    a(f"s_max_u32 s{sR}, s{sR}, 1")
    a("s_branch K_AGAIN")
    a.label("K_ROUND")
    a(f"s_mov_b32 s{sROUND}, 1")
    a(f"s_xor_b32 s{sPAR}, s{sPAR}, 1")
    a.label("K_AGAIN")
    a("s_setprio 0")
    a("s_nop 7")
    a.wait_all()
    a("s_barrier")
    lane_id(a, tid)
    a(f"s_lshl_b32 s{sA}, s{sW}, 6")
    a(f"v_add_u32 v{tid}, s{sA}, v{tid}")
    load_records(a, "K_RL1", True)
    init_lists(a, "K_I1", True)
    a.wait_all()
    a("s_barrier")
    a("s_branch K_BUILD")

    a.label("K_HELP1")
    a(f"s_mov_b32 s{sHELP}, 1")
    a(f"s_mov_b32 s{sJOB}, 0")
    a.wait_all()
    a("s_barrier")
    srd(a, sREC, pWS, REC_SZ, REC2_OFF)
    a("s_branch K_SORT")
    a.label("K_HELP1N")
    a(f"s_add_u32 s{sJOB}, s{sJOB}, 1")
    a(f"s_cmp_lt_u32 s{sJOB}, {NWG}")
    a("s_cbranch_scc1 K_SORT")
    a(f"v_lshlrev_b32 v{vT+3}, 1, v{tid}")
    a(f"v_and_b32 v{vT+3}, -4, v{vT+3}")
    a(f"ds_read_b32 v{vT+3}, v{vT+3} offset:{L_HC}")
    a(f"v_mov_b32 v{vT}, {L_FB1}")
    a(f"v_mov_b32 v{vT+1}, 0")
    a(f"ds_write_b32 v{vT}, v{vT+1}")
    a.wait_all()
    split_cell(a, vT + 3)
    a("s_branch K_AGAIN")

    a.label("K_HELP2")
    a(f"s_mov_b32 s{sHELP}, 1")
    a.wait_all()
    a(f"v_mov_b32 v{vG0 - 1}, v{vSA}")
    weight_offset(a)
    stage_weights(a, 128, pV, "h")
    a(f"v_mov_b32 v{vSA}, v{vG0 - 1}")
    a(f"s_mov_b32 s{sJOB}, 0")
    a.label("K_HJOB")
    a(f"s_lshl_b32 s{sA}, s{sWIN0}, 3")
    a(f"s_lshr_b32 s0, {WOFFPK}, s{sA}")
    a(f"s_and_b32 s0, s0, 0xff")
    a(f"s_mul_i32 s{sA}, s{sJOB}, {NB}")
    a(f"s_add_u32 s0, s0, s{sA}")
    stage_x(a, 0, "h")
    a.wait_all()
    a("s_barrier")
    read_x(a, sWIN0)
    wg_sync(a)
    table_setup(a, 0, L_X)
    table_part(a, 0, FR)
    table_part(a, 1, FR)
    a.wait_all()
    a("s_barrier")
    a(f"s_add_u32 s{sJOB}, s{sJOB}, 1")
    a(f"s_cmp_lt_u32 s{sJOB}, {NWG}")
    a("s_cbranch_scc1 K_HJOB")
    rd_idx(a, 0)
    a("s_branch K_GO")
    return a


def main():
    k = gen()
    text = k.text()
    ref = open(f"cdna_kernels/{NAME}.s.ref").read().split("; Override launch")[0]
    out = ref + f"; @launch grid=({NWG},1,1) block=(512,1,1) lds={KLDS}\n"
    out += '.amdgcn_target "amdgcn-amd-amdhsa--gfx950"\n.text\n'
    out += f".globl {NAME}_kernel\n.p2align 8\n.type {NAME}_kernel,@function\n{NAME}_kernel:\n{text}"
    out += f""".section .rodata,"a"
.p2align 6
.amdhsa_kernel {NAME}_kernel
  .amdhsa_next_free_vgpr 256
  .amdhsa_next_free_sgpr 102
  .amdhsa_accum_offset 256
  .amdhsa_group_segment_fixed_size 0
  .amdhsa_kernarg_size 80
  .amdhsa_user_sgpr_count 2
  .amdhsa_user_sgpr_kernarg_segment_ptr 1
  .amdhsa_system_sgpr_workgroup_id_x 1
.end_amdhsa_kernel
"""
    open(sys.argv[1], "w").write(out)
    print(f"lds {KLDS} nops {k.nops}; lines {out.count(chr(10))}")


if __name__ == "__main__":
    main()
```

```python
import os
import sys
sys.path.insert(0, os.path.dirname(os.path.abspath(__file__)))
from asmlib import Asm, vr, sr

NAME = "standalone__edge_featured_mpnn_egc__graph"
N, E, D = 25000, 400000, 128
NWG = 256
CH = 1564
RSTR = 12544
NB = 98
WOFF = [0, 25, 49, 73]
WSZ = [25, 24, 24, 25]
RMAX = 12
assert NWG * CH >= E and CH % 4 == 0 and CH * 8 <= RSTR and NWG * NB >= N
TAB_OFF, TAB_SZ = 0, N * 512
REC_OFF, REC_SZ = 0xC40000, NWG * RSTR
CELL_OFF, CELL_SZ = 0x1800000, NWG * 2048
FLG_OFF, FLG_SZ = 0xFC0000, 16384 + 128
REC2_OFF = 0x1400000
F_TAB, F_TAG = 8192, 16384
assert REC_OFF + REC_SZ <= FLG_OFF
NL2E = 0xBFB8AA3B
BIGOFF = 0x7FFFFF00
DIVB = 10700
assert all((d * DIVB) >> 20 == d // NB for d in range(N))
WOFFPK = WOFF[0] | WOFF[1] << 8 | WOFF[2] << 16 | WOFF[3] << 24
WINM = 337
assert all((d * WINM) >> 13 == max(i for i in range(4) if WOFF[i] <= d) for d in range(NB))
SBIN = 1342
assert ((N - 1) * SBIN) >> 20 == 31
POLL_LIMIT = 4000
ONE = 0x3C00

OPT = dict(STAMP=0, FINE=0, CYC=0, FORCE1=0, FORCE2=0)
for kv in sys.argv[2:]:
    k, v = kv.split("=")
    OPT[k] = int(v) if v.lstrip("-").isdigit() else v
NS = 3
AH = 2
TCAP = 16
INC = [1, 2, 4, 8, 19, 37, 86, 169]
RW = NS * 4096
NUP = 10
ED = 3
E0, E1, EL = 2, 1, 1
EARLY_BINS = 25
L0, D0 = 5, 11

L_LUT2 = 0
L_LUT1 = L_LUT2 + (sum(INC) + 1) * 16
L_BIN = L_LUT1 + 144
L_MORE, L_FB1, L_FB2, L_SG1, L_SG2, L_FAIR = [L_BIN + o for o in (512, 528, 532, 536, 540, 544)]
L_BST = L_BIN + 576
L_SRC = L_BST + 512
SRC_W = (TCAP + 2) * 64
L_SEL = L_SRC + 4 * SRC_W
SEL_W = TCAP * 128
L_AGM = L_SEL + 4 * SEL_W
AGM_W = TCAP * 256
L_END = L_AGM + 4 * AGM_W
L_TMP = L_END
L_RING = (L_TMP + 16384 + 4095) // 4096 * 4096
L_W, L_X, L_C = L_RING, L_RING + 65536, L_RING + 98304
L_XS = L_C + 4096
KLDS = L_XS + 8192
L_HC = L_SEL
L_HIST, L_START = L_SRC, L_SRC + 1024
L_TSCR = (L_SEL + 127) // 128 * 128
assert all(x % 16 == 0 for x in (L_LUT1, L_BIN, L_BST, L_SRC, L_SEL, L_AGM, L_TMP)) and KLDS <= 163840
assert L_TMP + 16384 <= 65536 and L_TSCR + 32768 <= L_TMP + 16384

vCELL = 0
vFA, vLC, vIA, vVO, vIX, vSA, vGA, vS0, vG0, vT = 1, 5, 7, 8, 12, 14, 15, 16, 18, 20
MSG, FR, SEL, AOH, ACC, EF, AGG, XA, CW, ID = 24, 32, 48, 56, 64, 128, 192, 224, 240, 248
XF = ACC + 32
tid, vN = vS0, vS0 + 1
vTR = vG0
vWO = vSA
vBIG = MSG + 7
vCG = FR + 12
vPUB = EF + 52
vSI = SEL + 5
sFLG, sTA = 4, 20
sX, sEA, sOUT, sTAB, sREC, sCELL, sTB = 24, 28, 32, 36, 40, 44, 48
(sW, sWIN, sFH, sRING, sNT, sNW, sR, sMORE, s512, sFT0, sFT1, sNL, sA, sB, sC, sNODE, sROUND, sSGN,
 sN0, sN1, sN2, sN3, sJOB, sWSZ, sWIN0, sWSZ0, sNODE0, sTAG, sHELP, sPAR) = range(52, 82)
sSTEP = sNODE0
pSRC, pDST, pU, pV, pG, pWS = 8, 10, 12, 14, 16, 18
NST = 10


def srd(a, d, lo, size, off=0):
    if off:
        a(f"s_add_u32 s{d}, s{lo}, {off}")
        a(f"s_addc_u32 s{d+1}, s{lo+1}, 0")
        a(f"s_and_b32 s{d+1}, s{d+1}, 0xffff")
    else:
        if d != lo:
            a(f"s_mov_b32 s{d}, s{lo}")
        a(f"s_and_b32 s{d+1}, s{lo+1}, 0xffff")
    a(f"s_mov_b32 s{d+2}, {size}")
    a(f"s_mov_b32 s{d+3}, 0x20000")


def scan16(a, v):
    for sh in (1, 2, 4, 8):
        a(f"v_add_u32_dpp v{v}, v{v}, v{v} row_shr:{sh} row_mask:0xf bank_mask:0xf bound_ctrl:1")


def scan64(a, v):
    scan16(a, v)
    a(f"v_add_u32_dpp v{v}, v{v}, v{v} row_bcast:15 row_mask:0xa bank_mask:0xf")
    a(f"v_add_u32_dpp v{v}, v{v}, v{v} row_bcast:31 row_mask:0xc bank_mask:0xf")


def mfma(d, x, y, c, fmt="bf16"):
    cs = "0" if c is None else vr(c, 16)
    return f"v_mfma_f32_32x32x16_{fmt} {vr(d, 16)}, {vr(x, 4)}, {vr(y, 4)}, {cs}"


def fstamp(a, grp, k):
    if OPT["STAMP"] and OPT["FINE"] == grp:
        a(f"s_memrealtime s[{82 + 2*k}:{83 + 2*k}]")
        a.lg = [t for t in a.lg if t != "smem"] + ["smem"]


def stamp(a, k):
    if OPT["STAMP"] and (k == 0 or not OPT["FINE"]):
        a(f"s_memrealtime s[{82 + 2*k}:{83 + 2*k}]")
        if OPT["CYC"] and k in (7, 8):
            a(f"s_memtime s[{82 + 2*(k - 6)}:{83 + 2*(k - 6)}]")
        a.lg = [t for t in a.lg if t != "smem"] + ["smem"]


def stamp_store(a):
    a.wait_all()
    srd(a, sTA, pWS, 1 << 20, 0x1000000)
    a(f"s_lshl_b32 s{sA}, s2, 3")
    a(f"s_add_u32 s{sA}, s{sA}, s{sW}")
    a(f"s_lshl_b32 s{sA}, s{sA}, 6")
    a(f"v_mov_b32 v1, s{sA}")
    for k in range(12):
        a(f"v_mov_b32 v{8+k}, s{82+2*min(k, NST - 1)}")
    for q in range(3):
        a(f"buffer_store_dwordx4 {vr(8+4*q,4)}, v1, {sr(sTA,4)}, 0 offen offset:{16*q}")


def lane_id(a, v):
    a(f"v_mbcnt_lo_u32_b32 v{v}, -1, 0")
    a(f"v_mbcnt_hi_u32_b32 v{v}, -1, v{v}")


def wg_sync(a):
    a.wait_all(vm=False)
    a("s_barrier")


def put_flag(a, base, sval, sid):
    lane_id(a, vT)
    a(f"s_lshl_b32 s{sA}, s{sid}, 2")
    a(f"s_add_u32 s{sA}, s{sA}, {base}")
    a(f"v_cmp_gt_u32 vcc, 8, v{vT}")
    a(f"v_lshl_add_u32 v{vT}, v{vT}, 10, s{sA}")
    a(f"v_mov_b32 v{vT+1}, s{sval}")
    a("s_mov_b64 exec, vcc")
    keep = list(a.vm)
    a(f"buffer_store_dword v{vT+1}, v{vT}, {sr(sFLG,4)}, 0 offen sc1")
    a.vm = keep
    a("s_mov_b64 exec, -1")


vFL = FR + 8


def flags_load(a):
    a(f"s_cmp_lg_u32 s{sW}, 0")
    a("s_cbranch_scc1 P_NOLD")
    lane_id(a, vFL + 4)
    a(f"s_and_b32 s{sA}, s3, 7")
    a(f"s_lshl_b32 s{sA}, s{sA}, 10")
    a(f"s_add_u32 s{sA}, s{sA}, {F_TAB}")
    a(f"v_lshl_add_u32 v{vFL+4}, v{vFL+4}, 4, s{sA}")
    keep = list(a.vm)
    a(f"buffer_load_dwordx4 {vr(vFL,4)}, v{vFL+4}, {sr(sFLG,4)}, 0 offen sc1")
    a.vm = keep
    a.label("P_NOLD")


def flags_check(a, younger):
    a(f"s_cmp_lg_u32 s{sW}, 0")
    a("s_cbranch_scc1 P_D")
    a(f"s_mov_b32 s{sB}, 0")
    a(f"s_waitcnt vmcnt({younger})")
    keep = list(a.vm)
    a.label("P_L")
    for j in range(4):
        a(f"v_xor_b32 v{vFL+j}, s{sTAG}, v{vFL+j}")
    a(f"v_or_b32 v{vFL}, v{vFL}, v{vFL+1}")
    a(f"v_or3_b32 v{vFL}, v{vFL}, v{vFL+2}, v{vFL+3}")
    a(f"v_cmp_ne_u32 vcc, 0, v{vFL}")
    if not OPT["FORCE2"]:
        a("s_cbranch_vccz P_D")
    a("s_sleep 2")
    a(f"buffer_load_dwordx4 {vr(vFL,4)}, v{vFL+4}, {sr(sFLG,4)}, 0 offen sc1")
    a(f"s_add_u32 s{sB}, s{sB}, 1")
    a(f"s_cmp_lt_u32 s{sB}, {3 if OPT['FORCE2'] else POLL_LIMIT}")
    a("s_waitcnt vmcnt(0)")
    a("s_cbranch_scc1 P_L")
    a(f"v_mov_b32 v{vT}, {L_FB2}")
    a(f"v_mov_b32 v{vT+1}, 1")
    a(f"ds_write_b32 v{vT}, v{vT+1}")
    a.vm = keep
    a.label("P_D")


def init_lists(a, tag, bins):
    for j in range(4):
        a(f"v_mov_b32 v{MSG+j}, 0")
        a(f"v_mov_b32 v{MSG+4+j}, 0x80808080")
    a(f"v_lshlrev_b32 v{vT}, 4, v{tid}")
    tails = []
    regions = [(L_AGM, 4 * AGM_W, MSG), (L_SEL, 4 * SEL_W, MSG + 4), (L_SRC, 4 * SRC_W, MSG)]
    if bins:
        regions.append((L_BIN, 528, MSG))
    for off, n, val in regions:
        for p in range(n // 8192):
            a(f"ds_write_b128 v{vT}, {vr(val,4)} offset:{off + 8192*p}")
        tails.append(((n % 8192) // 16, off + n // 8192 * 8192, val))
    for cnt, off, val in sorted(tails, reverse=True):
        a(f"v_cmp_gt_u32 vcc, {cnt}, v{tid}")
        a("s_mov_b64 exec, vcc")
        a(f"s_cbranch_execz {tag}")
        a(f"ds_write_b128 v{vT}, {vr(val,4)} offset:{off}")
    a.label(tag)
    a("s_mov_b64 exec, -1")


def init_luts(a):
    t0, t1 = vT + 1, vT + 2
    a(f"v_cmp_gt_u32 vcc, 256, v{tid}")
    a("s_mov_b64 exec, vcc")
    a("s_cbranch_execz K_L1")
    a(f"v_and_b32 v{t0}, 15, v{tid}")
    for b in range(4, 8):
        a(f"v_bfe_u32 v{t1}, v{tid}, {b}, 1")
        a(f"s_mov_b32 s{sA}, {INC[b]}")
        a(f"v_mad_u32_u24 v{t0}, v{t1}, s{sA}, v{t0}")
    a(f"v_lshlrev_b32 v{t0}, 4, v{t0}")
    a(f"v_lshl_or_b32 v{t1}, v{tid}, 15, v{tid}")
    for m in range(4):
        a(f"v_and_b32 v{MSG+m}, {0x10001 << (2*m)}, v{t1}")
        a(f"v_mul_u32_u24 v{MSG+m}, {ONE >> (2*m)}, v{MSG+m}")
    a(f"ds_write_b128 v{t0}, {vr(MSG,4)} offset:{L_LUT2}")
    a(f"v_lshrrev_b32 v{t0}, 2, v{tid}")
    a(f"v_and_b32 v{t1}, 3, v{tid}")
    a(f"v_lshrrev_b32 v{MSG+4}, 1, v{t0}")
    a(f"v_cmp_eq_u32 vcc, v{MSG+4}, v{t1}")
    a(f"v_and_b32 v{t0}, 1, v{t0}")
    a(f"v_lshlrev_b32 v{t0}, 4, v{t0}")
    a(f"v_mov_b32 v{t1}, {ONE}")
    a(f"v_lshlrev_b32 v{t0}, v{t0}, v{t1}")
    a(f"v_cndmask_b32 v{t0}, 0, v{t0}, vcc")
    a(f"v_lshlrev_b32 v{t1}, 2, v{tid}")
    a(f"v_mov_b32 v{MSG+4}, 0")
    a(f"v_cmp_gt_u32 vcc, 144, v{tid}")
    a("s_mov_b64 exec, vcc")
    a("s_cbranch_execz K_L1")
    a(f"ds_write_b32 v{t1}, v{MSG+4} offset:{L_BIN}")
    a(f"v_cmp_gt_u32 vcc, 36, v{tid}")
    a("s_mov_b64 exec, vcc")
    a("s_cbranch_execz K_L1")
    a(f"ds_write_b32 v{t1}, v{t0} offset:{L_LUT1}")
    a.label("K_L1")
    a("s_mov_b64 exec, -1")


def lane_consts(a):
    ln, r, h, z = vT + 3, vT, vT + 1, vT + 2
    lane_id(a, ln)
    a(f"v_and_b32 v{r}, 31, v{ln}")
    a(f"v_lshrrev_b32 v{h}, 5, v{ln}")
    a(f"v_bfe_u32 v{z}, v{ln}, 1, 3")
    a(f"v_xor_b32 v{z}, v{z}, v{h}")
    a(f"v_lshlrev_b32 v{z}, 4, v{z}")
    a(f"v_lshl_add_u32 v{z}, v{r}, 7, v{z}")
    a(f"v_add_u32 v{vFA}, s{sRING}, v{z}")
    for i, c in ((1, 2), (2, 4), (3, 6)):
        a(f"v_xor_b32 v{vFA+i}, {c << 4}, v{vFA}")
    a(f"v_lshrrev_b32 v{z}, 4, v{ln}")
    a(f"v_and_b32 v{vLC}, 7, v{ln}")
    a(f"v_xor_b32 v{vLC}, v{vLC}, v{z}")
    a(f"v_lshlrev_b32 v{vLC}, 4, v{vLC}")
    a(f"v_xor_b32 v{vLC+1}, 64, v{vLC}")
    a(f"v_bfe_u32 v{z}, v{r}, 3, 1")
    a(f"v_and_b32 v{vIX}, 3, v{r}")
    a(f"v_lshl_add_u32 v{z}, v{z}, 2, v{vIX}")
    a(f"v_lshlrev_b32 v{z}, 4, v{z}")
    a(f"v_lshrrev_b32 v{vIX}, 4, v{r}")
    a(f"v_cmp_eq_u32 vcc, v{vIX}, v{h}")
    a(f"v_mov_b32 v{h}, 128")
    a(f"v_cndmask_b32 v{z}, v{h}, v{z}, vcc")
    a(f"v_and_b32 v{r}, 4, v{r}")
    a(f"v_cmp_eq_u32 vcc, 0, v{r}")
    a(f"v_cndmask_b32 v{vIX}, v{h}, v{z}, vcc")
    a(f"v_cndmask_b32 v{vIX+1}, v{z}, v{h}, vcc")


def tr_bases(a):
    ln, r, u = vT + 3, vT, vT + 1
    lane_id(a, ln)
    a(f"v_bfe_u32 v{r}, v{ln}, 2, 2")
    a(f"v_lshrrev_b32 v{u}, 5, v{ln}")
    a(f"v_lshl_add_u32 v{u}, v{u}, 3, v{r}")
    a(f"v_lshlrev_b32 v{vTR}, 8, v{u}")
    a(f"s_lshl_b32 s{sA}, s{sFH}, 1")
    a(f"v_xor_b32 v{r}, s{sA}, v{r}")
    a(f"v_lshl_add_u32 v{vTR}, v{r}, 6, v{vTR}")
    a(f"v_and_b32 v{u}, 1, v{ln}")
    a(f"v_lshl_add_u32 v{vTR}, v{u}, 5, v{vTR}")
    a(f"v_bfe_u32 v{u}, v{ln}, 4, 1")
    a(f"v_lshl_add_u32 v{vTR}, v{u}, 4, v{vTR}")
    a(f"v_bfe_u32 v{u}, v{ln}, 1, 1")
    a(f"v_lshl_add_u32 v{vTR}, v{u}, 3, v{vTR}")
    a(f"v_add_u32 v{vTR}, {L_W}, v{vTR}")
    a(f"v_xor_b32 v{vTR+1}, 64, v{vTR}")


def weight_offset(a):
    q, p = vT, vT + 1
    lane_id(a, p)
    a(f"v_lshrrev_b32 v{q}, 4, v{p}")
    a(f"v_and_b32 v{p}, 15, v{p}")
    a(f"v_lshlrev_b32 v{vWO}, 2, v{q}")
    a(f"v_xor_b32 v{vWO}, v{vWO}, v{p}")
    a(f"v_lshlrev_b32 v{vWO}, 4, v{vWO}")
    a(f"v_lshl_add_u32 v{vWO}, v{q}, 8, v{vWO}")
    a(f"s_lshl_b32 s{sA}, s{sW}, 12")
    a(f"v_add_u32 v{vWO}, s{sA}, v{vWO}")


def stage_matrix(a, ptr, size, row, half, tag):
    srd(a, sTA, ptr, size)
    a(f"s_lshl_b32 s{sA}, s{sW}, 12")
    a(f"s_mov_b32 s{sC}, {row * 256}")
    a(f"s_add_u32 m0, s{sA}, {L_W + 32768 * half}")
    for i in range(4):
        a(f"buffer_load_dwordx4 v{vWO}, {sr(sTA,4)}, s{sC} offen offset:{1024*i} lds", tag)


def stage_weights(a, grow, pother, tag):
    stage_matrix(a, pother, 32768, 0, 1, tag)
    stage_matrix(a, pG, 272 * 256, grow, 0, tag)


def put_cells(a):
    lane_id(a, vT)
    a(f"s_lshl_b32 s{sA}, s3, 11")
    a(f"v_lshl_add_u32 v{vT}, v{vT}, 4, s{sA}")
    keep = list(a.vm)
    for h in range(2):
        a(f"buffer_store_dwordx4 {vr(vPUB+4*h,4)}, v{vT}, {sr(sCELL,4)}, 0 offen offset:{1024*h} sc1")
    a.vm = keep


def last_wave_flag(a, cnt, base, sid, tag):
    a(f"v_mov_b32 v{vT}, {cnt}")
    a(f"v_mov_b32 v{vT+1}, 1")
    a("s_mov_b64 exec, 1")
    a(f"ds_add_rtn_u32 v{vT+2}, v{vT}, v{vT+1}", "sg")
    a("s_mov_b64 exec, -1")
    a.wait_lg("sg")
    a(f"v_readfirstlane_b32 s{sA}, v{vT+2}")
    a(f"s_cmp_lg_u32 s{sA}, 7")
    a(f"s_cbranch_scc1 {tag}")
    if base is None:
        put_cells(a)
    else:
        put_flag(a, base, sTAG, sid)
    a.label(tag)


def stage_x(a, snode, tag):
    q, p, b = vT, vT + 1, vT + 2
    a(f"v_mov_b32 v{vBIG}, {BIGOFF}")
    lane_id(a, p)
    a(f"v_lshrrev_b32 v{q}, 4, v{p}")
    a(f"v_and_b32 v{p}, 15, v{p}")
    a(f"s_lshl_b32 s{sA}, s{sFH}, 4")
    a(f"s_add_u32 s{sB}, s{sA}, s{snode}")
    a(f"v_add_lshl_u32 v{b}, v{q}, s{sB}, 8")
    a(f"s_sub_u32 s{sB}, s{sWSZ0}, s{sA}")
    a(f"s_lshl_b32 s{sA}, s{sW}, 12")
    a(f"s_add_u32 m0, s{sA}, {L_X}")
    for i in range(4):
        a(f"v_add_u32 v{vT+3}, {4*i}, v{q}")
        if i >= 2:
            a(f"v_cmp_le_u32 vcc, s{sB}, v{vT+3}")
        a(f"v_xor_b32 v{vT+3}, v{vT+3}, v{p}")
        a(f"v_lshl_add_u32 v{vT+3}, v{vT+3}, 4, v{b}")
        if i >= 2:
            a(f"v_cndmask_b32 v{vT+3}, v{vT+3}, v{vBIG}, vcc")
        a(f"buffer_load_dwordx4 v{vT+3}, {sr(sX,4)}, 0 offen offset:{1024*i} lds", tag)


def read_x(a, swin):
    l, u, b = vT, vT + 1, vT + 2
    lane_id(a, l)
    a(f"v_and_b32 v{u}, 15, v{l}")
    a(f"v_lshrrev_b32 v{b}, 5, v{l}")
    a(f"v_xor_b32 v{u}, v{u}, v{b}")
    a(f"v_lshlrev_b32 v{u}, 4, v{u}")
    a(f"v_and_b32 v{l}, 31, v{l}")
    a(f"v_lshl_add_u32 v{b}, v{l}, 8, v{u}")
    a(f"s_lshl_b32 s{sA}, s{swin}, 13")
    a(f"s_add_u32 s{sA}, s{sA}, {L_X}")
    a(f"v_add_u32 v{b}, s{sA}, v{b}")
    for kk in range(8):
        a(f"v_xor_b32 v{u}, {kk << 5}, v{b}")
        a(f"ds_read_b128 {vr(XF+4*kk,4)}, v{u}", "xf")


def gemm_pair(a, f, d0, d1, w_first, hooks=None):
    hooks = hooks or {}

    def rd(kk):
        for m in range(2):
            for q in range(2):
                a(f"ds_read_b64_tr_b16 {vr(SEL + 8*(kk & 1) + 4*m + 2*q, 2)}, v{vTR+f} "
                  f"offset:{32768*m + (16*kk + 4*q)*256}", f"w{kk}")
    rd(0)
    rd(1)
    for kk in range(8):
        a.wait_lg(f"w{kk}")
        for m, d in enumerate((d0, d1)):
            w = SEL + 8 * (kk & 1) + 4 * m
            x, y = (w, XF + 4*kk) if w_first[m] else (XF + 4*kk, w)
            a(mfma(d, x, y, None if kk == 0 else d))
        if kk + 2 < 8:
            rd(kk + 2)
        if kk in hooks:
            hooks[kk]()


def line_addrs(a, wr, rd, go, sbase, snode, shift, rows, ssub, swsz):
    l, n, h = vT, vT + 1, vT + 2
    lane_id(a, l)
    a(f"v_and_b32 v{n}, {rows - 1}, v{l}")
    a(f"v_lshrrev_b32 v{h}, 5, v{l}")
    a(f"v_lshlrev_b32 v{h}, 1, v{h}")
    a(f"v_and_b32 v{wr}, 7, v{l}")
    a(f"v_xor_b32 v{wr}, v{wr}, v{h}")
    a(f"v_lshlrev_b32 v{wr}, 4, v{wr}")
    a(f"v_lshl_add_u32 v{wr}, v{n}, 7, v{wr}")
    a(f"v_add_u32 v{wr}, s{sbase}, v{wr}")
    for i, c in ((1, 1), (2, 4), (3, 5)):
        a(f"v_xor_b32 v{wr+i}, {c << 4}, v{wr}")
    a(f"v_lshl_add_u32 v{rd}, v{l}, 4, s{sbase}")
    a(f"v_lshrrev_b32 v{n}, 3, v{l}")
    a(f"v_and_b32 v{h}, 7, v{l}")
    a(f"v_xor_b32 v{h}, v{h}, v{n}")
    a(f"v_add_lshl_u32 v{go}, v{n}, s{snode}, {shift}")
    a(f"v_lshl_add_u32 v{go}, v{h}, 4, v{go}")
    a(f"v_add_u32 v{go}, s{ssub}, v{go}")
    a(f"v_add_u32 v{go+1}, {8 << shift}, v{go}")
    a(f"v_add_u32 v{go+2}, {16 << shift}, v{go}")
    a(f"s_sub_u32 s{sA}, s{swsz}, 24")
    a(f"s_lshl_b32 s{sA}, s{sA}, 3")
    a(f"v_cmp_gt_u32 vcc, s{sA}, v{l}")
    a(f"v_add_u32 v{go+3}, {24 << shift}, v{go}")
    a(f"v_mov_b32 v{vBIG}, {BIGOFF}")
    a(f"v_cndmask_b32 v{go+3}, v{vBIG}, v{go+3}, vcc")


T_WR, T_RD, T_LO = MSG, MSG + 4, MSG + 5


def table_setup(a, snode, scratch):
    a(f"s_lshl_b32 s{sC}, s{sW}, 12")
    a(f"s_add_u32 s{sC}, s{sC}, {scratch}")
    line_addrs(a, T_WR, T_RD, vVO, sC, snode, 9, 32, sFT0, sWSZ0)
    a(f"v_mov_b32 v{T_LO}, 0xff7f0000")


def table_part(a, f, pk, before_store=None, hooks=None, hold=None):
    DB, DV = ACC, ACC + 16
    gemm_pair(a, f, DB, DV, (True, True), hooks)
    a(f"s_mov_b32 s{sB}, 0x7f7f0000")
    for j in range(16):
        a(f"v_mul_f32 v{DB+j}, s{sNL}, v{DB+j}")
    for j in range(16):
        a(f"v_rcp_f32 v{DV+j}, v{DV+j}")
    for m in range(8):
        a(f"v_cvt_pk_f16_f32 v{pk+m}, v{DB+2*m}, v{DB+2*m+1}")
    for j in range(16):
        a(f"v_med3_f32 v{DV+j}, v{DV+j}, v{T_LO}, s{sB}")
    for m in range(8):
        a(f"v_cvt_pk_bf16_f32 v{pk+8+m}, v{DV+2*m}, v{DV+2*m+1}")
    for i in range(4):
        a(f"ds_write_b128 v{T_WR+i}, {vr(pk+4*i,4)}")
    buf = hold or ACC
    for i in range(4):
        a(f"ds_read_b128 {vr(buf+4*i,4)}, v{T_RD} offset:{1024*i}", f"lr{i}")
    if before_store:
        before_store()

    def put():
        for i in range(4):
            a.wait_lg(f"lr{i}")
            a(f"buffer_store_dwordx4 {vr(buf+4*i,4)}, v{vVO+i}, {sr(sTAB,4)}, 0 offen offset:{128*f} sc1", "ts")
    if hold:
        return put
    put()


def edge_weights(a):
    for f in range(2):
        a(f"v_add_u32 v{vT+f}, {(L_C - L_W) & 0xffffffff}, v{vTR+f}")
        for q in range(2):
            a(f"ds_read_b64_tr_b16 {vr(CW + 4*f + 2*q, 2)}, v{vT+f} offset:{1024*q}")
    a.wait_all(vm=False)
    for m in range(8):
        a(f"v_lshlrev_b32 v{vT}, 16, v{CW+m}")
        a(f"v_and_b32 v{vT+1}, 0xffff0000, v{CW+m}")
        a(f"v_mul_f32 v{vT}, s{sNL}, v{vT}")
        a(f"v_mul_f32 v{vT+1}, s{sNL}, v{vT+1}")
        a(f"v_cvt_pk_bf16_f32 v{CW+m}, v{vT}, v{vT+1}")


def node_proj(a, hooks0=None, hooks1=None):
    for f in range(2):
        gemm_pair(a, f, ACC + 16 * f, AGG + 16 * f, (False, True), (hooks0, hooks1)[f])
    for f in range(2):
        d = ACC + 16 * f
        for j in range(16):
            a(f"v_mul_f32 v{d+j}, s{sNL}, v{d+j}")
        for m in range(8):
            a(f"v_cvt_pk_f16_f32 v{XA+8*f+m}, v{d+2*m}, v{d+2*m+1}")


def sort_job(a, shadow, stage1, stage2):
    vD, vS, vB, vR, vK, vH, vO, u0, u1 = EF, EF + 4, EF + 8, EF + 12, EF + 16, EF + 24, EF + 40, EF + 41, EF + 42
    vP = EF + 44

    def first_only(fn, tag):
        a(f"s_cmp_lg_u32 s{sHELP}, 0")
        a(f"s_cbranch_scc1 {tag}")
        fn()
        a.label(tag)
    srd(a, sTA, pDST, E * 4)
    srd(a, sTB, pSRC, E * 4)
    a(f"s_mul_i32 s{sA}, s{sJOB}, {CH * 4}")
    a(f"v_lshl_add_u32 v{vO}, v{tid}, 4, s{sA}")
    a(f"v_mov_b32 v{u0}, {BIGOFF}")
    a(f"v_cmp_gt_u32 vcc, {CH // 4}, v{tid}")
    a(f"v_cndmask_b32 v{vO}, v{u0}, v{vO}, vcc")
    a(f"buffer_load_dwordx4 {vr(vD,4)}, v{vO}, {sr(sTA,4)}, 0 offen", "d")
    a(f"buffer_load_dwordx4 {vr(vS,4)}, v{vO}, {sr(sTB,4)}, 0 offen", "s")
    a(f"v_cmp_gt_u32 vcc, {E * 4}, v{vO}")
    a("s_mov_b64 s[0:1], vcc")
    a(f"v_lshlrev_b32 v{u0}, 2, v{tid}")
    a(f"v_mov_b32 v{u1}, 0")
    a(f"ds_write_b32 v{u0}, v{u1} offset:{L_HIST}")
    a("s_barrier")
    a(f"s_cmp_eq_u32 s{sHELP}, 0")
    a("s_cbranch_scc1 S_FIRST")
    a("s_waitcnt vmcnt(0)")
    a("s_branch S_GO")
    a.label("S_FIRST")
    shadow()
    a.label("S_GO")
    wg_sync(a)
    a(f"s_mov_b32 s{sA}, {DIVB}")
    a(f"s_mov_b32 s{sB}, {WOFFPK}")
    a.wait_vm("d")
    stamp(a, 1)
    fstamp(a, 1, 1)
    for k in range(4):
        a(f"v_mul_u32_u24 v{vB+k}, s{sA}, v{vD+k}")
        a(f"v_lshrrev_b32 v{vB+k}, 20, v{vB+k}")
        a(f"v_mul_u32_u24 v{u0}, {NB}, v{vB+k}")
        a(f"v_sub_u32 v{vD+k}, v{vD+k}, v{u0}")
        a(f"v_lshlrev_b32 v{vB+k}, 2, v{vB+k}")
    a(f"v_mov_b32 v{u1}, 1")
    a("s_mov_b64 exec, s[0:1]")
    a("s_cbranch_execz S_NOH")
    for k in range(4):
        a(f"ds_add_rtn_u32 v{vR+k}, v{vB+k}, v{u1} offset:{L_HIST}")
    a.label("S_NOH")
    a("s_mov_b64 exec, -1")
    a.wait_vm("s")
    first_only(stage1, "S_H1")
    u2, u3 = vP + 4, vP + 5
    fill = []
    for k in range(4):
        fill += [f"v_mul_u32_u24 v{u2}, {WINM}, v{vD+k}",
                 f"v_lshrrev_b32 v{u2}, 13, v{u2}",
                 f"v_lshlrev_b32 v{u3}, 3, v{u2}",
                 f"v_bfe_u32 v{u3}, s{sB}, v{u3}, 8",
                 f"v_sub_u32 v{u3}, v{vD+k}, v{u3}",
                 f"v_lshl_or_b32 v{vK+2*k}, v{u3}, 15, v{vS+k}",
                 f"v_mul_u32_u24 v{u3}, {SBIN}, v{vS+k}",
                 f"v_lshrrev_b32 v{u3}, 20, v{u3}",
                 f"v_lshl_add_u32 v{u3}, v{u2}, 5, v{u3}",
                 f"v_lshl_or_b32 v{vK+2*k}, v{u3}, 25, v{vK+2*k}",
                 f"v_lshlrev_b32 v{vK+2*k+1}, 3, v{vO}",
                 f"v_add_u32 v{vK+2*k+1}, {32*k}, v{vK+2*k+1}"]

    def some(n):
        for _ in range(min(n, len(fill))):
            a(fill.pop(0))
    wg_sync(a)
    fstamp(a, 1, 2)
    lane_id(a, u0)
    a(f"v_lshlrev_b32 v{u0}, 4, v{u0}")
    a(f"ds_read_b128 {vr(vH,4)}, v{u0} offset:{L_HIST}")
    some(16)
    a.wait_all(vm=False)
    a(f"v_add_u32 v{vH+4}, v{vH}, v{vH+1}")
    a(f"v_add_u32 v{vH+5}, v{vH+4}, v{vH+2}")
    a(f"v_add_u32 v{vH+6}, v{vH+5}, v{vH+3}")
    a(f"v_mov_b32 v{vH+7}, v{vH+6}")
    for mod in ("row_shr:1 row_mask:0xf bank_mask:0xf bound_ctrl:1", "row_shr:2 row_mask:0xf bank_mask:0xf bound_ctrl:1",
                "row_shr:4 row_mask:0xf bank_mask:0xf bound_ctrl:1", "row_shr:8 row_mask:0xf bank_mask:0xf bound_ctrl:1",
                "row_bcast:15 row_mask:0xa bank_mask:0xf", "row_bcast:31 row_mask:0xc bank_mask:0xf"):
        some(2)
        a(f"v_add_u32_dpp v{vH+7}, v{vH+7}, v{vH+7} {mod}")
    a(f"v_sub_u32 v{vH+8}, v{vH+7}, v{vH+6}")
    a(f"v_add_u32 v{vH+9}, v{vH+8}, v{vH}")
    a(f"v_add_u32 v{vH+10}, v{vH+8}, v{vH+4}")
    a(f"v_add_u32 v{vH+11}, v{vH+8}, v{vH+5}")
    a(f"ds_write_b128 v{u0}, {vr(vH+8,4)} offset:{L_START}")
    for k in range(4):
        a(f"ds_read_b32 v{vP+k}, v{vB+k} offset:{L_START}")
    some(99)
    a(f"s_cmp_eq_u32 s{sHELP}, 0")
    a("s_cbranch_scc1 S_ROW")
    a(f"s_lshl_b32 s{sA}, s2, 2")
    a(f"v_mov_b32 v{u0}, s{sA}")
    a(f"ds_read_b32 v{vH}, v{u0} offset:{L_HIST}")
    a(f"ds_read_b32 v{vH+1}, v{u0} offset:{L_START}")
    a(f"s_lshl_b32 s{sA}, s{sJOB}, 2")
    a(f"v_mov_b32 v{u0}, s{sA}")
    a.wait_all(vm=False)
    a(f"v_lshl_or_b32 v{vH}, v{vH}, 16, v{vH+1}")
    a(f"ds_write_b32 v{u0}, v{vH} offset:{L_HC}")
    a("s_branch S_NOC")
    a.label("S_ROW")
    a(f"v_lshrrev_b32 v{u0}, 1, v{u0}")
    for h in range(2):
        a(f"ds_read_b64 {vr(vH+4*h,2)}, v{u0} offset:{L_HIST + 512*h}")
        a(f"ds_read_b64 {vr(vH+4*h+2,2)}, v{u0} offset:{L_START + 512*h}")
    a.wait_all(vm=False)
    for h in range(2):
        for c in range(2):
            a(f"v_mov_b32 v{vPUB+4*h+2*c}, s{sTAG}")
            a(f"v_lshl_or_b32 v{vPUB+4*h+2*c+1}, v{vH+4*h+c}, 16, v{vH+4*h+2+c}")
    a.label("S_NOC")
    a.wait_all(vm=False)
    for k in range(4):
        a(f"v_add_lshl_u32 v{vP+k}, v{vP+k}, v{vR+k}, 3")
    a(f"s_cmp_eq_u32 s{sHELP}, 0")
    a("s_cbranch_scc1 S_PUB")
    a(f"s_mul_i32 s{sA}, s{sJOB}, {RSTR}")
    a(f"s_lshl_b32 s{sB}, s2, 2")
    for k in range(4):
        a(f"v_cmp_eq_u32 vcc, s{sB}, v{vB+k}")
        a(f"v_add_u32 v{vP+k}, s{sA}, v{vP+k}")
        a("s_and_b64 exec, vcc, s[0:1]")
        a(f"s_cbranch_execz S_P{k}")
        a(f"buffer_store_dwordx2 {vr(vK+2*k,2)}, v{vP+k}, {sr(sREC,4)}, 0 offen sc1")
        a.label(f"S_P{k}")
        a("s_mov_b64 exec, -1")
    a("s_waitcnt vmcnt(0)")
    a("s_barrier")
    a("s_branch K_HELP1N")
    a.label("S_PUB")
    a("s_mov_b64 exec, s[0:1]")
    a("s_cbranch_execz S_NOS")
    for k in range(4):
        a(f"ds_write_b64 v{vP+k}, {vr(vK+2*k,2)} offset:{L_TMP}")
    a.label("S_NOS")
    a("s_mov_b64 exec, -1")
    stage2()
    wg_sync(a)
    fstamp(a, 1, 3)
    a(f"v_lshlrev_b32 v{u0}, 4, v{tid}")
    a(f"ds_read_b128 {vr(vD,4)}, v{u0} offset:{L_TMP}", "r0")
    a(f"ds_read_b128 {vr(vS,4)}, v{u0} offset:{L_TMP + 8192}", "r1")
    a(f"s_mul_i32 s{sA}, s{sJOB}, {RSTR}")
    a(f"v_add_u32 v{u0}, s{sA}, v{u0}")
    a(f"v_add_u32 v{u1}, 8192, v{u0}")
    a(f"v_mov_b32 v{u2}, {BIGOFF}")
    a(f"v_cmp_gt_u32 vcc, {(RSTR - 8192) // 16}, v{tid}")
    a(f"v_cndmask_b32 v{u1}, v{u2}, v{u1}, vcc")
    a.wait_lg("r0")
    a(f"buffer_store_dwordx4 {vr(vD,4)}, v{u0}, {sr(sREC,4)}, 0 offen sc1")
    a.wait_lg("r1")
    a(f"buffer_store_dwordx4 {vr(vS,4)}, v{u1}, {sr(sREC,4)}, 0 offen sc1")
    a(f"s_lshr_b32 s{sA}, s2, 5")
    a(f"s_mov_b64 s[{sN2}:{sN3}], 0")
    for k in range(4):
        a(f"v_lshrrev_b32 v{u2}, 7, v{vB+k}")
        a(f"v_bfe_u32 v{u3}, v{vK+2*k}, 25, 5")
        a(f"v_cmp_eq_u32 vcc, s{sA}, v{u2}")
        a(f"v_cmp_gt_u32 s[{sN0}:{sN1}], {EARLY_BINS}, v{u3}")
        a(f"s_and_b64 vcc, vcc, s[{sN0}:{sN1}]")
        a(f"s_or_b64 s[{sN2}:{sN3}], s[{sN2}:{sN3}], vcc")
    a(f"s_and_b64 s[{sN2}:{sN3}], s[{sN2}:{sN3}], s[0:1]")
    fstamp(a, 1, 4)
    a("s_waitcnt vmcnt(2)")
    a("s_barrier")
    fstamp(a, 1, 5)


def split_cell(a, src):
    a(f"v_lshrrev_b32 v{vT}, 16, v{src}")
    a(f"v_add_u32 v{vT+1}, 1, v{vT}")
    a(f"v_lshrrev_b32 v{vT+1}, 1, v{vT+1}")
    a(f"v_sub_u32 v{vT}, v{vT}, v{vT+1}")
    a(f"v_and_b32 v{vCELL}, 0xffff, v{src}")
    a(f"v_and_b32 v{vT+2}, 1, v{tid}")
    a(f"v_cmp_eq_u32 vcc, 1, v{vT+2}")
    a(f"v_mad_u32_u24 v{vCELL}, v{vT+2}, v{vT+1}, v{vCELL}")
    a(f"v_cndmask_b32 v{vT}, v{vT+1}, v{vT}, vcc")
    a(f"v_lshl_or_b32 v{vCELL}, v{vT}, 16, v{vCELL}")


def load_records(a, tag, slow=False):
    a(f"v_lshrrev_b32 v{vT+2}, 16, v{vCELL}")
    a(f"v_min_u32 v{vN}, s{sR}, v{vT+2}")
    if slow:
        a(f"s_lshr_b32 s{sA}, s{sPAR}, 1")
        a(f"v_xor_b32 v{vT}, s{sPAR}, v{tid}")
        a(f"v_and_b32 v{vT}, s{sA}, v{vT}")
        a(f"v_cmp_eq_u32 vcc, 0, v{vT}")
        a(f"v_cndmask_b32 v{vN}, 0, v{vN}, vcc")
    a(f"v_cmp_lt_u32 vcc, v{vN}, v{vT+2}")
    a(f"s_cmp_lg_u64 vcc, 0")
    a(f"s_cselect_b32 s{sMORE}, 1, 0")
    a(f"v_and_b32 v{vT}, 0xffff, v{vCELL}")
    a(f"v_lshrrev_b32 v{vT+1}, 1, v{tid}")
    a(f"v_mul_u32_u24 v{vT+1}, {RSTR}, v{vT+1}")
    a(f"v_lshl_add_u32 v{vT}, v{vT}, 3, v{vT+1}")
    for i in range(RMAX // 2):
        a(f"v_cmp_lt_u32 vcc, {2*i}, v{vN}")
        a("s_mov_b64 exec, vcc")
        a(f"s_cbranch_execz {tag}")
        a(f"buffer_load_dwordx4 {vr(EF+4*i,4)}, v{vT}, {sr(sREC,4)}, 0 offen offset:{16*i}")
    a.label(tag)
    a("s_mov_b64 exec, -1")


def e_load(a, i):
    a(f"buffer_load_dwordx4 {vr(EF+4*i,4)}, v{FR+i}, {sr(sEA,4)}, 0 offen", f"eu{i}")


def e_load_late(a, t):
    a(f"buffer_load_dwordx4 {vr(EF+4*t,4)}, v{EF+4*t}, {sr(sEA,4)}, 0 offen", f"e{t}")


def exchange_addrs(a, sw):
    lane_id(a, vT)
    a(f"s_mul_i32 s{sA}, s{sw}, {RW}")
    a(f"s_add_u32 s{sA}, s{sA}, {L_RING + RW - 4096}")
    a(f"s_lshl_b32 s{sB}, s{sw}, 10")
    a(f"s_add_u32 s{sB}, s{sB}, {L_XS}")
    a(f"v_lshl_add_u32 v{vT+1}, v{vT}, 4, s{sB}")
    a(f"v_lshl_add_u32 v{vT}, v{vT}, 4, s{sA}")
    assert NUP <= 10 and AH < NS
    return [(vT, 1024 * i) if i < 4 else (vT + 1, 0) for i in range(NUP // 2)]


def e_exchange_write(a):
    a(f"s_xor_b32 s{sC}, s{sW}, 1")
    for i, (v, off) in enumerate(exchange_addrs(a, sC)):
        a(f"ds_write_b128 v{v}, {vr(EF+4*i,4)} offset:{off}")


def e_exchange_read(a):
    for i, (v, off) in enumerate(exchange_addrs(a, sW)):
        a(f"ds_read_b128 {vr(EF+2*NUP+4*i,4)}, v{v} offset:{off}")
    a.wait_all(vm=False)
    a(f"s_cmp_eq_u32 s{sFH}, 0")
    a("s_cbranch_scc1 K_NOSWAP")
    for j in range(2 * NUP):
        a(f"v_swap_b32 v{EF+j}, v{EF+2*NUP+j}")
    a.label("K_NOSWAP")


def e_reg(t):
    return EF + 2 * NUP * (t & 1) + 4 * (t >> 1) if t < NUP else EF + 4 * t


def window_regs(a, swin, snode, swsz):
    a(f"s_lshl_b32 s{sA}, s{swin}, 3")
    a(f"s_lshr_b32 s{sC}, {WOFFPK}, s{sA}")
    a(f"s_and_b32 s{sC}, s{sC}, 0xff")
    a(f"s_lshr_b32 s{swsz}, {WSZ[0] | WSZ[1] << 8 | WSZ[2] << 16 | WSZ[3] << 24}, s{sA}")
    a(f"s_and_b32 s{swsz}, s{swsz}, 0xff")
    a(f"s_mul_i32 s{snode}, s2, {NB}")
    a(f"s_add_u32 s{snode}, s{snode}, s{sC}")


def pick_window(a):
    k = [sTA, sTA + 1, sTA + 2, sTA + 3]
    for w in range(4):
        a(f"s_lshl_b32 s{k[w]}, s{sN0+w}, 2")
        a(f"s_or_b32 s{k[w]}, s{k[w]}, {w}")
    for x, y in ((0, 1), (2, 3), (0, 2), (1, 3), (1, 2)):
        a(f"s_max_u32 s{sA}, s{k[x]}, s{k[y]}")
        a(f"s_min_u32 s{k[y]}, s{k[x]}, s{k[y]}")
        a(f"s_mov_b32 s{k[x]}, s{sA}")
    a(f"s_cmp_eq_u32 s{sWIN0}, 1")
    a(f"s_cselect_b32 s{sA}, s{k[1]}, s{k[0]}")
    a(f"s_cmp_eq_u32 s{sWIN0}, 2")
    a(f"s_cselect_b32 s{sA}, s{k[3]}, s{sA}")
    a(f"s_cmp_eq_u32 s{sWIN0}, 3")
    a(f"s_cselect_b32 s{sA}, s{k[2]}, s{sA}")
    a(f"s_and_b32 s{sWIN}, s{sA}, 3")
    a(f"s_cmp_eq_u32 s{sWIN0}, 1")
    a(f"s_cselect_b32 s{sA}, s{k[2]}, s{k[3]}")
    a(f"s_cmp_eq_u32 s{sWIN0}, 2")
    a(f"s_cselect_b32 s{sA}, s{k[0]}, s{sA}")
    a(f"s_cmp_eq_u32 s{sWIN0}, 3")
    a(f"s_cselect_b32 s{sA}, s{k[1]}, s{sA}")
    a(f"s_lshr_b32 s{sSTEP}, s{sA}, 2")
    a(f"s_mul_i32 s{sSTEP}, s{sSTEP}, s{sSGN}")


def list_addrs(a):
    ln, u = vT, vT + 1
    lane_id(a, ln)
    a(f"s_mul_i32 s{sA}, s{sWIN}, {SEL_W}")
    a(f"s_add_u32 s{sA}, s{sA}, {L_SEL}")
    a(f"v_and_b32 v{u}, 31, v{ln}")
    a(f"v_lshl_add_u32 v{vSA}, v{u}, 2, s{sA}")
    a(f"v_lshrrev_b32 v{u}, 5, v{ln}")
    a(f"v_add_u32 v{vSA}, v{u}, v{vSA}")
    a(f"s_mul_i32 s{sA}, s{sWIN}, {AGM_W}")
    a(f"s_add_u32 s{sA}, s{sA}, {L_AGM}")
    a(f"v_lshl_add_u32 v{vGA}, v{ln}, 2, s{sA}")
    a(f"s_mul_i32 s{sA}, s{sWIN}, {SRC_W}")
    a(f"s_add_u32 s{sA}, s{sA}, {L_SRC}")
    a(f"v_lshrrev_b32 v{u}, 3, v{ln}")
    a(f"v_lshl_add_u32 v{vIA}, v{u}, 3, s{sA}")


def e_prefetch(a, k, tag):
    a(f"v_bfe_u32 v{vT}, v{EF+2*k}, 25, 5")
    a(f"v_cmp_gt_u32 vcc, {EARLY_BINS}, v{vT}")
    a(f"v_cmp_lt_u32 s[0:1], {k}, v{vN}")
    a("s_and_b64 vcc, vcc, s[0:1]")
    a("s_and_b32 vcc_lo, vcc_lo, 0x55555555")
    a("s_and_b32 vcc_hi, vcc_hi, 0x55555555")
    a("s_mov_b64 exec, vcc")
    a(f"s_cbranch_execz {tag}")
    a(f"buffer_load_dword v{FR+15}, v{EF+2*k+1}, {sr(sEA,4)}, 0 offen")
    a.label(tag)
    a("s_mov_b64 exec, -1")


def count_pass(a, tag, prefetch):
    RK = EF + 2 * RMAX
    one = vT + 2
    a(f"v_mov_b32 v{one}, 8")
    a(f"s_cmp_eq_u32 s{sMORE}, 0")
    a(f"s_cbranch_scc1 {tag}_NM")
    a(f"v_mov_b32 v{vT}, {L_MORE}")
    a(f"ds_write_b32 v{vT}, v{one}")
    a.label(f"{tag}_NM")
    for k in range(RMAX):
        a(f"v_cmp_lt_u32 vcc, {k}, v{vN}")
        a(f"v_lshrrev_b32 v{vT + (k & 1)}, 23, v{EF+2*k}")
        a("s_mov_b64 exec, vcc")
        a(f"s_cbranch_execz {tag}_BD")
        a(f"ds_add_rtn_u32 v{RK+k}, v{vT + (k & 1)}, v{one} offset:{L_BIN}")
    a.label(f"{tag}_BD")
    a("s_mov_b64 exec, -1")
    if prefetch:
        e_prefetch(a, 0, f"{tag}_PF0")


def build(a):
    RK = EF + 2 * RMAX
    count_pass(a, "B", False)
    a.label("K_COUNTED")
    wg_sync(a)
    fstamp(a, 2, 6)

    ln = vT + 3
    lane_id(a, ln)
    a(f"v_lshlrev_b32 v{vT}, 3, v{ln}")
    a(f"ds_read_b64 {vr(MSG,2)}, v{vT} offset:{L_BIN}")
    a(f"v_mov_b32 v{MSG+2}, {L_MORE}")
    a(f"ds_read_b32 v{MSG+3}, v{MSG+2} offset:{L_FB1 - L_MORE}")
    a(f"ds_read_b32 v{MSG+2}, v{MSG+2}")
    a(f"v_lshrrev_b32 v{ln}, 4, v{ln}")
    a(f"v_lshlrev_b32 v{ln}, 12, v{ln}")
    a(f"v_add_u32 v{ln}, {L_TMP}, v{ln}")
    a.wait_all(vm=False)
    a(f"v_readfirstlane_b32 s{sA}, v{MSG+3}")
    a(f"v_add_u32 v{vT+1}, v{MSG}, v{MSG+1}")
    a(f"v_mov_b32 v{vT+2}, v{vT+1}")
    a(f"s_cmp_lg_u32 s{sA}, 0")
    a("s_cbranch_scc1 K_HELP1")
    scan16(a, vT + 2)
    for w in range(4):
        a(f"v_readlane_b32 s{sN0+w}, v{vT+2}, {16*w + 15}")
    a(f"v_readfirstlane_b32 s{sMORE}, v{MSG+2}")
    a(f"v_sub_u32 v{vT+2}, v{vT+2}, v{vT+1}")
    a(f"v_add_u32 v{MSG+4}, v{vT+2}, v{ln}")
    a(f"v_add_u32 v{MSG+5}, v{MSG+4}, v{MSG}")
    a(f"ds_write_b64 v{vT}, {vr(MSG+4,2)} offset:{L_BST}")
    a(f"s_max_u32 s{sA}, s{sN0}, s{sN1}")
    a(f"s_max_u32 s{sB}, s{sN2}, s{sN3}")
    a(f"s_max_u32 s{sA}, s{sA}, s{sB}")
    a(f"s_cmp_gt_u32 s{sA}, {8 * 32 * TCAP}")
    a(f"s_cbranch_scc1 K_OVF")
    def counts():
        for w in range(4):
            a(f"s_lshr_b32 s{sN0+w}, s{sN0+w}, 3")
        a(f"s_cmp_lg_u32 s{sROUND}, 0")
        a("s_cbranch_scc1 B_KEEP")
        pick_window(a)
        a.label("B_KEEP")
        a(f"s_cmp_eq_u32 s{sWIN}, 1")
        a(f"s_cselect_b32 s{sNW}, s{sN1}, s{sN0}")
        a(f"s_cmp_eq_u32 s{sWIN}, 2")
        a(f"s_cselect_b32 s{sNW}, s{sN2}, s{sNW}")
        a(f"s_cmp_eq_u32 s{sWIN}, 3")
        a(f"s_cselect_b32 s{sNW}, s{sN3}, s{sNW}")
        a(f"s_add_u32 s{sNT}, s{sNW}, 31")
        a(f"s_lshr_b32 s{sNT}, s{sNT}, 5")

    for g in range(RMAX // 4):
        a(f"v_cmp_lt_u32 vcc, {4*g}, v{vN}")
        for k in range(4 * g, 4 * g + 4):
            a(f"v_lshrrev_b32 v{FR+k}, 23, v{EF + 2*k}")
        a("s_mov_b64 exec, vcc")
        a(f"s_cbranch_execz B_CR")
        for k in range(4 * g, 4 * g + 4):
            a(f"ds_read_b32 v{FR+k}, v{FR+k} offset:{L_BST}")
    a.label("B_CR")
    a("s_mov_b64 exec, -1")
    counts()
    a.wait_all(vm=False)
    for k in range(RMAX):
        a(f"v_cmp_lt_u32 vcc, {k}, v{vN}")
        a(f"v_add_u32 v{FR+k}, v{FR+k}, v{RK+k}")
        a("s_mov_b64 exec, vcc")
        a(f"s_cbranch_execz B_CD")
        a(f"ds_write_b64 v{FR+k}, {vr(EF+2*k,2)}")
    a.label("B_CD")
    a("s_mov_b64 exec, -1")
    fstamp(a, 2, 8)
    a(f"v_add_u32 v{vCELL}, v{vCELL}, v{vN}")
    a(f"v_lshlrev_b32 v{vT}, 16, v{vN}")
    a(f"v_sub_u32 v{vCELL}, v{vCELL}, v{vT}")
    wg_sync(a)
    a.vm = []
    stamp(a, 5)
    fstamp(a, 2, 9)
    fstamp(a, 3, 1)
    a(f"s_cmp_lg_u32 s{sROUND}, 0")
    a("s_cbranch_scc1 B_NOST")
    stage_weights(a, 0, pU, "st2")
    a.label("B_NOST")
    a.vm = []
    ln = vT
    lane_id(a, ln)
    a(f"v_and_b32 v{vT+1}, 31, v{ln}")
    a(f"s_lshl_b32 s{sA}, s{sWIN}, 12")
    a(f"s_add_u32 s{sA}, s{sA}, {L_TMP + 4}")
    a(f"v_lshl_add_u32 v{vT+2}, v{vT+1}, 3, s{sA}")
    a(f"s_lshl_b32 s{sA}, s{sFH}, 8")
    a(f"v_add_u32 v{vT+3}, s{sA}, v{vT+2}")
    for i in range(NUP // 2):
        a(f"ds_read_b32 v{FR+i}, v{vT+3} offset:{512*i}", f"ei{i}")
    for t in range(NUP, TCAP):
        a(f"ds_read_b32 v{EF+4*t}, v{vT+2} offset:{256*t}", f"el{t}")
    a(f"v_lshrrev_b32 v{ln}, 5, v{ln}")
    a(f"v_lshlrev_b32 v{ln}, 4, v{ln}")
    a(f"v_sub_u32 v{vT+1}, s{sNW}, v{vT+1}")
    a(f"s_lshl_b32 s{sA}, s{sFH}, 5")
    a(f"v_subrev_u32 v{vT+3}, s{sA}, v{vT+1}")
    a(f"v_mov_b32 v{vT+2}, {BIGOFF}")
    for i in range(NUP // 2):
        a.wait_lg(f"ei{i}")
        a(f"v_cmp_lt_i32 vcc, {64*i}, v{vT+3}")
        a(f"v_add_u32 v{FR+i}, v{FR+i}, v{ln}")
        a(f"v_cndmask_b32 v{FR+i}, v{vT+2}, v{FR+i}, vcc")
        if i == 0:
            a("s_barrier")
        if i < E0:
            e_load(a, i)
    for t in range(NUP, TCAP):
        a.wait_lg(f"el{t}")
        a(f"v_cmp_lt_i32 vcc, {32*t}, v{vT+1}")
        a(f"v_add_u32 v{EF+4*t}, v{EF+4*t}, v{ln}")
        a(f"v_cndmask_b32 v{EF+4*t}, v{vT+2}, v{EF+4*t}, vcc")


def list_fields(a, tid, tag):
    c0, c1, c2, kv = vT + 1, vT + 2, vT + 3, vIX
    a(f"v_lshlrev_b32 v{c0}, 3, v{tid}")
    for j in range(4):
        a(f"ds_read_b32 v{MSG+j}, v{c0} offset:{L_TMP + 4096*j}")
    a(f"v_and_b32 v{c0}, 7, v{tid}")
    a(f"v_lshlrev_b32 v{c0}, 3, v{c0}")
    a(f"v_bfe_u32 v{c1}, v{tid}, 3, 2")
    a(f"v_lshl_add_u32 v{c0}, v{c1}, 1, v{c0}")
    a(f"v_lshrrev_b32 v{c1}, 5, v{tid}")
    a(f"v_lshl_add_u32 v{c0}, v{c1}, 6, v{c0}")
    a(f"v_lshlrev_b32 v{c1}, 8, v{c1}")
    a(f"v_bfe_u32 v{c2}, v{tid}, 2, 1")
    a(f"v_lshl_add_u32 v{c1}, v{c2}, 7, v{c1}")
    a(f"v_bfe_u32 v{c2}, v{tid}, 3, 1")
    a(f"v_and_b32 v{kv}, 3, v{tid}")
    a(f"v_lshl_add_u32 v{kv}, v{c2}, 2, v{kv}")
    a(f"v_or_b32 v{kv}, 0x0c0c0c00, v{kv}")
    a(f"v_mov_b32 v{kv+1}, {INC[0] | INC[1] << 8 | INC[2] << 16 | INC[3] << 24}")
    a(f"s_mov_b32 s{sA}, {INC[4] | INC[5] << 8 | INC[6] << 16 | INC[7] << 24}")
    a(f"v_perm_b32 v{kv}, s{sA}, v{kv+1}, v{kv}")
    a(f"v_and_b32 v{c2}, 16, v{tid}")
    a(f"v_add_u32 v{c2}, 4, v{c2}")
    a(f"v_lshlrev_b32 v{kv}, v{c2}, v{kv}")
    a(f"v_lshlrev_b32 v{c2}, 2, v{tid}")
    a.wait_all(vm=False)
    for w in range(4):
        a(f"v_cmp_gt_u32 vcc, s{sN0+w}, v{tid}")
        a("s_mov_b64 exec, vcc")
        a(f"s_cbranch_execz {tag}{w}")
        r, d, u = MSG + w, MSG + 4, MSG + 5
        a(f"v_and_b32 v{u}, 0x7fff, v{r}")
        a(f"ds_write_b16 v{c0}, v{u} offset:{L_SRC + w*SRC_W}")
        a(f"v_bfe_u32 v{d}, v{r}, 15, 5")
        a(f"v_lshl_add_u32 v{u}, v{d}, 2, v{c1}")
        a(f"ds_add_u32 v{u}, v{kv} offset:{L_AGM + w*AGM_W}")
        a(f"v_and_b32 v{u}, 3, v{d}")
        a(f"v_mul_u32_u24 v{u}, 0x5555, v{u}")
        a(f"ds_write_b16 v{c2}, v{u} offset:{L_SEL + w*SEL_W + 2}")
        a(f"v_lshrrev_b32 v{u}, 4, v{d}")
        a(f"v_add_u32 v{u}, v{u}, v{c2}")
        a(f"v_and_b32 v{r}, 8, v{d}")
        a(f"v_lshlrev_b32 v{r}, 2, v{r}")
        a(f"v_and_b32 v{d}, 4, v{d}")
        a(f"v_lshl_or_b32 v{r}, v{d}, 4, v{r}")
        a(f"ds_write_b8 v{u}, v{r} offset:{L_SEL + w*SEL_W}")
        a.label(f"{tag}{w}")
        a("s_mov_b64 exec, -1")
    a.wait_all(vm=False)


def valu_stream(base):
    g, h = base, base + 16
    steps = []
    for j in range(20):
        st = []
        if j < 16:
            st.append(f"v_exp_f32 v{g+j}, v{g+j}")
        if 0 <= j - 1 < 16:
            st.append(f"v_fma_f32 v{g+j-1}, v{g+j-1}, v{h+j-1}, v{h+j-1}")
        if 0 <= j - 2 < 16:
            st.append(f"v_rcp_f32 v{g+j-2}, v{g+j-2}")
        if j - 3 >= 1 and (j - 3) % 2 == 1 and j - 3 < 16:
            m = (j - 4) // 2
            st.append(f"v_cvt_pk_bf16_f32 v{MSG+m}, v{g+2*m}, v{g+2*m+1}")
        steps.append(st)
    return steps


def dma_ops(v):
    st = v % NS
    return [(f"s_add_u32 m0, s{sRING}, {st*4096 + i*1024}",
             f"buffer_load_dwordx4 v{vVO+i}, {sr(sTAB,4)}, s{sFT1 if v & 1 else sFT0} offen lds", f"d{v}")
            for i in range(4)]


def issue_dma(a, v):
    ops = dma_ops(v)
    a(ops[0][0])
    for i, (m0w, ld, tg) in enumerate(ops):
        a("s_nop 0")
        a(ld, tg)
        if i + 1 < 4:
            a(ops[i + 1][0])


def voffs(a):
    for i in range(4):
        sel = " op_sel:[1,0,0,0]" if i & 1 else ""
        a(f"v_mad_u32_u16 v{vVO+i}, v{vIX + (i >> 1)}, s{s512}, v{vLC + (i & 1)}{sel}")


def frag_reads(v):
    return [(f"ds_read_b128 {vr(FR+4*i,4)}, v{vFA+i} offset:{(v % NS)*4096}", f"f{v}") for i in range(4)]


def main_mfmas(v):
    t, f = v >> 1, v & 1
    g = ACC + 32 * (v & 1)
    h = g + 16
    return [mfma(g, FR, ID, None, "f16"), mfma(h, FR + 8, ID, None), mfma(g, FR + 4, ID + 4, g, "f16"), mfma(h, FR + 12, ID + 4, h),
            mfma(g, e_reg(t), CW + 4*f, g),
            f"v_smfmac_f32_32x32x32_f16 {vr(g, 16)}, {vr(SEL, 4)}, {vr(XA + 8*f, 8)}, v{SEL + 4}"]


def agg_mfmas(v):
    d = AGG + 16 * (v & 1)
    return [mfma(d, MSG, AOH, d), mfma(d, MSG + 4, AOH + 4, d)]


def rd_idx(a, t):
    a(f"ds_read_b64 {vr(vIX,2)}, v{vIA} offset:{64*t}", f"ix{t}")


def rd_sel_addr(a, t):
    a(f"ds_read_u8 v{vS0}, v{vSA} offset:{128*t}", f"sa{t}")


def rd_sel(a, t):
    a.wait_lg(f"sa{t}")
    a(f"ds_read_b128 {vr(SEL,4)}, v{vS0} offset:{L_LUT1}", f"s{t}")
    a(f"ds_read_u16 v{SEL+4}, v{vSI} offset:{128*t}", f"s{t}")


def rd_agg_addr(a, t):
    a(f"ds_read_u16 v{vG0}, v{vGA} offset:{256*t}", f"ga{t}")
    a(f"ds_read_u16 v{vG0+1}, v{vGA} offset:{256*t + 2}", f"ga{t}")


def rd_agg(a, t):
    a.wait_lg(f"ga{t}")
    a(f"ds_read_b128 {vr(AOH,4)}, v{vG0} offset:{L_LUT2}", f"g{t}")
    a(f"ds_read_b128 {vr(AOH+4,4)}, v{vG0+1} offset:{L_LUT2}", f"g{t}")


def slot(a, u):
    t, f = u >> 1, u & 1
    pre = {j: [] for j in range(20)}
    post = {j: [] for j in range(20)}
    a.wait_all(vm=False)
    if f == 0 and t > 0:
        a(f"v_readfirstlane_b32 s{sA}, v{vT+2}")
        post[0].append(lambda: (a(f"s_mul_i32 s{sA}, s{sA}, s{sSGN}"), a("s_setprio 0"), a(f"s_cmp_ge_i32 s{sA}, 0"),
                                a(f"s_cbranch_scc1 F{u}"), a("s_setprio 1"), a.label(f"F{u}")))
    g = agg_mfmas(u - 1) if u > 0 else [None, None]
    m = main_mfmas(u + 1)
    order = [m[0], m[1], g[0], m[2], m[3], g[1], m[4], m[5], None]
    for i, x in enumerate(order):
        if x:
            pre[i].append(lambda x=x: a(x))
    if f == 0 and NUP <= t + ED < TCAP:
        post[9].append(lambda: e_load_late(a, t + ED))
    if f == 1:
        pre[6].insert(0, lambda: a.wait_vm(f"e{t + 1}"))
    pre[L0].append(lambda: a.wait_vm(f"d{u + 2}"))
    for i, (rd, tg) in enumerate(frag_reads(u + 2)):
        pre[L0 + i].append(lambda rd=rd, tg=tg: a(rd, tg))
    pre[D0].append(lambda: a.wait_lg(f"ix{(u + 2 + AH) // 2}"))
    nv = u + 2 + AH
    if nv % 2 == 0:
        pre[0].append(lambda: rd_idx(a, nv // 2))
        pre[D0].append(lambda: voffs(a))
    for i, (m0w, ld, tg) in enumerate(dma_ops(nv)):
        pre[D0 + i].append(lambda m0w=m0w: a(m0w))
        post[D0 + i].append(lambda ld=ld, tg=tg: a(ld, tg))
    if f == 0:
        pre[1].append(lambda: rd_sel_addr(a, t + 1))
        post[D0].append(lambda: rd_agg(a, t))
        post[D0 + 1].append(lambda: rd_sel(a, t + 1))
    else:
        pre[2].append(lambda: rd_agg_addr(a, t + 1))
        post[D0 + 1].append(lambda: a(f"ds_add_rtn_u32 v{vT+2}, v{vT}, v{vT+1}"))
    for j, st in enumerate(valu_stream(ACC + 32 * f)):
        for fn in pre[j]:
            fn()
        for s in st:
            a(s)
        for fn in post[j]:
            fn()


def gen():
    a = Asm()
    a(f"s_cmp_ge_u32 s2, {NWG}")
    a("s_cbranch_scc1 K_END")
    stamp(a, 0)
    a(f"s_load_dwordx2 s[{pWS}:{pWS+1}], s[0:1], 72")
    a(f"s_load_dwordx4 s[{pSRC}:{pSRC+3}], s[0:1], 16")
    a("s_load_dwordx4 s[4:7], s[0:1], 0")
    a(f"s_load_dwordx4 s[{pU}:{pU+3}], s[0:1], 32")
    a(f"s_load_dwordx2 s[{pG}:{pG+1}], s[0:1], 48")
    a(f"s_load_dwordx2 s[{sOUT}:{sOUT+1}], s[0:1], 56")
    a("s_mov_b32 s3, s2")
    a(f"s_and_b32 s{sA}, s2, 7")
    a(f"s_lshl_b32 s{sA}, s{sA}, 5")
    a("s_lshr_b32 s2, s2, 3")
    a(f"s_add_u32 s2, s2, s{sA}")
    a(f"v_mov_b32 v{tid}, v0")
    a(f"v_lshrrev_b32 v{vT}, 6, v0")
    a(f"s_mov_b32 s{sJOB}, s3")
    a(f"v_readfirstlane_b32 s{sW}, v{vT}")
    a(f"s_mov_b32 s{sHELP}, 0")
    a(f"s_mov_b32 s{sPAR}, 0")
    a(f"s_mov_b32 s{sROUND}, 0")
    a(f"s_mov_b32 s{sR}, {RMAX}")
    a(f"s_mov_b32 s{s512}, 512")
    a(f"s_mov_b32 s{sNL}, {NL2E}")
    a(f"s_lshr_b32 s{sWIN0}, s{sW}, 1")
    a(f"s_mov_b32 s{sWIN}, s{sWIN0}")
    a(f"s_and_b32 s{sFH}, s{sW}, 1")
    a(f"s_mul_i32 s{sRING}, s{sW}, {RW}")
    a(f"s_add_u32 s{sRING}, s{sRING}, {L_RING}")
    window_regs(a, sWIN0, sNODE0, sWSZ0)
    a(f"s_lshl_b32 s{sFT0}, s{sFH}, 8")
    a(f"s_add_u32 s{sFT1}, s{sFT0}, 128")
    a(f"s_cmp_ge_u32 s{sW}, 4")
    a(f"s_cselect_b32 s{sSGN}, -1, 1")
    a.wait_all(vm=False)
    a.label("K_SORT")

    def stage_v():
        stage_matrix(a, pV, 32768, 0, 1, "st")

    def shadow():
        keep = list(a.vm)
        lane_id(a, vT)
        a(f"s_lshr_b32 s{sA}, s3, 3")
        for w, ptr, size, n in ((5, pG, 272 * 256, 17), (6, pV, 32768, 8), (7, pU, 32768, 8)):
            a(f"s_cmp_lg_u32 s{sW}, {w}")
            a(f"s_cbranch_scc1 K_WP{w}")
            srd(a, sTA, ptr, size)
            a(f"s_mul_i32 s{sC}, s{sA}, {n}")
            a(f"v_add_lshl_u32 v{vT+1}, v{vT}, s{sC}, 7")
            a(f"s_mov_b64 exec, {(1 << n) - 1}")
            a(f"buffer_load_dword v{AGG+31}, v{vT+1}, {sr(sTA,4)}, 0 offen")
            a("s_mov_b64 exec, -1")
            a.label(f"K_WP{w}")
        a.vm = keep
        srd(a, sX, 4, N * 256)
        stage_x(a, sNODE0, "st")
        weight_offset(a)
        srd(a, sEA, 6, E * 32)
        srd(a, sOUT, sOUT, N * 256)
        srd(a, sCELL, pWS, CELL_SZ, CELL_OFF)
        srd(a, sREC, pWS, REC_SZ, REC_OFF)
        a(f"s_add_u32 s{sFLG}, s{pWS}, {FLG_OFF + F_TAG}")
        a(f"s_addc_u32 s{sFLG+1}, s{pWS+1}, 0")
        a(f"s_load_dword s{sTAG}, s[{sFLG}:{sFLG+1}], 0")
        srd(a, sTAB, pWS, TAB_SZ, TAB_OFF)
        init_luts(a)
        lane_consts(a)
        tr_bases(a)
        a.wait_all(vm=False)
        a(f"s_add_u32 s{sTAG}, s{sTAG}, 1")
        srd(a, sFLG, pWS, FLG_SZ, FLG_OFF)

    def stage2():
        stage_matrix(a, pG, 272 * 256, 128, 0, "st")
        a(f"s_cmp_ge_u32 s{sW}, 4")
        a("s_cbranch_scc1 K_NOC")
        a(f"s_mul_i32 s{sA}, s{sW}, 3072")
        a(f"s_sub_u32 s{sC}, 65536, s{sA}")
        a(f"s_lshl_b32 s{sA}, s{sW}, 10")
        a(f"s_add_u32 m0, s{sA}, {L_C}")
        a(f"buffer_load_dwordx4 v{vWO}, {sr(sTA,4)}, s{sC} offen lds")
        a.label("K_NOC")
    sort_job(a, shadow, stage_v, stage2)
    stamp(a, 2)
    a(f"ds_read_b128 {vr(ID,4)}, v{vIX} offset:{L_LUT1}")
    a(f"ds_read_b128 {vr(ID+4,4)}, v{vIX+1} offset:{L_LUT1}")
    read_x(a, sWIN0)
    a.wait_all(lg=False)
    last_wave_flag(a, L_SG1, None, 3, "K_NOS1")
    a("s_barrier")
    a(f"s_mov_b64 exec, s[{sN2}:{sN3}]")
    a("s_cbranch_execz K_NOPF")
    a(f"buffer_load_dword v{AGG+30}, v{EF+17}, {sr(sEA,4)}, 0 offen")
    a.label("K_NOPF")
    a("s_mov_b64 exec, -1")
    a.vm = []
    edge_weights(a)
    table_setup(a, sNODE0, L_TSCR)

    def cells():
        fstamp(a, 1, 8)
        a(f"s_lshl_b32 s{sA}, s2, 3")
        a(f"v_lshrrev_b32 v{vCG+2}, 1, v{tid}")
        a(f"v_lshl_add_u32 v{vCG+2}, v{vCG+2}, 11, s{sA}")
        a(f"buffer_load_dwordx2 {vr(vCG,2)}, v{vCG+2}, {sr(sCELL,4)}, 0 offen", "cell")

    def records():
        fstamp(a, 2, 2)
        a.wait_vm("cell")
        a(f"s_mov_b32 s{sC}, 0")
        a.label("K_CHK")
        a(f"v_cmp_ne_u32 vcc, s{sTAG}, v{vCG}")
        if OPT["FORCE1"]:
            a("s_mov_b64 vcc, exec")
        a("s_mov_b64 exec, vcc")
        a("s_cbranch_execz K_CELLS")
        a(f"s_cmp_ge_u32 s{sC}, {3 if OPT['FORCE1'] else POLL_LIMIT}")
        a("s_cbranch_scc1 K_CFAIL")
        a("s_sleep 4")
        a(f"buffer_load_dwordx2 {vr(vCG,2)}, v{vCG+2}, {sr(sCELL,4)}, 0 offen sc1")
        a(f"s_add_u32 s{sC}, s{sC}, 1")
        a("s_waitcnt vmcnt(0)")
        a("s_branch K_CHK")
        a.label("K_CFAIL")
        a(f"v_mov_b32 v{vCG+1}, 0")
        a(f"v_mov_b32 v{vT}, {L_FB1}")
        a(f"v_mov_b32 v{vT+1}, 1")
        a(f"ds_write_b32 v{vT}, v{vT+1}")
        a.label("K_CELLS")
        a("s_mov_b64 exec, -1")
        stamp(a, 3)
        fstamp(a, 2, 3)
        split_cell(a, vCG + 1)
        load_records(a, "K_RL0")
        a.vm = []

    put0 = table_part(a, 0, XA, None, {7: cells}, AGG)

    def early_count():
        a(f"s_waitcnt vmcnt({len(a.vm)})")
        count_pass(a, "A", True)
        a.wait_all(vm=False)
    table_part(a, 1, XA, early_count, {0: lambda: (records(), put0())})
    fstamp(a, 2, 4)
    stamp(a, 4)
    a("s_branch K_COUNTED")
    a.label("K_BUILD")
    build(a)
    NE = NUP // 2
    window_regs(a, sWIN, sNODE, sWSZ)
    a(f"s_cmp_lg_u32 s{sROUND}, 0")
    a("s_cbranch_scc1 K_PLAIN")
    vm_branch = list(a.vm)
    fstamp(a, 3, 2)
    init_lists(a, "K_I0", False)
    fstamp(a, 3, 3)
    a(f"s_waitcnt vmcnt({E0})")
    fstamp(a, 3, 4)
    last_wave_flag(a, L_SG2, F_TAB, 2, "K_NOS2")
    list_addrs(a)
    fstamp(a, 3, 5)
    read_x(a, sWIN)
    fstamp(a, 3, 6)
    ecount = [E0]

    def ehook(n):
        def fn():
            for _ in range(n):
                if ecount[0] < NE:
                    e_load(a, ecount[0])
                    ecount[0] += 1
        return fn
    ehook(E1)()
    wg_sync(a)
    fstamp(a, 3, 7)
    rest = max(NE - ecount[0] - EL, 0)
    hk = lambda n: {0: ehook((n + 1) // 2), 4: ehook(n // 2)}
    node_proj(a, hk((rest + 1) // 2), hk(rest // 2))
    flags_load(a)
    last = NE - ecount[0]
    ehook(last)()
    list_fields(a, tid, "K_D")
    stamp(a, 6)
    fstamp(a, 3, 8)
    flags_check(a, last)
    wg_sync(a)
    a(f"v_mov_b32 v{vT+3}, {L_FB2}")
    a(f"ds_read_b32 v{vT+3}, v{vT+3}", "fb")
    rd_idx(a, 0)
    a.wait_lg("fb")
    a(f"v_readfirstlane_b32 s{sA}, v{vT+3}")
    a(f"s_cmp_lg_u32 s{sA}, 0")
    a("s_cbranch_scc1 K_HELP2")
    a.label("K_GO")
    a.vm = []
    fstamp(a, 3, 9)

    def fill_dma(v):
        if v % 2 == 0:
            a.wait_lg(f"ix{v // 2}")
            voffs(a)
            if v + 2 <= AH + 1:
                rd_idx(a, v // 2 + 1)
        issue_dma(a, v)
    for v in range(AH):
        fill_dma(v)
    a(f"v_and_b32 v{vSI}, -4, v{vSA}")
    a(f"v_add_u32 v{vSI}, 2, v{vSI}")
    rd_sel_addr(a, 0)
    rd_agg_addr(a, 0)
    rd_sel(a, 0)
    a(f"s_waitcnt vmcnt({len(a.vm)})")
    e_exchange_write(a)
    wg_sync(a)
    e_exchange_read(a)
    stamp(a, 7)
    a(f"s_cmp_eq_u32 s{sNT}, 0")
    a("s_cbranch_scc1 K_RDONE")
    a(f"s_and_b32 s{sA}, s{sW}, 3")
    a(f"s_lshl_b32 s{sA}, s{sA}, 2")
    a(f"s_add_u32 s{sA}, s{sA}, {L_FAIR}")
    a(f"v_mov_b32 v{vT}, s{sA}")
    lane_id(a, vT + 2)
    a(f"v_cmp_eq_u32 vcc, 0, v{vT+2}")
    a(f"v_mov_b32 v{vT+1}, s{sSTEP}")
    a(f"v_lshlrev_b32 v{vT+2}, 2, v{vT+2}")
    a(f"v_cndmask_b32 v{vT+1}, 0, v{vT+1}, vcc")
    a(f"v_cndmask_b32 v{vT}, v{vT+2}, v{vT}, vcc")
    a.wait_vm("d0")
    for rd, tg in frag_reads(0):
        a(rd, tg)
    a.wait_lg("f0")
    fill_dma(AH)
    mm = main_mfmas(0)
    for m in mm[:4]:
        a(m)
    a.wait_vm("d1")
    for rd, tg in frag_reads(1):
        a(rd, tg)
    a.wait_lg("s0")
    for m in mm[4:]:
        a(m)
    a.wait_lg("f1")
    fill_dma(AH + 1)
    a(f"s_cmp_eq_u32 s{sNT}, 1")
    a("s_cbranch_scc1 K_ST0")
    for u in range(2 * TCAP - 2):
        slot(a, u)
        if u % 2 == 1 and u < 2 * TCAP - 3:
            a(f"s_cmp_eq_u32 s{sNT}, {(u + 1) // 2 + 1}")
            a(f"s_cbranch_scc1 K_ST{(u + 1) // 2}")
    for t in range(TCAP - 1, -1, -1):
        a.label(f"K_ST{t}")
        for j in range(4):
            a(f"v_mov_b32 v{vVO+j}, v{e_reg(t)+j}")
        if t:
            a("s_branch K_LAST")
    a.wait_all(vm=False)
    a("s_branch K_LAST0")
    a.label("K_LAST")
    a.wait_all(vm=False)
    for m in agg_mfmas(1):
        a(m)
    a.label("K_LAST0")
    a(f"ds_read_b128 {vr(AOH,4)}, v{vG0} offset:{L_LUT2}")
    a(f"ds_read_b128 {vr(AOH+4,4)}, v{vG0+1} offset:{L_LUT2}")
    a(f"s_sub_u32 s{sA}, s{sNT}, 1")
    a(f"s_lshl_b32 s{sA}, s{sA}, 5")
    a(f"s_sub_u32 s{sB}, s{sNW}, s{sA}")
    mm = main_mfmas(1)
    mm[4] = mfma(ACC + 32, vVO, CW + 4, ACC + 32)

    def part(base, tag, extra):
        g, h = base, base + 16
        extra = list(extra)
        for m in range(2, 8):
            a(f"v_mov_b32 v{MSG+m}, 0")
        for q in range(4):
            if q:
                a(f"s_cmp_le_u32 s{sB}, {8*q}")
                a(f"s_cbranch_scc1 {tag}")
            for j in range(4 * q, 4 * q + 4):
                a(f"v_exp_f32 v{g+j}, v{g+j}")
                if extra:
                    a(extra.pop(0))
            for j in range(4 * q, 4 * q + 4):
                a(f"v_fma_f32 v{g+j}, v{g+j}, v{h+j}, v{h+j}")
                if extra:
                    a(extra.pop(0))
            for j in range(4 * q, 4 * q + 4):
                a(f"v_rcp_f32 v{g+j}, v{g+j}")
            for m in (2 * q, 2 * q + 1):
                a(f"v_cvt_pk_bf16_f32 v{MSG+m}, v{g+2*m}, v{g+2*m+1}")
        a.label(tag)
        a("s_nop 1")
    part(ACC, "K_LA", mm)
    a.wait_all(vm=False)
    for m in agg_mfmas(0):
        a(m)
    a("s_nop 3")
    part(ACC + 32, "K_LB", [])
    for m in agg_mfmas(1):
        a(m)
    a.label("K_RDONE")
    stamp(a, 8)
    a(f"s_cmp_lg_u32 s{sMORE}, 0")
    a("s_cbranch_scc1 K_ROUND")
    wr, rd, go = MSG, MSG + 4, vVO
    a(f"s_lshl_b32 s{sC}, s{sFH}, 7")
    line_addrs(a, wr, rd, go, sRING, sNODE, 8, 32, sC, sWSZ)
    for f in range(2):
        g, w = AGG + 16 * f, ACC + 16 * f
        for j in range(16):
            a(f"v_mul_f32 v{w+j}, s{sNL}, v{g+j}")
        for j in range(16):
            a(f"v_exp_f32 v{w+j}, v{w+j}")
        for j in range(16):
            a(f"v_add_f32 v{w+j}, 1.0, v{w+j}")
        for j in range(16):
            a(f"v_rcp_f32 v{w+j}, v{w+j}")
        for j in range(16):
            a(f"v_mul_f32 v{w+j}, v{w+j}, v{g+j}")
        for m in range(8):
            a(f"v_cvt_pk_bf16_f32 v{ACC+32+8*f+m}, v{w+2*m}, v{w+2*m+1}")
    a.wait_all()
    for i in range(4):
        a(f"ds_write_b128 v{wr+i}, {vr(ACC+32+4*i,4)}")
    for i in range(4):
        a(f"ds_read_b128 {vr(ACC+4*i,4)}, v{rd} offset:{1024*i}", f"or{i}")
    for i in range(4):
        a.wait_lg(f"or{i}")
        a(f"buffer_store_dwordx4 {vr(ACC+4*i,4)}, v{go+i}, {sr(sOUT,4)}, 0 offen sc1")
    a(f"s_cmp_lg_u32 s{sW}, 0")
    a("s_cbranch_scc1 K_FIN")
    a(f"s_cmp_eq_u32 s{sHELP}, 0")
    a("s_cbranch_scc1 K_NOWD")
    a(f"s_sub_u32 s{sB}, s{sTAG}, 1")
    for j in range(8):
        a(f"v_mov_b32 v{vPUB+j}, s{sB}")
    put_cells(a)
    put_flag(a, F_TAB, sB, 2)
    a.label("K_NOWD")
    a("s_cmp_lg_u32 s3, 0")
    a("s_cbranch_scc1 K_FIN")
    a(f"v_mov_b32 v{vT}, {F_TAG}")
    a(f"v_mov_b32 v{vT+1}, s{sTAG}")
    a("s_mov_b64 exec, 1")
    a(f"buffer_store_dword v{vT+1}, v{vT}, {sr(sFLG,4)}, 0 offen sc1")
    a("s_mov_b64 exec, -1")
    a.label("K_FIN")
    if OPT["STAMP"]:
        stamp(a, 9)
        stamp_store(a)
    a.label("K_END")
    a("s_endpgm")

    a.label("K_PLAIN")
    a.vm = list(vm_branch)
    for i in range(E0, NE):
        e_load(a, i)
    list_fields(a, tid, "K_P")
    wg_sync(a)
    rd_idx(a, 0)
    a("s_branch K_GO")

    a.label("K_OVF")
    a(f"s_cmp_eq_u32 s{sR}, 1")
    a(f"s_cselect_b32 s{sA}, 2, 0")
    a(f"s_or_b32 s{sPAR}, s{sPAR}, s{sA}")
    a(f"s_lshr_b32 s{sR}, s{sR}, 1")
    a(f"s_max_u32 s{sR}, s{sR}, 1")
    a("s_branch K_AGAIN")
    a.label("K_ROUND")
    a(f"s_mov_b32 s{sROUND}, 1")
    a(f"s_xor_b32 s{sPAR}, s{sPAR}, 1")
    a.label("K_AGAIN")
    a("s_setprio 0")
    a("s_nop 7")
    a.wait_all()
    a("s_barrier")
    lane_id(a, tid)
    a(f"s_lshl_b32 s{sA}, s{sW}, 6")
    a(f"v_add_u32 v{tid}, s{sA}, v{tid}")
    load_records(a, "K_RL1", True)
    init_lists(a, "K_I1", True)
    a.wait_all()
    a("s_barrier")
    a("s_branch K_BUILD")

    a.label("K_HELP1")
    a(f"s_mov_b32 s{sHELP}, 1")
    a(f"s_mov_b32 s{sJOB}, 0")
    a.wait_all()
    a("s_barrier")
    srd(a, sREC, pWS, REC_SZ, REC2_OFF)
    a("s_branch K_SORT")
    a.label("K_HELP1N")
    a(f"s_add_u32 s{sJOB}, s{sJOB}, 1")
    a(f"s_cmp_lt_u32 s{sJOB}, {NWG}")
    a("s_cbranch_scc1 K_SORT")
    a(f"v_lshlrev_b32 v{vT+3}, 1, v{tid}")
    a(f"v_and_b32 v{vT+3}, -4, v{vT+3}")
    a(f"ds_read_b32 v{vT+3}, v{vT+3} offset:{L_HC}")
    a(f"v_mov_b32 v{vT}, {L_FB1}")
    a(f"v_mov_b32 v{vT+1}, 0")
    a(f"ds_write_b32 v{vT}, v{vT+1}")
    a.wait_all()
    split_cell(a, vT + 3)
    a("s_branch K_AGAIN")

    a.label("K_HELP2")
    a(f"s_mov_b32 s{sHELP}, 1")
    a.wait_all()
    a(f"v_mov_b32 v{vG0 - 1}, v{vSA}")
    weight_offset(a)
    stage_weights(a, 128, pV, "h")
    a(f"v_mov_b32 v{vSA}, v{vG0 - 1}")
    a(f"s_mov_b32 s{sJOB}, 0")
    a.label("K_HJOB")
    a(f"s_lshl_b32 s{sA}, s{sWIN0}, 3")
    a(f"s_lshr_b32 s0, {WOFFPK}, s{sA}")
    a(f"s_and_b32 s0, s0, 0xff")
    a(f"s_mul_i32 s{sA}, s{sJOB}, {NB}")
    a(f"s_add_u32 s0, s0, s{sA}")
    stage_x(a, 0, "h")
    a.wait_all()
    a("s_barrier")
    read_x(a, sWIN0)
    wg_sync(a)
    table_setup(a, 0, L_X)
    table_part(a, 0, FR)
    table_part(a, 1, FR)
    a.wait_all()
    a("s_barrier")
    a(f"s_add_u32 s{sJOB}, s{sJOB}, 1")
    a(f"s_cmp_lt_u32 s{sJOB}, {NWG}")
    a("s_cbranch_scc1 K_HJOB")
    rd_idx(a, 0)
    a("s_branch K_GO")
    return a


def main():
    k = gen()
    text = k.text()
    ref = open(f"cdna_kernels/{NAME}.s.ref").read().split("; Override launch")[0]
    out = ref + f"; @launch grid=({NWG},1,1) block=(512,1,1) lds={KLDS}\n"
    out += "; Workspace: node tables, per-chunk records and cells, hand-off flags and the launch tag word.\n"
    out += '.amdgcn_target "amdgcn-amd-amdhsa--gfx950"\n.text\n'
    out += f".globl {NAME}_kernel\n.p2align 8\n.type {NAME}_kernel,@function\n{NAME}_kernel:\n{text}"
    out += f""".section .rodata,"a"
.p2align 6
.amdhsa_kernel {NAME}_kernel
  .amdhsa_next_free_vgpr 256
  .amdhsa_next_free_sgpr 102
  .amdhsa_accum_offset 256
  .amdhsa_group_segment_fixed_size 0
  .amdhsa_fp16_overflow 1
  .amdhsa_kernarg_size 80
  .amdhsa_user_sgpr_count 2
  .amdhsa_user_sgpr_kernarg_segment_ptr 1
  .amdhsa_system_sgpr_workgroup_id_x 1
.end_amdhsa_kernel
"""
    open(sys.argv[1], "w").write(out)
    print(f"lds {KLDS} nops {k.nops}; lines {out.count(chr(10))}")


if __name__ == "__main__":
    main()
```
